```python
import torch

def _softmax(x, axis=-1):
    return torch.softmax(x, dim=axis)
def _gelu(x):
    return torch.nn.functional.gelu(x, approximate="tanh")
def _silu(x):
    return torch.nn.functional.silu(x)
def _sigmoid(x):
    return torch.sigmoid(x)
def _layernorm(x, axis=-1, eps=1e-5):
    m = x.mean(dim=axis, keepdim=True)
    v = x.var(dim=axis, keepdim=True, unbiased=False)
    return (x - m) / torch.sqrt(v + eps)
def _scatter_add(tgt, idx, src, axis=0):
    return tgt.clone().index_add_(axis, idx, src)
def _segment_sum(src, seg, n):
    out = torch.zeros((n,) + src.shape[1:], dtype=src.dtype)
    return out.index_add_(0, seg, src)
def _pad(x, pw):
    flat = tuple(v for pair in reversed(pw) for v in pair)
    return torch.nn.functional.pad(x, flat)

kernel_name = 'standalone__hybrid_graph_tf_nagphormer__graph'

def setup_inputs():

    _w = (lambda a: (lambda t: t.to(torch.bfloat16) if t.is_floating_point() else t)(torch.as_tensor(a)))
    N, deg, D = 50000, 16, 64
    E = N * deg
    src = (lambda lo, hi, *s: torch.randint(lo, hi, s))(0, N, E).to(torch.int64)
    dst = (lambda lo, hi, *s: torch.randint(lo, hi, s))(0, N, E).to(torch.int64)
    deg_cnt = torch.bincount(dst, minlength=N).to(float) + 1.0
    sc = 1.0 / D ** 0.5
    return {
        "x": _w((lambda *s: torch.randn(*s, dtype=torch.bfloat16) * 0.1)(N, D)),
        "src": _w(src),
        "dst": _w(dst),
        "deg_inv_sqrt": _w(1.0 / (lambda _x: torch.sqrt(torch.as_tensor(_x)))(deg_cnt)),
        "wq": _w((lambda *s: torch.randn(*s, dtype=torch.bfloat16) * 3.2)(D, D) * sc),
        "wk": _w((lambda *s: torch.randn(*s, dtype=torch.bfloat16) * 3.2)(D, D) * sc),
        "wv": _w((lambda *s: torch.randn(*s, dtype=torch.bfloat16) * 0.1)(D, D) * sc),
        "wo": _w((lambda *s: torch.randn(*s, dtype=torch.bfloat16) * 0.1)(D, D) * sc),
        "w_r": _w((lambda *s: torch.randn(*s, dtype=torch.bfloat16) * 0.1)(D)),
    }

def reference(x, src, dst, deg_inv_sqrt, wq, wk, wv, wo, w_r):
    N, D = x.shape[0], x.shape[1]
    K = 7
    h = x
    toks = [x]
    for _ in range(K):
        msg = h[src] * deg_inv_sqrt[src, None] * deg_inv_sqrt[dst, None]
        h = _segment_sum(msg, dst, N)
        toks.append(h)
    tok = torch.stack(toks, axis=1)
    t = _layernorm(tok, axis=-1)
    q   = torch.einsum('nkd,de->nke', t, wq)
    key = torch.einsum('nkd,de->nke', t, wk)
    v   = torch.einsum('nkd,de->nke', t, wv)
    scale = 1.0 / (D ** 0.5)
    attn = _softmax(torch.einsum('nkd,nld->nkl', q, key) * scale, axis=-1)
    o = torch.einsum('nkl,nld->nkd', attn, v)
    o = tok + torch.einsum('nkd,de->nke', o, wo)
    r = _layernorm(o, axis=-1)
    alpha = _softmax(torch.einsum('nkd,d->nk', r, w_r), axis=-1)
    return torch.einsum('nk,nkd->nd', alpha, o)
```

```python
import re
TRANS=('v_exp_f32','v_log_f32','v_rcp_f32','v_rsq_f32','v_sqrt_f32','v_sin_f32','v_cos_f32','v_rcp_iflag_f32')
def regs_of(op):
    op=op.strip()
    op=re.sub(r'^-|^abs\(|\)$|^\|','',op).strip('|')
    m=re.fullmatch(r'([vsa])(\d+)',op)
    if m: return [(m.group(1),int(m.group(2)))]
    m=re.fullmatch(r'([vsa])\[(\d+):(\d+)\]',op)
    if m: return [(m.group(1),i) for i in range(int(m.group(2)),int(m.group(3))+1)]
    if op=='vcc': return [('s','vcc')]
    if op in('vcc_lo','vcc_hi'): return [('s','vcc')]
    if op in('exec','exec_lo','exec_hi'): return [('s','exec')]
    if op=='m0': return [('s','m0')]
    return []
class Ins:
    def __init__(s,text):
        s.text=text
        t=text.split(';')[0].strip()
        s.label=None; s.mn=None; s.w=set(); s.r=set(); s.kind=None; s.ops=[]
        if not t or t.startswith('.'):
            s.kind='dir'; return
        if t.endswith(':'):
            s.label=t[:-1]; s.kind='label'; return
        p=t.split(None,1); mn=p[0]; s.mn=mn
        rest=p[1] if len(p)>1 else ''
        ops=[];d=0;cur=''
        for ch in rest:
            if ch in'[(':d+=1
            if ch in'])':d-=1
            if ch==',' and d==0: ops.append(cur.strip());cur=''
            else: cur+=ch
        if cur.strip(): ops.append(cur.strip())
        mods=''
        if ops:
            q=ops[-1].split(None,1)
            ops[-1]=q[0]
            if len(q)>1: mods=q[1]
        s.ops=ops; s.mods=mods
        R=lambda l:set(x for o in l for x in regs_of(o))
        s.dpp = mn.endswith('_dpp') or 'row_' in mods or 'quad_perm' in mods
        s.states=1
        if mn=='s_nop': s.states=int(ops[0],0)+1; s.kind='salu'
        elif mn.startswith('v_mfma'):
            s.kind='mfma'; s.w=R(ops[:1]); s.a=R(ops[1:3]); s.c=R(ops[3:4]); s.r=s.a|s.c
            s.sgemm = mn.endswith('_f32') and '_bf16' not in mn
            if '32x32x16' in mn or '32x32x8' in mn: s.passes=8
            elif '16x16x4_f32' in mn: s.passes=8
            elif '16x16' in mn: s.passes=4
            else: raise Exception(mn)
            s.dtuple=ops[0]; s.ctuple=ops[3]
        elif mn.startswith('v_'):
            s.kind='valu'
            if mn.startswith('v_cmpx'): s.w=R(ops[:1])|{('s','exec')}; s.r=R(ops[1:])
            elif mn.startswith('v_permlane') and 'swap' in mn: s.w=R(ops); s.r=R(ops)
            elif re.match(r'v_(add|sub|subrev|addc|subb)_co',mn): s.w=R(ops[:2]); s.r=R(ops[2:])
            else:
                s.w=R(ops[:1]); s.r=R(ops[1:])
                if mn.startswith(('v_fmac','v_dot2c','v_writelane')) or s.dpp: s.r|=s.w
            s.trans=any(mn.startswith(x) for x in TRANS)
        elif mn.startswith('ds_'):
            s.kind='ds'
            if mn.startswith('ds_read') or '_rtn' in mn or 'permute' in mn or 'swizzle' in mn: s.w=R(ops[:1]); s.r=R(ops[1:])
            else: s.r=R(ops)
        elif mn.startswith(('buffer_','global_')):
            s.kind='vmem'
            s.lds=' lds' in ' '+mods or '_lds_' in mn
            if 'load' in mn and not s.lds: s.w=R(ops[:1]); s.r=R(ops[1:])
            elif 'atomic' in mn and 'sc0' in mods: s.w=R(ops[:1]); s.r=R(ops)
            else: s.r=R(ops)
            if s.lds: s.r|={('s','m0')}
            s.wide = 'store' in mn and mn.endswith(('x3','x4'))
            s.data=R(ops[:1]) if mn.startswith('buffer_') else R(ops[1:2])
        elif mn.startswith('s_'):
            s.kind='salu'
            if mn.startswith(('s_cbranch','s_branch')): s.target=ops[0]
            elif mn.startswith(('s_cmp','s_bitcmp','s_waitcnt','s_barrier','s_sleep','s_setprio','s_endpgm')): s.r=R(ops)
            elif mn.startswith('s_atomic'):
                s.r=R(ops); s.w=R(ops[:1]) if 'glc' in mods else set()
            else:
                s.w=R(ops[:1]); s.r=R(ops[1:])
                if 'saveexec' in mn: s.w|={('s','exec')}
        else: raise Exception('unknown '+text)
def need(p,c):
    n=0
    V=lambda st:set(x for x in st if x[0] in 'va')
    S=lambda st:set(x for x in st if x[0]=='s')
    if p.kind=='valu':
        vw=V(p.w); sw=S(p.w)
        if c.kind=='mfma':
            if vw&c.r: n=max(n,3 if p.mn.startswith('v_dot') else 2)
            if ('s','exec') in sw: n=max(n,4)
        if c.kind=='valu':
            if c.dpp and vw&c.r: n=max(n,2)
            if c.dpp and ('s','exec') in sw: n=max(n,5)
            if c.mn.startswith('v_permlane'):
                if vw&c.r: n=max(n,2)
                if ('s','exec') in sw: n=max(n,4)
            if c.mn.startswith(('v_readlane','v_readfirstlane')) and vw&c.r: n=max(n,1)
            if c.mn.startswith(('v_readlane','v_readfirstlane','v_writelane')):
                if ('s','exec') in sw: n=max(n,4)
                if sw&S(c.r): n=max(n,4)
            if sw&S(c.r): n=max(n,2)
            if p.trans and vw&c.r: n=max(n,1)
            if ('op_sel' in p.mods or 'sdwa' in p.mn) and vw&(c.r|c.w): n=max(n,1)
            if p.mn.startswith('v_dot') and vw&(c.r|c.w): n=max(n,3)
        if c.kind=='vmem' and sw&c.r: n=max(n,5)
        if c.kind in('vmem','ds') and p.mn.startswith('v_dot') and vw&c.r: n=max(n,3)
        if c.kind=='salu' and sw&c.r: n=max(n,1)
    if p.kind=='salu':
        if ('s','m0') in p.w and c.kind=='vmem' and c.lds: n=max(n,1)
        if ('s','m0') in p.w and c.kind=='valu' and ('s','m0') in c.r: n=max(n,1)
    if p.kind=='vmem' and getattr(p,'wide',False):
        if p.data&c.w: n=max(n,2)
    if p.kind=='mfma':
        P=p.passes
        t_ab={4:8,8:12}[P]; t_c={4:6,8:10}[P]; t_war={4:3,8:7}[P]
        if p.sgemm: t_ab={4:6,8:10}[P]; t_c={4:4,8:8}[P]; t_war=0
        if c.kind=='mfma':
            if p.w&c.a: n=max(n,t_ab)
            if p.w&c.c:
                if not(p.dtuple==c.ctuple and p.passes==c.passes and p.sgemm==c.sgemm): n=max(n,t_c)
            elif p.w&c.w: n=max(n,t_c)
        elif c.kind in('valu','ds','vmem'):
            if p.w&(c.r|c.w): n=max(n,t_ab)
            if c.kind=='valu' and p.c&c.w: n=max(n,t_war)
    return n
class Asm:
    def __init__(s): s.l=[]
    def __call__(s,text):
        for ln in text.split('\n'):
            if ln.strip(): s.l.append(ln.strip())
    def pad(s,verbose=False):
        ins=[Ins(t) for t in s.l]
        lab={x.label:i for i,x in enumerate(ins) if x.kind=='label'}
        br={}
        for i,x in enumerate(ins):
            if x.kind=='salu' and hasattr(x,'target') and x.target in lab: br.setdefault(lab[x.target],[]).append(i)
        extra=[0]*len(ins)
        def back(i,dist,c,seen):
            best=0
            stack=[(i,dist)]
            while stack:
                j,d=stack.pop()
                if d>=13: continue
                preds=list(br.get(j,[]))
                if j>0:
                    q=ins[j-1]
                    if not(q.mn in('s_branch','s_endpgm')): preds.append(j-1)
                for k in preds:
                    if (k,d) in seen: continue
                    seen.add((k,d))
                    q=ins[k]
                    if q.kind in('label','dir'): stack.append((k,d)); continue
                    best=max(best,need(q,c)-d)
                    stack.append((k,d+q.states+extra[k]))
            return best
        tot=0
        for i,x in enumerate(ins):
            if x.kind in('label','dir'): continue
            e=back(i,0,x,set())
            if e>0: extra[i]=e; tot+=e
        out=[]
        for i,x in enumerate(ins):
            if extra[i]>0: out.append(f'  s_nop {extra[i]-1}')
            out.append(x.text if x.kind in('label','dir') else '  '+x.text)
        if verbose: print('padded states:',tot,'instructions:',sum(1 for x in ins if x.mn))
        return '\n'.join(out)+'\n'
```

```python
import sys, struct
sys.path.insert(0,'gen')
from asmlib import Asm
N=50000; E=800000; NPW=196; CH=3125
KNAME='standalone__hybrid_graph_tf_nagphormer__graph_kernel'
TSTR=16<<20
MISC=112<<20
CHSTR=12544
OFFS=4<<20
SYNC=5<<20
STAMP=6<<20
PROBE=14<<20
WSTR=8960
L_RING=0; L_AL=6144; CAP=352; L_CL=L_AL+CAP*4; L_ST=7936
L_W=16*WSTR
L_CNT1=L_W+13312; L_BASE1=L_CNT1+1040
L_SH=L_W+16384
L_CNT2=L_SH; L_BASE2=L_SH+1040; L_SA=L_SH; L_MISC=L_SH+2304
LDS_BYTES=L_SH+4096
assert LDS_BYTES==163840 and L_CL+CAP<=L_ST and L_ST+1024<=WSTR
fb=lambda x: struct.unpack('<I',struct.pack('<f',x))[0]
LOG2E=1.4426950408889634
OOB=0x80000000

def gen(R=3, NBAR=6, stamp=False, force_slow=False, spinmax=1<<18):
    a=Asm()
    ACC=0; AOP=16; B0=24; B1=25; COLW=26; TMP=27; EN=28; DA=30; TRA=32; LO=36; AP=38; CP=39; NOTN=40
    S1=41; DIS=42; SA=43; SWA=45; SRA=46; TRD=47; STA=48; LANE=49; X=50; TS=69
    TG=70; T0=72
    T=lambda p:T0+8*p
    sWG=2; sW=3; sTIN=28; sTOUT=32; sWS=36; sT1=40; sT2=44
    sU=48; sREM=49; sBA=50; sBD=51; sRB=52; sK=53; sSLOW=54; sNB=55; sA=56; sB=57; sC=58; sD=59
    sK1=60; sK2=61; sSPIN=62; sEV=63; sM=64
    sP0=66; sP1=68; sPM=70; sSEG=71; sOFF=72; sCNT=73; sSTART=74; sBK=75; sSI=76; sSW=77; sM2=78
    nst=[0]
    def st(i):
        if stamp:
            a(f'''s_memrealtime s[80:81]
s_waitcnt lgkmcnt(0)
s_add_u32 m0, s{sSI}, {i}
s_nop 0
v_writelane_b32 v{TS}, s80, m0''')
    def srd(d,lo,nbytes):
        a(f'''s_mov_b32 s{d}, s{lo}
s_mov_b32 s{d+1}, s{lo+1}
s_mov_b32 s{d+2}, {nbytes}
s_mov_b32 s{d+3}, 0x20000''')
    uid=[0]
    def L(x):
        uid[0]+=1; return f'L_{x}_{uid[0]}'
    def spin(lab):
        a(f'''s_sleep 1
s_add_u32 s{sSPIN}, s{sSPIN}, 1
s_cmp_lt_u32 s{sSPIN}, {spinmax}
s_cbranch_scc1 {lab}
s_endpgm''')
    a(f'''s_cmp_ge_u32 s2, 256
s_cbranch_scc1 L_end
s_load_dwordx16 s[4:19], s[0:1], 0
s_load_dwordx8 s[20:27], s[0:1], 64
v_lshrrev_b32 v1, 6, v0
v_and_b32 v{LANE}, 63, v0
v_readfirstlane_b32 s{sW}, v1
v_lshlrev_b32 v2, 4, v0
s_mul_i32 s{sA}, s2, {CH*4}
s_mov_b32 s{sSI}, 0
s_mov_b32 s{sSPIN}, 0
v_mov_b32 v{TS}, 0
s_mul_i32 s{sRB}, s{sW}, {WSTR}
s_waitcnt lgkmcnt(0)''')
    srd(sT1,6,E*4); srd(sT2,8,E*4)
    a(f'''s_cmp_ge_u32 s{sW}, 13
s_cbranch_scc1 L_noedge
buffer_load_dwordx4 v[4:7], v2, s[{sT2}:{sT2+3}], s{sA} offen
buffer_load_dwordx4 v[8:11], v2, s[{sT1}:{sT1+3}], s{sA} offen
L_noedge:''')
    st(0)
    a(f'''s_add_u32 s26, s26, 0x1fffff
s_addc_u32 s27, s27, 0
s_and_b32 s26, s26, 0xffe00000''')
    srd(sTIN,26,TSTR); srd(sTOUT,26,TSTR)
    a(f'''s_add_u32 s{sWS}, s26, {MISC}
s_addc_u32 s{sWS+1}, s27, 0
s_mov_b32 s{sWS+2}, {8<<20}
s_mov_b32 s{sWS+3}, 0x20000
s_add_u32 s90, s26, {PROBE}
s_addc_u32 s91, s27, 0
s_add_u32 s92, s26, {MISC+SYNC}
s_addc_u32 s93, s27, 0''')
    srd(sT1,4,N*128); srd(sT2,10,N*2)
    a(f'''v_and_b32 v12, 15, v{LANE}            ; n
v_lshrrev_b32 v13, 4, v{LANE}          ; q
v_lshrrev_b32 v14, 1, v12
v_lshlrev_b32 v14, 5, v14
v_and_b32 v15, 1, v12
s_lshl_b32 s{sB}, s{sW}, 1
v_add3_u32 v14, v14, v15, s{sB}        ; r
s_movk_i32 s{sC}, {NPW}
v_cmp_gt_u32 s[{sM}:{sM+1}], s{sC}, v14
s_mul_i32 s{sD}, s2, {NPW}
v_add_u32 v14, s{sD}, v14              ; node
v_mov_b32 v16, 0x01000000
v_cndmask_b32 v14, v16, v14, s[{sM}:{sM+1}]
v_lshlrev_b32 v15, 7, v14
v_lshl_add_u32 v15, v13, 3, v15
v_lshlrev_b32 v14, 1, v14
buffer_load_dwordx2 v[{X}:{X+1}], v15, s[{sT1}:{sT1+3}], 0 offen
buffer_load_dwordx2 v[{X+2}:{X+3}], v15, s[{sT1}:{sT1+3}], 0 offen offset:32
buffer_load_dwordx2 v[{X+4}:{X+5}], v15, s[{sT1}:{sT1+3}], 0 offen offset:64
buffer_load_dwordx2 v[{X+6}:{X+7}], v15, s[{sT1}:{sT1+3}], 0 offen offset:96
buffer_load_ushort v{DIS}, v14, s[{sT2}:{sT2+3}], 0 offen''')
    a(f'''v_mov_b32 v16, 0
v_mov_b32 v17, 0
v_mov_b32 v18, {OOB}
v_mov_b32 v19, {OOB}
v_mov_b32 v20, {OOB}
v_mov_b32 v21, {OOB}
v_lshlrev_b32 v22, 2, v0
v_lshl_add_u32 v23, v{LANE}, 4, s{sRB}
ds_write_b128 v23, v[18:21] offset:{L_AL}
ds_write_b128 v23, v[18:21] offset:{L_AL+CAP*4-1024}
v_lshl_add_u32 v23, v{LANE}, 2, s{sRB}
ds_write_b32 v23, v16 offset:{L_CL}
ds_write_b32 v23, v16 offset:{L_CL+CAP-256}
s_cmp_ge_u32 s{sW}, 5
s_cbranch_scc1 L_nocnt
v_add_u32 v22, {L_CNT1}, v22
v_cmp_gt_u32 vcc, 260, v0
s_and_saveexec_b64 s[{sM}:{sM+1}], vcc
ds_write_b32 v22, v16
ds_write_b32 v22, v16 offset:{L_CNT2-L_CNT1}
ds_write_b32 v22, v16 offset:{L_MISC-L_CNT1}
s_mov_b64 exec, s[{sM}:{sM+1}]
v_mov_b32 v22, {L_BASE1+1024}
v_mov_b32 v23, {CH}
ds_write_b32 v22, v23
L_nocnt:''')
    a(f'''; tr-read addresses: lane=(q, r, c): g=2q+(r&1), i=r>>1, swz=((g>>1)&1)*2+i
v_bfe_u32 v16, v{LANE}, 2, 1           ; r&1
v_bfe_u32 v17, v{LANE}, 3, 1           ; i
v_lshl_add_u32 v16, v13, 1, v16        ; g
v_lshlrev_b32 v16, 7, v16
v_lshl_add_u32 v16, v17, 10, v16
v_and_b32 v18, 1, v13
v_lshl_add_u32 v18, v18, 1, v17        ; swz
v_lshl_add_u32 v16, v18, 5, v16
v_and_b32 v18, 3, v{LANE}
v_lshl_add_u32 v16, v18, 3, v16
v_add_u32 v{TRA}, s{sRB}, v16
v_xor_b32 v{TRA+1}, 32, v{TRA}
v_xor_b32 v{TRA+2}, 64, v{TRA}
v_xor_b32 v{TRA+3}, 96, v{TRA}
v_and_b32 v16, 7, v{LANE}
v_bfe_u32 v17, v{LANE}, 4, 1           ; (g>>1)&1, g=lane>>3
v_lshlrev_b32 v17, 2, v17
v_xor_b32 v17, v17, v16
v_lshlrev_b32 v{LO}, 4, v17
v_xor_b32 v{LO+1}, 32, v{LO}
; ~(n*0x01010101)
s_mov_b32 s{sA}, 0x01010101
v_mul_lo_u32 v{NOTN}, v12, s{sA}
v_not_b32 v{NOTN}, v{NOTN}
s_mov_b32 s{sK1}, 0x40404041
s_mov_b32 s{sK2}, 0x40004000
v_mul_u32_u24 v17, 144, v12
v_lshl_add_u32 v17, v13, 3, v17
v_add_u32 v{SWA}, s{sRB}, v17
v_lshrrev_b32 v18, 3, v{LANE}          ; g
v_mul_u32_u24 v17, 144, v18
v_lshl_add_u32 v17, v16, 4, v17
v_add_u32 v{SRA}, s{sRB}, v17
v_bfe_u32 v17, v{LANE}, 3, 1
v_mul_u32_u24 v17, 144, v17
v_lshl_add_u32 v17, v13, 4, v17
v_add_u32 v{TRD}, s{sRB}, v17
v_lshl_add_u32 v{STA}, v12, 6, s{sRB}   ; col*64 (+k*8)
; table store addresses for rows g and g+8''')
    for i in range(2):
        a(f'''v_lshrrev_b32 v17, 1, v18
v_lshlrev_b32 v17, 5, v17
v_and_b32 v19, 1, v18
v_add3_u32 v17, v17, v19, s{sB}
v_add_u32 v17, {128*i}, v17             ; r
v_cmp_gt_u32 s[{sM}:{sM+1}], s{sC}, v17
v_add_u32 v17, s{sD}, v17              ; node
v_and_b32 v19, 0xffc0, v17
v_add_u32 v19, v19, v17
v_and_b32 v17, 0x2000, v17
v_lshl_add_u32 v17, v19, 7, v17
v_lshl_add_u32 v17, v16, 4, v17
v_mov_b32 v19, {OOB}
v_cndmask_b32 v{SA+i}, v19, v17, s[{sM}:{sM+1}]''')
    a(f'''v_mov_b32 v{S1}, 1.0
s_mov_b32 s{sPM}, -1
s_waitcnt lgkmcnt(0)
s_barrier''')
    st(1)
    def probe_code(reps):
        lp=L('pr')
        a(f'''s_lshr_b32 s{sA}, s2, 6
s_lshl_b32 s{sA}, s{sA}, 14
s_and_b32 s{sB}, s2, 63
s_lshl_b32 s{sB}, s{sB}, 7
s_add_u32 s{sA}, s{sA}, s{sB}
s_and_b32 s{sB}, s{sW}, 1
s_lshl_b32 s{sB}, s{sB}, 13
s_add_u32 s{sA}, s{sA}, s{sB}
s_mov_b32 s{sC}, 0
{lp}:
s_mov_b32 s{sB}, 1
s_memtime s[{sP0}:{sP0+1}]
s_waitcnt lgkmcnt(0)
s_atomic_add s{sB}, s[90:91], s{sA} glc
s_waitcnt lgkmcnt(0)
s_memtime s[{sP1}:{sP1+1}]
s_waitcnt lgkmcnt(0)
s_sub_u32 s{sB}, s{sP1}, s{sP0}
s_min_u32 s{sPM}, s{sPM}, s{sB}
s_add_u32 s{sC}, s{sC}, 1
s_cmp_lt_u32 s{sC}, {reps}
s_cbranch_scc1 {lp}
s_and_b32 s{sB}, s{sW}, 1
s_lshl_b32 s{sB}, s{sB}, 2
s_add_u32 s{sB}, s{sB}, {L_MISC+16}
v_mov_b32 v16, s{sB}
v_mov_b32 v17, s{sPM}
ds_write_b32 v16, v17''')
    a(f'''s_cmp_lt_u32 s{sW}, 13
s_cbranch_scc1 L_p1
s_cmp_eq_u32 s{sW}, 15
s_cbranch_scc1 L_w15''')
    probe_code(4)
    a('s_branch L_p1_b2')
    a('L_w15:')
    srd(sT1,24,256)
    a(f'''v_mov_b32 v16, 0
s_cmp_lg_u32 s2, 0
s_cbranch_scc1 L_w15p
v_lshlrev_b32 v17, 7, v{LANE}
s_mov_b32 s{sA}, {SYNC}
buffer_store_dword v16, v17, s[{sWS}:{sWS+3}], s{sA} offen sc1
s_mov_b32 s{sA}, {SYNC+8192}
buffer_store_dword v16, v17, s[{sWS}:{sWS+3}], s{sA} offen sc1
s_waitcnt vmcnt(0)
v_mov_b32 v17, 1
s_mov_b64 exec, 1
buffer_store_dword v17, v16, s[{sT1}:{sT1+3}], 0 offen sc1
s_mov_b64 exec, -1
L_w15p:
buffer_load_dword v17, v16, s[{sT1}:{sT1+3}], 0 offen sc1
s_waitcnt vmcnt(0)
v_readfirstlane_b32 s{sA}, v17
s_cmp_lg_u32 s{sA}, 0
s_cbranch_scc1 L_p1_b2''')
    spin('L_w15p')
    a(f'''L_p1:
s_mov_b32 s{sA}, 85599
v_lshlrev_b32 v2, 2, v0
v_mov_b32 v3, 1
v_mov_b32 v24, {L_CNT1+1024}
s_waitcnt vmcnt(6)''')
    for j in range(4):
        a(f'''v_mul_u32_u24 v16, s{sA}, v{4+j}
v_lshrrev_b32 v16, 24, v16            ; owner
v_mul_u32_u24 v17, {NPW}, v16
v_sub_u32 v{4+j}, v{4+j}, v17          ; r
v_and_b32 v17, 7, v16
v_lshrrev_b32 v16, 3, v16
v_lshl_add_u32 v16, v17, 5, v16
v_lshlrev_b32 v16, 2, v16
v_add_u32 v16, {L_CNT1}, v16
v_cmp_gt_u32 vcc, {CH-j}, v2
v_cndmask_b32 v{12+j}, v24, v16, vcc
ds_add_rtn_u32 v{20+j}, v{12+j}, v3''')
    a('s_waitcnt vmcnt(5)')
    for j in range(4): a(f'v_lshl_or_b32 v{8+j}, v{4+j}, 16, v{8+j}')
    a(f'''L_p1_b2:
s_waitcnt lgkmcnt(0)
s_barrier''')
    st(2)
    def scan(cnt, c, quad):
        a(f'''v_lshlrev_b32 v{c+9}, 4, v{LANE}
v_add_u32 v{c+9}, {cnt}, v{c+9}
ds_read_b128 v[{c}:{c+3}], v{c+9}
s_waitcnt lgkmcnt(0)
v_add_u32 v{c+6}, v{c}, v{c+1}
v_add_u32 v{c+7}, v{c+6}, v{c+2}
v_add_u32 v{c+4}, v{c+7}, v{c+3}
v_mov_b32 v{c+8}, v{c+4}''')
        if quad:
            a(f'''v_mov_b32 v{c+5}, 0
v_mov_b32_dpp v{c+5}, v{c+8} quad_perm:[0,0,1,2] row_mask:0xf bank_mask:0xf
v_cndmask_b32 v{c+5}, v{c+5}, 0, s[{sM}:{sM+1}]
v_add_u32 v{c+8}, v{c+8}, v{c+5}
v_mov_b32_dpp v{c+5}, v{c+8} quad_perm:[0,0,0,1] row_mask:0xf bank_mask:0xf
v_cndmask_b32 v{c+5}, v{c+5}, 0, s[{sM2}:{sM2+1}]
v_add_u32 v{c+8}, v{c+8}, v{c+5}''')
        else:
            for m in ('row_shr:1 row_mask:0xf','row_shr:2 row_mask:0xf','row_shr:4 row_mask:0xf','row_shr:8 row_mask:0xf','row_bcast:15 row_mask:0xa','row_bcast:31 row_mask:0xc'):
                a(f'v_add_u32_dpp v{c+8}, v{c+8}, v{c+8} {m} bank_mask:0xf')
        a(f'''v_sub_u32 v{c+4}, v{c+8}, v{c+4}
v_add_u32 v{c+5}, v{c+4}, v{c}
v_add_u32 v{c+6}, v{c+4}, v{c+6}
v_add_u32 v{c+7}, v{c+4}, v{c+7}
ds_write_b128 v{c+9}, v[{c+4}:{c+7}] offset:1040''')
    a(f'''s_cmp_ge_u32 s{sW}, 14
s_cbranch_scc1 L_p1_b3''')
    scan(L_CNT1,58,False)
    a(f'''s_cmp_lg_u32 s{sW}, 13
s_cbranch_scc1 L_p1_sc''')
    for j in range(4): a(f'v_lshl_or_b32 v{58+j}, v{58+j}, 16, v{62+j}')
    a(f'''s_lshl_b32 s{sA}, s2, 10
s_add_u32 s{sA}, s{sA}, {OFFS}
v_lshlrev_b32 v16, 4, v{LANE}
buffer_store_dwordx4 v[58:61], v16, s[{sWS}:{sWS+3}], s{sA} offen sc1
s_branch L_p1_b3
L_p1_sc:
s_waitcnt lgkmcnt(0)''')
    for j in range(4): a(f'ds_read_b32 v{16+j}, v{12+j} offset:1040')
    for j in range(4):
        a(f'''s_waitcnt lgkmcnt(3)
v_add_lshl_u32 v{16+j}, v{16+j}, v{20+j}, 2
v_add_u32 v{16+j}, {L_W}, v{16+j}
ds_write_b32 v{16+j}, v{8+j}''')
    a(f'''L_p1_b3:
s_waitcnt lgkmcnt(0)
s_barrier
s_cmp_ge_u32 s{sW}, 13
s_cbranch_scc1 L_p1_b4
v_lshlrev_b32 v2, 4, v0
v_add_u32 v3, {L_W}, v2
ds_read_b128 v[4:7], v3
s_mul_i32 s{sA}, s2, {CHSTR}
v_cmp_gt_u32 vcc, {CHSTR}, v2
v_mov_b32 v3, {OOB}
v_cndmask_b32 v2, v3, v2, vcc
s_waitcnt lgkmcnt(0)
buffer_store_dwordx4 v[4:7], v2, s[{sWS}:{sWS+3}], s{sA} offen sc1
L_p1_b4:
v_mov_b32 v68, v0
s_waitcnt vmcnt(0)
s_barrier''')
    st(3)
    def signal():
        l=L('ns')
        a(f'''s_lshl_b32 s{sA}, s{sEV}, 10
s_and_b32 s{sB}, s2, 7
s_lshl_b32 s{sB}, s{sB}, 7
s_add_u32 s{sA}, s{sA}, s{sB}
s_mov_b32 s{sB}, 1
s_waitcnt lgkmcnt(0)
s_atomic_add s{sB}, s[92:93], s{sA} glc
s_add_u32 s{sC}, s{sA}, {SYNC+8192}
v_mov_b32 v16, 0
v_mov_b32 v17, 1
s_waitcnt lgkmcnt(0)
s_cmp_lg_u32 s{sB}, 31
s_cbranch_scc1 {l}
s_mov_b64 exec, 1
buffer_store_dword v17, v16, s[{sWS}:{sWS+3}], s{sC} offen sc1
s_mov_b64 exec, -1
{l}:''')
    def poll():
        l=L('pl'); d=L('pd')
        a(f'''s_lshl_b32 s{sA}, s{sEV}, 10
s_add_u32 s{sA}, s{sA}, {SYNC+8192}
v_lshlrev_b32 v16, 7, v{LANE}
s_mov_b64 exec, 0xff
{l}:
buffer_load_dword v17, v16, s[{sWS}:{sWS+3}], s{sA} offen sc1
s_waitcnt vmcnt(0)
v_cmp_eq_u32 vcc, 0, v17
s_cbranch_vccz {d}''')
        spin(l)
        a(f'''{d}:
s_mov_b64 exec, -1''')
    def gstore():
        a(f'v_mul_f32 v{TMP}, v{S1}, v{DIS}')
        for t in range(4):
            for r in range(4): a(f'v_mul_f32 v{X+r}, v{TMP}, v{ACC+4*t+r}')
            a(f'''v_cvt_pk_bf16_f32 v{AOP+2*t}, v{X}, v{X+1}
v_cvt_pk_bf16_f32 v{AOP+2*t+1}, v{X+2}, v{X+3}
ds_write_b64 v{SWA}, v[{AOP+2*t}:{AOP+2*t+1}] offset:{32*t}''')
        a(f'''v_xor_b32 v{DA}, 0x2000, v{SA}
v_xor_b32 v{DA+1}, 0x2000, v{SA+1}
s_waitcnt lgkmcnt(0)
ds_read_b128 v[{X+8}:{X+11}], v{SRA}
ds_read_b128 v[{X+12}:{X+15}], v{SRA} offset:1152
s_waitcnt lgkmcnt(1)
buffer_store_dwordx4 v[{X+8}:{X+11}], v{SA}, s[{sTOUT}:{sTOUT+3}], 0 offen sc1
buffer_store_dwordx4 v[{X+8}:{X+11}], v{DA}, s[{sTOUT}:{sTOUT+3}], 0 offen sc1
s_waitcnt lgkmcnt(0)
buffer_store_dwordx4 v[{X+12}:{X+15}], v{SA+1}, s[{sTOUT}:{sTOUT+3}], 0 offen sc1
buffer_store_dwordx4 v[{X+12}:{X+15}], v{DA+1}, s[{sTOUT}:{sTOUT+3}], 0 offen sc1''')
    def allq(r,t):
        a(f'''v_mov_b32 v{t}, v{r}
v_permlane16_swap_b32 v{t}, v{r}
v_add_f32 v{r}, v{r}, v{t}
v_mov_b32 v{t}, v{r}
v_permlane32_swap_b32 v{t}, v{r}
v_add_f32 v{r}, v{r}, v{t}''')
    def stats():
        for i in range(4): a(f'v_add_f32 v{X+i}, v{ACC+i}, v{ACC+4+i}')
        for i in range(4): a(f'v_add_f32 v{X+4+i}, v{ACC+8+i}, v{ACC+12+i}')
        for i in range(4): a(f'v_add_f32 v{X+i}, v{X+i}, v{X+4+i}')
        a(f'''v_add_f32 v{X}, v{X}, v{X+1}
v_add_f32 v{X+2}, v{X+2}, v{X+3}
v_add_f32 v{X}, v{X}, v{X+2}''')
        allq(X,X+1)
        a(f'v_mul_f32 v{X}, {fb(1/64):#x}, v{X}')
        for i in range(16): a(f'v_sub_f32 v{ACC+i}, v{ACC+i}, v{X}')
        for i in range(4): a(f'v_mul_f32 v{X+4+i}, v{ACC+i}, v{ACC+i}')
        for i in range(4,16): a(f'v_fmac_f32 v{X+4+i%4}, v{ACC+i}, v{ACC+i}')
        a(f'''v_add_f32 v{X+4}, v{X+4}, v{X+5}
v_add_f32 v{X+6}, v{X+6}, v{X+7}
v_add_f32 v{X+4}, v{X+4}, v{X+6}''')
        allq(X+4,X+5)
        a(f'''v_mul_f32 v{X+3}, v{X}, v{S1}          ; mu
v_mul_f32 v{X+5}, v{S1}, v{S1}
v_mul_f32 v{X+5}, {fb(1/64):#x}, v{X+5}
v_mov_b32 v{X+6}, {fb(1e-5):#x}
v_fmac_f32 v{X+6}, v{X+5}, v{X+4}      ; var+eps
v_rsq_f32 v{X+5}, v{X+6}
s_lshl_b32 s{sA}, s{sK}, 3
v_add_u32 v{X+7}, s{sA}, v{STA}
v_mul_f32 v{X+2}, v{X+6}, v{X+5}       ; sigma
v_mul_f32 v{X+5}, v{X+5}, v{S1}
ds_write_b64 v{X+7}, v[{X+2}:{X+3}] offset:{L_ST}''')
        for t in range(4):
            for r in range(4): a(f'v_mul_f32 v{ACC+4*t+r}, v{X+5}, v{ACC+4*t+r}')
            a(f'''v_cvt_pk_bf16_f32 v{AOP+2*t}, v{ACC+4*t}, v{ACC+4*t+1}
v_cvt_pk_bf16_f32 v{AOP+2*t+1}, v{ACC+4*t+2}, v{ACC+4*t+3}
ds_write_b64 v{SWA}, v[{AOP+2*t}:{AOP+2*t+1}] offset:{2304+32*t}''')
        a(f'''s_lshl_b32 s{sA}, 0x01010101, s{sK}
s_mov_b32 exec_lo, s{sA}
s_mov_b32 exec_hi, s{sA}
s_waitcnt lgkmcnt(0)''')
        for p in range(7):
            for s in range(2): a(f'ds_read_b128 v[{T(p)+4*s}:{T(p)+4*s+3}], v{TRD} offset:{2304+288*p+64*s}')
        a(f'''s_mov_b64 exec, -1
s_waitcnt lgkmcnt(0)''')
    a(f'''s_mov_b32 s{sEV}, 0
s_mov_b32 s{sK}, 0
s_cmp_lg_u32 s{sW}, 15
s_cbranch_scc1 L_e0''')
    signal()
    a('L_e0:')
    a(f'v_lshlrev_b32 v{DIS}, 16, v{DIS}')
    for i in range(8):
        a(f'''v_lshlrev_b32 v{ACC+2*i}, 16, v{X+i}
v_and_b32 v{ACC+2*i+1}, 0xffff0000, v{X+i}''')
    gstore()
    stats()
    a(f'''v_mul_f32 v{S1}, 0.5, v{DIS}
s_cmp_lg_u32 s{sW}, 15
s_cbranch_scc1 L_e0w''')
    poll()
    a(f'''L_e0w:
s_waitcnt vmcnt(0)
s_barrier''')
    st(4)
    a(f'''s_and_b32 s{sBK}, s2, 7
s_lshl_b32 s{sBK}, s{sBK}, 5
s_lshr_b32 s{sA}, s2, 3
s_add_u32 s{sBK}, s{sBK}, s{sA}
s_lshl_b32 s{sBK}, s{sBK}, 2
s_add_u32 s{sBK}, s{sBK}, {OFFS}
v_lshrrev_b32 v1, 2, v68               ; segment
v_lshlrev_b32 v2, 10, v1
buffer_load_dword v3, v2, s[{sWS}:{sWS+3}], s{sBK} offen sc1
s_mov_b32 s{sEV}, 1
s_cmp_lg_u32 s{sW}, 15
s_cbranch_scc1 L_p2a''')
    signal()
    a(f'''L_p2a:
v_mul_u32_u24 v1, {CHSTR}, v1
v_and_b32 v2, 3, v68
v_lshlrev_b32 v2, 2, v2                ; 4*sub
s_waitcnt vmcnt(0)
v_and_b32 v4, 0xffff, v3
v_lshrrev_b32 v3, 16, v3               ; count
v_add_u32 v4, v4, v2
v_lshl_add_u32 v4, v4, 2, v1
v_sub_u32 v3, v3, v2
buffer_load_dwordx4 v[8:11], v4, s[{sWS}:{sWS+3}], 0 offen sc1
v_cmp_lt_i32 vcc, 16, v3
v_mov_b32 v5, {OOB}
v_cndmask_b32 v5, v5, v4, vcc
buffer_load_dwordx4 v[12:15], v5, s[{sWS}:{sWS+3}], 0 offen offset:64 sc1
v_cmp_lt_i32 vcc, 32, v3
v_mov_b32 v6, 1
v_mov_b32 v7, {L_MISC}
s_cbranch_vccz L_p2b
ds_write_b32 v7, v6
L_p2b:
v_mov_b32 v7, {L_CNT2+1024}''')
    for j in range(8):
        if j%4==0: a(f's_waitcnt vmcnt({1-j//4})')
        a(f'''v_bfe_u32 v0, v{8+j}, 17, 4            ; wave
v_bfe_u32 v1, v{8+j}, 12, 4            ; region
v_lshl_add_u32 v0, v0, 4, v1
v_lshlrev_b32 v0, 2, v0
v_add_u32 v0, {L_CNT2}, v0
v_cmp_lt_i32 vcc, {j%4+16*(j//4)}, v3
v_cndmask_b32 v{16+j}, v7, v0, vcc
ds_add_rtn_u32 v{X+j}, v{16+j}, v6''')
    a(f'''s_mov_b32 s{sM}, 0x11111111
s_mov_b32 s{sM+1}, 0x11111111
s_mov_b32 s{sM2}, 0x33333333
s_mov_b32 s{sM2+1}, 0x33333333
s_waitcnt lgkmcnt(0)
s_barrier''')
    st(5)
    a(f'''v_mov_b32 v0, {L_MISC}
ds_read_b32 v1, v0''')
    scan(L_CNT2,58,True)
    a(f'''s_lshl_b32 s{sA}, s{sW}, 2
s_add_u32 s{sA}, s{sA}, 3
v_readlane_b32 s{sU}, v66, s{sA}
v_cmp_lt_u32 vcc, {CAP}, v66
v_readfirstlane_b32 s{sSLOW}, v1
s_or_b32 s{sA}, vcc_lo, vcc_hi
s_or_b32 s{sSLOW}, s{sSLOW}, s{sA}
{'s_mov_b32 s%d, 1'%sSLOW if force_slow else ''}
s_add_u32 s{sU}, s{sU}, 15
s_lshr_b32 s{sU}, s{sU}, 4
s_mov_b32 s{sNB}, {NBAR}
s_cmp_eq_u32 s{sSLOW}, 0
s_cbranch_scc1 L_p2c
s_mov_b32 s{sNB}, 0
s_mov_b32 s{sU}, 4
s_branch L_p2d
L_p2c:
s_waitcnt lgkmcnt(0)''')
    for j in range(8): a(f'ds_read_b32 v{24+j}, v{16+j} offset:1040')
    def conv(e,ad,col,t):
        a(f'''v_and_b32 v{t}, 0xffc0, v{e}
v_and_b32 v{ad}, 0xffff, v{e}
v_add_u32 v{t}, v{t}, v{ad}
v_and_b32 v{ad}, 0x2000, v{e}
v_lshl_add_u32 v{ad}, v{t}, 7, v{ad}
v_bfe_u32 v{col}, v{e}, 21, 3
v_bfe_u32 v{t}, v{e}, 16, 1
v_lshl_add_u32 v{col}, v{col}, 1, v{t}''')
    a(f's_movk_i32 s{sA}, {WSTR}')
    for j in range(8):
        conv(8+j,0,1,2)
        a(f'''v_bfe_u32 v2, v{8+j}, 17, 4
v_mul_u32_u24 v2, s{sA}, v2
{'s_waitcnt lgkmcnt(0)' if j==0 else ''}
v_add_u32 v4, v{24+j}, v{X+j}
v_add_u32 v5, v2, v4
v_lshl_add_u32 v4, v4, 2, v2
v_cmpx_lt_i32 vcc, {j%4+16*(j//4)}, v3
ds_write_b32 v4, v0 offset:{L_AL}
ds_write_b8 v5, v1 offset:{L_CL}
s_mov_b64 exec, -1''')
    a(f'''L_p2d:
s_cmp_lg_u32 s{sW}, 15
s_cbranch_scc1 L_p2e''')
    poll()
    a(f'''L_p2e:
s_waitcnt lgkmcnt(0)
s_barrier''')
    st(6)
    a(f'''L_hop:
s_add_u32 s{sK}, s{sK}, 1
s_add_u32 s{sSI}, s{sSI}, 8
s_add_u32 s{sTOUT}, s{sTOUT}, {TSTR}
s_addc_u32 s{sTOUT+1}, s{sTOUT+1}, 0
v_mov_b32 v16, {L_MISC+16}
ds_read_b64 v[18:19], v16''')
    for i in range(16): a(f'v_mov_b32 v{ACC+i}, 0')
    a(f'''s_mov_b32 s{sSEG}, 0
s_mov_b32 s{sOFF}, 0
s_mov_b32 s{sCNT}, 0
v_and_b32 v{LO}, 0x7f, v{LO}
v_mov_b32 v17, 0x2000
s_waitcnt lgkmcnt(0)
v_cmp_lt_u32 s[{sM}:{sM+1}], v18, v19
v_cndmask_b32 v17, 0, v17, s[{sM}:{sM+1}]
v_or_b32 v{LO}, v{LO}, v17
v_xor_b32 v{LO+1}, 32, v{LO}''')
    st(0)
    a(f'''s_cmp_eq_u32 s{sSLOW}, 0
s_cbranch_scc1 L_gather
L_slow:
s_cmp_lt_u32 s{sOFF}, s{sCNT}
s_cbranch_scc1 L_slow2
s_cmp_ge_u32 s{sSEG}, 256
s_cbranch_scc1 L_gdone
s_lshl_b32 s{sA}, s{sSEG}, 10
v_mov_b32 v16, s{sA}
buffer_load_dword v17, v16, s[{sWS}:{sWS+3}], s{sBK} offen sc1
s_mul_i32 s{sSTART}, s{sSEG}, {CHSTR}
s_add_u32 s{sSEG}, s{sSEG}, 1
s_mov_b32 s{sOFF}, 0
s_waitcnt vmcnt(0)
v_readfirstlane_b32 s{sA}, v17
s_lshr_b32 s{sCNT}, s{sA}, 16
s_and_b32 s{sA}, s{sA}, 0xffff
s_lshl_b32 s{sA}, s{sA}, 2
s_add_u32 s{sSTART}, s{sSTART}, s{sA}
s_branch L_slow
L_slow2:
v_add_u32 v16, s{sOFF}, v{LANE}
v_lshl_add_u32 v17, v16, 2, s{sSTART}
buffer_load_dword v18, v17, s[{sWS}:{sWS+3}], 0 offen sc1
s_add_u32 s{sOFF}, s{sOFF}, 64
v_cmp_gt_u32 s[{sM}:{sM+1}], s{sCNT}, v16
s_waitcnt vmcnt(0)
v_bfe_u32 v19, v18, 17, 4
v_cmp_eq_u32 vcc, s{sW}, v19
s_and_b64 s[{sM}:{sM+1}], s[{sM}:{sM+1}], vcc''')
    conv(18,20,21,22)
    a(f'''v_mov_b32 v22, {OOB}
v_cndmask_b32 v20, v22, v20, s[{sM}:{sM+1}]
v_lshl_add_u32 v22, v{LANE}, 2, s{sRB}
v_add_u32 v23, s{sRB}, v{LANE}
ds_write_b32 v22, v20 offset:{L_AL}
ds_write_b8 v23, v21 offset:{L_CL}
s_waitcnt lgkmcnt(0)''')
    def issue(b,e):
        a(f'''v_xor_b32 v{DA}, v{e}, v{LO}
v_xor_b32 v{DA+1}, v{e+1}, v{LO+1}
s_add_u32 m0, s{sRB}, {2048*b}
buffer_load_dwordx4 v{DA}, s[{sTIN}:{sTIN+3}], 0 offen sc1 lds
s_add_u32 m0, s{sRB}, {2048*b+1024}
buffer_load_dwordx4 v{DA+1}, s[{sTIN}:{sTIN+3}], 0 offen sc1 lds''')
    a(f'''L_gather:
v_lshrrev_b32 v{AP}, 3, v{LANE}
v_lshl_add_u32 v{AP}, v{AP}, 3, s{sRB}
v_lshrrev_b32 v{CP}, 4, v{LANE}
v_lshl_add_u32 v{CP}, v{CP}, 2, s{sRB}''')
    for b in range(R): a(f'ds_read_b64 v[{X+2*b}:{X+2*b+1}], v{AP} offset:{L_AL+64*b}')
    a(f'''ds_read_b64 v[{EN}:{EN+1}], v{AP} offset:{L_AL+64*R}
s_mov_b32 s{sREM}, s{sU}
s_mov_b32 s{sBA}, {R*(NBAR+1)}
s_mov_b32 s{sBD}, 0
s_waitcnt lgkmcnt(0)''')
    for b in range(R):
        a(f'''s_cmp_le_u32 s{sU}, {b}
s_cbranch_scc1 L_gl''')
        issue(b,X+2*b)
    a('L_gl:')
    for b in range(R):
        a(f'''s_cmp_ge_u32 s{sREM}, {R}
s_cbranch_scc1 L_gw{b}
s_cmp_eq_u32 s{sREM}, 0
s_cbranch_scc1 L_gend''')
        for m in range(R-1,1,-1):
            a(f'''s_waitcnt vmcnt({2*(m-1)})
s_cmp_eq_u32 s{sREM}, {m}
s_cbranch_scc1 L_gw{b}''')
        a(f'''s_waitcnt vmcnt(0)
L_gw{b}:
s_waitcnt vmcnt({2*(R-1)})''')
        a(f'ds_read_b32 v{COLW}, v{CP} offset:{L_CL+16*b}')
        for t in range(4): a(f'ds_read_b64_tr_b16 v[{AOP+2*t}:{AOP+2*t+1}], v{TRA+t} offset:{2048*b}')
        a(f'''s_waitcnt lgkmcnt(4)
v_xad_u32 v{TMP}, v{COLW}, v{NOTN}, s{sK1}
v_and_b32 v{B1}, s{sK2}, v{TMP}
v_lshlrev_b32 v{TMP}, 8, v{TMP}
v_and_b32 v{B0}, s{sK2}, v{TMP}
s_cmp_le_u32 s{sREM}, {R}
s_waitcnt lgkmcnt(0)
s_cbranch_scc1 L_gn{b}''')
        issue(b,EN)
        a(f'''ds_read_b64 v[{EN}:{EN+1}], v{AP} offset:{L_AL+64*(R+1+b)}
s_add_u32 s{sBA}, s{sBA}, {NBAR+1}
L_gn{b}:''')
        for t in range(4): a(f'v_mfma_f32_16x16x16_bf16 v[{ACC+4*t}:{ACC+4*t+3}], v[{AOP+2*t}:{AOP+2*t+1}], v[{B0}:{B1}], v[{ACC+4*t}:{ACC+4*t+3}]')
        a(f's_sub_u32 s{sREM}, s{sREM}, 1')
        if NBAR:
            a(f'''L_gb{b}:
s_cmp_lt_u32 s{sBA}, s{sU}
s_cbranch_scc1 L_gc{b}
s_cmp_ge_u32 s{sBD}, s{sNB}
s_cbranch_scc1 L_gc{b}
s_sub_u32 s{sBA}, s{sBA}, s{sU}
s_add_u32 s{sBD}, s{sBD}, 1
s_barrier
s_branch L_gb{b}
L_gc{b}:''')
    a(f'''v_add_u32 v{AP}, {64*R}, v{AP}
v_add_u32 v{CP}, {16*R}, v{CP}
s_branch L_gl
L_gend:
s_waitcnt lgkmcnt(0)
s_cmp_ge_u32 s{sBD}, s{sNB}
s_cbranch_scc1 L_gend2
s_add_u32 s{sBD}, s{sBD}, 1
s_barrier
s_branch L_gend
L_gend2:
s_cmp_lg_u32 s{sSLOW}, 0
s_cbranch_scc1 L_slow
L_gdone:''')
    st(1)
    a(f'''s_cmp_eq_u32 s{sK}, 7
s_cbranch_scc1 L_final''')
    gstore()
    st(2)
    a(f'''s_add_u32 s{sEV}, s{sEV}, 1
s_add_u32 s{sTIN}, s{sTIN}, {TSTR}
s_addc_u32 s{sTIN+1}, s{sTIN+1}, 0
s_cmp_lg_u32 s{sW}, 15
s_cbranch_scc1 L_hA''')
    stats()
    a('''s_waitcnt vmcnt(0)
s_barrier''')
    signal()
    st(4)
    poll()
    a(f'''s_branch L_hB
L_hA:
s_waitcnt vmcnt(0)''')
    st(3)
    a('s_barrier')
    stats()
    st(4)
    a(f'''s_cmp_ge_u32 s{sW}, 13
s_cbranch_scc1 L_jprobe
s_cmp_ge_u32 s{sW}, 8
s_cbranch_scc1 L_hB
s_cmp_eq_u32 s{sK}, 3
s_cbranch_scc1 L_jsa
s_cmp_gt_u32 s{sK}, 2
s_cbranch_scc1 L_hB
v_bfe_u32 v0, v{LANE}, 2, 2
v_and_b32 v1, 3, v{LANE}
v_lshl_add_u32 v0, v0, 3, v1           ; 8*(i>>2)+(i&3)
v_lshrrev_b32 v1, 4, v{LANE}           ; q
s_and_b32 s{sA}, s{sW}, 1
s_lshl_b32 s{sA}, s{sA}, 12            ; s*32 rows*128B
s_lshr_b32 s{sB}, s{sW}, 2
s_lshl_b32 s{sB}, s{sB}, 5
s_and_b32 s{sC}, s{sW}, 2
s_lshl_b32 s{sC}, s{sC}, 1
s_add_u32 s{sB}, s{sB}, s{sC}
v_lshlrev_b32 v2, 7, v0
v_lshl_add_u32 v2, v1, 4, v2           ; row*128 + q*16
s_cmp_eq_u32 s{sK}, 2
s_cbranch_scc1 L_jw''')
    srd(sT1,12,8192); srd(sT2,14,8192)
    a(f'''s_lshl_b32 s{sB}, s{sB}, 7
buffer_load_dwordx4 v[24:27], v2, s[{sT2}:{sT2+3}], s{sB} offen
buffer_load_dwordx4 v[28:31], v2, s[{sT2}:{sT2+3}], s{sB} offen offset:64
s_mov_b32 s{sC}, {fb(0.125*LOG2E):#x}
s_mov_b32 s{sD}, {L_W}
s_branch L_jm
L_jw:''')
    srd(sT1,16,8192); srd(sT2,18,8192)
    a(f'''s_lshl_b32 s{sB}, s{sB}, 1
v_lshlrev_b32 v3, 1, v0
v_lshl_add_u32 v3, v1, 10, v3          ; (8q)*128 + col*2
v_add_u32 v4, 4096, v3''')
    for s in range(2):
        for j in range(8):
            a(f'buffer_load_ushort v{X+8*s+j}, v{3+s}, s[{sT2}:{sT2+3}], s{sB} offen offset:{128*j}')
    a('s_waitcnt vmcnt(0)')
    for i in range(8): a(f'v_lshl_or_b32 v{24+i}, v{X+2*i+1}, 16, v{X+2*i}')
    a(f'''s_mov_b32 s{sC}, 1.0
s_mov_b32 s{sD}, {L_W+8192}
L_jm:
buffer_load_dwordx4 v[8:11], v2, s[{sT1}:{sT1+3}], s{sA} offen
buffer_load_dwordx4 v[12:15], v2, s[{sT1}:{sT1+3}], s{sA} offen offset:64
buffer_load_dwordx4 v[16:19], v2, s[{sT1}:{sT1+3}], s{sA} offen offset:512
buffer_load_dwordx4 v[20:23], v2, s[{sT1}:{sT1+3}], s{sA} offen offset:576
s_lshl_b32 s{sA}, s{sW}, 10
s_add_u32 s{sD}, s{sD}, s{sA}
v_lshl_add_u32 v5, v{LANE}, 4, s{sD}
s_waitcnt vmcnt(0)
v_mfma_f32_16x16x32_bf16 v[{X}:{X+3}], v[8:11], v[24:27], 0
v_mfma_f32_16x16x32_bf16 v[{X+4}:{X+7}], v[16:19], v[24:27], 0
v_mfma_f32_16x16x32_bf16 v[{X}:{X+3}], v[12:15], v[28:31], v[{X}:{X+3}]
v_mfma_f32_16x16x32_bf16 v[{X+4}:{X+7}], v[20:23], v[28:31], v[{X+4}:{X+7}]''')
    for i in range(8): a(f'v_mul_f32 v{X+i}, s{sC}, v{X+i}')
    for i in range(4): a(f'v_cvt_pk_bf16_f32 v{8+i}, v{X+2*i}, v{X+2*i+1}')
    a(f'''ds_write_b128 v5, v[8:11]
s_branch L_hB
L_jsa:
s_cmp_ge_u32 s{sW}, 2
s_cbranch_scc1 L_hB''')
    srd(sT1,20,128)
    a(f'''v_lshrrev_b32 v1, 4, v{LANE}
v_lshlrev_b32 v2, 4, v1
s_lshl_b32 s{sA}, s{sW}, 6
buffer_load_dwordx4 v[8:11], v2, s[{sT1}:{sT1+3}], s{sA} offen
v_lshlrev_b32 v3, 1, v{LANE}
buffer_load_ushort v4, v3, s[{sT1}:{sT1+3}], 0 offen
s_mov_b32 s{sM}, 0x11111111
s_mov_b32 s{sM+1}, 0x11111111
s_mov_b32 s{sM2}, 0x22222222
s_mov_b32 s{sM2+1}, 0x22222222
v_mov_b32 v6, 0x3f803f80
v_cndmask_b32 v6, 0, v6, s[{sM}:{sM+1}]
s_lshl_b32 s{sA}, s{sW}, 10
s_add_u32 s{sA}, s{sA}, {L_SA}
v_lshl_add_u32 v5, v{LANE}, 4, s{sA}
s_waitcnt vmcnt(0)''')
    for i in range(4): a(f'v_cndmask_b32 v{8+i}, v6, v{8+i}, s[{sM2}:{sM2+1}]')
    a(f'''ds_write_b128 v5, v[8:11]
v_lshlrev_b32 v4, 16, v4''')
    for m in ('quad_perm:[1,0,3,2]','quad_perm:[2,3,0,1]','row_half_mirror','row_mirror'):
        a(f'v_add_f32_dpp v4, v4, v4 {m} row_mask:0xf bank_mask:0xf')
    allq(4,6)
    a(f'''v_mov_b32 v5, {L_MISC+32}
ds_write_b32 v5, v4
s_branch L_hB
L_jprobe:''')
    probe_code(2)
    a(f'''L_hB:
s_waitcnt lgkmcnt(0)''')
    st(5)
    a('''s_barrier
s_branch L_hop''')
    a('L_final:')
    stats()
    st(2)
    if stamp:
        a(f'''s_lshl_b32 s{sA}, s2, 4
s_add_u32 s{sA}, s{sA}, s{sW}
s_lshl_b32 s{sA}, s{sA}, 8
s_add_u32 s88, s{sA}, {STAMP}
v_lshlrev_b32 v16, 2, v{LANE}
buffer_store_dword v{TS}, v16, s[{sWS}:{sWS+3}], s88 offen
s_waitcnt vmcnt(0)''')
    def fst(i):
        if stamp: a(f'''s_memrealtime s[80:81]
s_waitcnt lgkmcnt(0)
s_mov_b32 s{82+i}, s80''')
    U=32; SAa=48; SBb=52; Y=56; P=62
    a(f'''v_lshlrev_b32 v{Y}, 4, v{LANE}
v_add_u32 v{Y}, {L_W}, v{Y}''')
    for f in range(8): a(f'ds_read_b128 v[{4*f}:{4*f+3}], v{Y} offset:{1024*f}')
    LN=TG+1; SG=TG
    a(f'''v_mov_b32 v{LN}, v{LANE}
v_lshrrev_b32 v{Y+1}, 5, v{LN}           ; q>>1
v_bfe_u32 v{Y+2}, v{LN}, 3, 1            ; b
v_xor_b32 v{Y+2}, v{Y+2}, v{Y+1}         ; invalid
v_and_b32 v{Y+3}, 7, v{LN}
v_lshl_add_u32 v{Y+3}, v{Y+1}, 3, v{Y+3}
v_lshlrev_b32 v{Y+3}, 3, v{Y+3}
v_lshl_add_u32 v{Y+3}, v{Y+2}, 7, v{Y+3}
v_add_u32 v{SG}, s{sRB}, v{Y+3}
s_waitcnt lgkmcnt(0)''')
    def scores(p,S):
        for s in range(2):
            for t in range(4):
                c='0' if s==0 else f'v[{U+4*t}:{U+4*t+3}]'
                a(f'v_mfma_f32_16x16x32_bf16 v[{U+4*t}:{U+4*t+3}], v[{8*t+4*s}:{8*t+4*s+3}], v[{T(p)+4*s}:{T(p)+4*s+3}], {c}')
        for i in range(8): a(f'v_cvt_pk_bf16_f32 v{U+i}, v{U+2*i}, v{U+2*i+1}')
        a(f'''v_mfma_f32_16x16x32_bf16 v[{S}:{S+3}], v[{T(p)}:{T(p)+3}], v[{U}:{U+3}], 0
v_mfma_f32_16x16x32_bf16 v[{S}:{S+3}], v[{T(p)+4}:{T(p)+7}], v[{U+4}:{U+7}], v[{S}:{S+3}]''')
    for g in range(4):
        if g==3:
            a(f'''s_cmp_ge_u32 s{sW}, 2
s_cbranch_scc1 L_f2''')
        a(f'ds_read_b32 v{Y+4}, v{SG} offset:{L_ST+256*g}')
        scores(2*g,SAa)
        if g<3:
            scores(2*g+1,SBb)
            for r in range(4):
                a(f'''v_mov_b32_dpp v{SAa+r}, v{SBb+r} row_ror:8 row_mask:0x3 bank_mask:0xc
v_mov_b32_dpp v{SAa+r}, v{SBb+r} row_ror:8 row_mask:0xc bank_mask:0x3''')
        S=SAa
        a(f'''v_max3_f32 v{Y}, v{S}, v{S+1}, v{S+2}
v_max_f32 v{Y}, v{Y}, v{S+3}
v_mov_b32 v{Y+1}, v{Y}
v_permlane16_swap_b32 v{Y+1}, v{Y}
v_max_f32 v{Y}, v{Y}, v{Y+1}''')
        for r in range(4): a(f'v_sub_f32 v{S+r}, v{S+r}, v{Y}')
        for r in range(4): a(f'v_exp_f32 v{S+r}, v{S+r}')
        a(f'''v_add_f32 v{Y}, v{S}, v{S+1}
v_add_f32 v{Y+1}, v{S+2}, v{S+3}
v_add_f32 v{Y}, v{Y}, v{Y+1}
v_mov_b32 v{Y+1}, v{Y}
v_permlane16_swap_b32 v{Y+1}, v{Y}
v_add_f32 v{Y}, v{Y}, v{Y+1}
s_waitcnt lgkmcnt(0)
v_mul_f32 v{Y}, v{Y}, v{Y+4}
v_rcp_f32 v{Y}, v{Y}''')
        for r in range(4): a(f'v_mul_f32 v{S+r}, v{S+r}, v{Y}')
        a(f'''v_cvt_pk_bf16_f32 v{P+2*g}, v{S}, v{S+1}
v_cvt_pk_bf16_f32 v{P+2*g+1}, v{S+2}, v{S+3}''')
    a('L_f2:')
    fst(0)
    OA=32; ZT=48; VM=56; OW=57; OT=58; GW=59; SAD=60; LN2=61
    LO_IMG=0; LG=4608; LS=LG+7*256; LWB=LS+7*128; LC=LWB+256
    assert LC+64<=L_ST
    a(f'''v_mov_b32 v{LN2}, v{LN}
v_lshlrev_b32 v{SAD}, 4, v{LN2}
v_add_u32 v{OA}, {L_W+8192}, v{SAD}
v_add_u32 v{SAD}, {L_SA}, v{SAD}''')
    for f in range(8): a(f'ds_read_b128 v[{4*f}:{4*f+3}], v{OA} offset:{1024*f}')
    a(f'''v_lshrrev_b32 v{OA+1}, 5, v{LN2}
v_bfe_u32 v{OA+2}, v{LN2}, 3, 1
v_xor_b32 v{OA+2}, v{OA+2}, v{OA+1}
v_add_u32 v{VM}, -1, v{OA+2}             ; valid ? ~0 : 0
v_and_b32 v{OA+1}, 15, v{LN2}            ; n
v_lshrrev_b32 v{OA+2}, 4, v{LN2}         ; q
v_mul_u32_u24 v{OA+3}, 144, v{OA+1}
v_lshl_add_u32 v{OA+3}, v{OA+2}, 4, v{OA+3}
v_add_u32 v{OW}, s{sRB}, v{OA+3}
v_lshrrev_b32 v{OA+3}, 2, v{LN2}         ; row 4q+r
v_mul_u32_u24 v{OA+3}, 144, v{OA+3}
v_and_b32 v{OA+4}, 3, v{LN2}
v_lshl_add_u32 v{OA+3}, v{OA+4}, 3, v{OA+3}
v_add_u32 v{OT}, s{sRB}, v{OA+3}
v_lshl_add_u32 v{GW}, v{OA+1}, 3, s{sRB}
v_add_u32 v{GW}, {LG}, v{GW}
v_lshlrev_b32 v{OA+2}, 2, v{OA+2}
v_sub_u32 v{OA+1}, v{OA+1}, v{OA+2}       ; m-4q
v_mov_b32 v{OA+3}, 0x3f80
v_mov_b32 v{OA+4}, 0x3f800000''')
    for h in range(2):
        a(f'''v_cmp_eq_u32 s[{sM}:{sM+1}], {2*h}, v{OA+1}
v_cmp_eq_u32 s[{sM2}:{sM2+1}], {2*h+1}, v{OA+1}
v_cndmask_b32 v{ZT+2+h}, 0, v{OA+3}, s[{sM}:{sM+1}]
v_cndmask_b32 v{ZT+2+h}, v{ZT+2+h}, v{OA+4}, s[{sM2}:{sM2+1}]
v_mov_b32 v{ZT+6+h}, v{ZT+2+h}''')
    a(f'''s_mov_b32 s{sM}, 0x00f0000f
s_mov_b32 s{sM+1}, 0xf0000f00
s_waitcnt lgkmcnt(0)''')
    def o2reg(p,t):
        g=p//2
        return (TG+16*g+4*t+2*(p&1)) if p<6 else (TG+48+2*t)
    for p in range(7):
        if p==6:
            a(f'''s_cmp_ge_u32 s{sW}, 2
s_cbranch_scc1 L_f3''')
        tp=T(p); pm=P+2*(p//2)
        for s in range(2):
            for t in range(4):
                c='0' if s==0 else f'v[{OA+4*t}:{OA+4*t+3}]'
                a(f'v_mfma_f32_16x16x32_bf16 v[{OA+4*t}:{OA+4*t+3}], v[{tp+4*s}:{tp+4*s+3}], v[{8*t+4*s}:{8*t+4*s+3}], {c}')
        for t in range(4):
            z=ZT+4*(t&1); b=tp-2+2*t
            if t==0:
                for h in range(2):
                    if p&1: a(f'v_and_b32_dpp v{b+h}, v{pm+h}, v{VM} row_ror:8 row_mask:0xf bank_mask:0xf')
                    else: a(f'v_and_b32 v{b+h}, v{pm+h}, v{VM}')
            else: a(f'v_mov_b64 v[{b}:{b+1}], v[{b-2}:{b-1}]')
            a(f'''v_cvt_pk_bf16_f32 v{z}, v{OA+4*t}, v{OA+4*t+1}
v_cvt_pk_bf16_f32 v{z+1}, v{OA+4*t+2}, v{OA+4*t+3}
v_mfma_f32_16x16x32_bf16 v[{OA+4*t}:{OA+4*t+3}], v[{z}:{z+3}], v[{b}:{b+3}], 0''')
        ob=tp-2
        for i in range(8): a(f'v_cvt_pk_bf16_f32 v{ob+i}, v{OA+2*i}, v{OA+2*i+1}')
        img=LO_IMG+2304*(p&1)
        a(f'''ds_read_b128 v[{OA}:{OA+3}], v{SAD}
ds_read_b128 v[{OA+4}:{OA+7}], v{SAD} offset:1024
ds_write_b128 v{OW}, v[{ob}:{ob+3}] offset:{img}
ds_write_b128 v{OW}, v[{ob+4}:{ob+7}] offset:{img+64}
v_mfma_f32_16x16x32_bf16 v[{OA+8}:{OA+11}], v[{ob}:{ob+3}], v[{ob}:{ob+3}], 0
v_mfma_f32_16x16x32_bf16 v[{OA+8}:{OA+11}], v[{ob+4}:{ob+7}], v[{ob+4}:{ob+7}], v[{OA+8}:{OA+11}]
s_waitcnt lgkmcnt(2)
v_mfma_f32_16x16x32_bf16 v[{OA+12}:{OA+15}], v[{OA}:{OA+3}], v[{ob}:{ob+3}], 0
v_mfma_f32_16x16x32_bf16 v[{OA+12}:{OA+15}], v[{OA+4}:{OA+7}], v[{ob+4}:{ob+7}], v[{OA+12}:{OA+15}]
s_mov_b64 exec, s[{sM}:{sM+1}]
ds_write2_b64 v{GW}, v[{OA+8}:{OA+9}], v[{OA+10}:{OA+11}] offset0:{(256*p)//8} offset1:{(256*p+128)//8}''')
        a(f'''ds_write_b64 v{GW}, v[{OA+12}:{OA+13}] offset:{7*256+128*p}
s_mov_b64 exec, -1''')
        if p&1 or p==6:
            a('s_waitcnt lgkmcnt(2)')
            for pp in ((p-1,p) if p<6 else (6,)):
                for t in range(4):
                    r=o2reg(pp,t)
                    a(f'ds_read_b64_tr_b16 v[{r}:{r+1}], v{OT} offset:{LO_IMG+2304*(pp&1)+32*t}')
        a('s_waitcnt lgkmcnt(0)')
    a('L_f3:')
    fst(1)
    F=0; K=16
    a(f'''v_lshl_add_u32 v{K}, v{LN2}, 3, s{sRB}          ; lane*8
v_lshrrev_b32 v{K+1}, 4, v{LN2}                 ; q
v_bfe_u32 v{K+2}, v{LN2}, 1, 1
v_add_u32 v{K+2}, v{K+2}, v{K+1}
v_lshl_add_u32 v{K+2}, v{K+2}, 7, v{K}
v_and_b32 v{K+3}, 1, v{LN2}
v_lshl_add_u32 v{K+2}, v{K+3}, 2, v{K+2}
v_mov_b32 v{K+3}, {L_MISC+32}
ds_read_b32 v{K+3}, v{K+3}''')
    Rr=lambda h:24+10*h
    for h in range(2):
        r=Rr(h)
        a(f'''ds_read_b32 v{r}, v{K+2} offset:{LG+1024*h}
ds_read_b64 v[{r+2}:{r+3}], v{K} offset:{LS+512*h}
ds_read_b64 v[{r+4}:{r+5}], v{K} offset:{L_ST+512*h}''')
    a(f'''v_lshl_add_u32 v{K+4}, v{LN2}, 1, s{sRB}        ; w write
v_lshrrev_b32 v{K+5}, 3, v{LN2}
v_lshl_add_u32 v{K+5}, v{K+5}, 2, s{sRB}        ; c write
v_lshl_add_u32 v{K+6}, v{K+1}, 3, s{sRB}        ; w read
v_and_b32 v{K+7}, 15, v{LN2}
v_lshl_add_u32 v{K+7}, v{K+7}, 2, s{sRB}        ; c read
s_waitcnt lgkmcnt(0)''')
    def both(txt):
        for ln in txt.strip().split('\n'):
            for h in range(2):
                r=Rr(h)
                a(ln.format(q=r,u=r+1,s=r+2,d=r+3,g=r+4,m=r+5,a=r+6,b=r+7,c=r+8,h=h,wo=LWB+128*h,co=LC+32*h))
    red=lambda op,x: '\n'.join(f'{op}_dpp v{{{x}}}, v{{{x}}}, v{{{x}}} {m} row_mask:0xf bank_mask:0xf' for m in('quad_perm:[1,0,3,2]','quad_perm:[2,3,0,1]','row_half_mirror'))
    both(f'''v_mul_f32 v{{s}}, {fb(1/64):#x}, v{{s}}
v_mul_f32 v{{q}}, {fb(1/64):#x}, v{{q}}
v_fma_f32 v{{q}}, -v{{s}}, v{{s}}, v{{q}}
v_max_f32 v{{q}}, 0, v{{q}}
v_mul_f32 v{{a}}, v{{g}}, v{{g}}
v_mov_b32 v{{b}}, {fb(1e-5):#x}
v_fmac_f32 v{{b}}, v{{a}}, v{{q}}
v_rsq_f32 v{{b}}, v{{b}}
v_fma_f32 v{{d}}, -v{{s}}, v{K+3}, v{{d}}
v_mul_f32 v{{a}}, {fb(LOG2E):#x}, v{{g}}
v_mul_f32 v{{d}}, v{{d}}, v{{a}}
v_mul_f32 v{{d}}, v{{d}}, v{{b}}
v_mov_b32 v{{a}}, v{{d}}
{red('v_max_f32','a')}
v_sub_f32 v{{d}}, v{{d}}, v{{a}}
v_exp_f32 v{{d}}, v{{d}}
v_mov_b32 v{{a}}, v{{d}}
v_mul_f32 v{{m}}, v{{m}}, v{{d}}
{red('v_add_f32','a')}
{red('v_add_f32','m')}
v_rcp_f32 v{{a}}, v{{a}}
v_mul_f32 v{{d}}, v{{d}}, v{{g}}
v_mul_f32 v{{d}}, v{{d}}, v{{a}}
v_mul_f32 v{{m}}, v{{m}}, v{{a}}
v_cvt_pk_bf16_f32 v{{d}}, v{{d}}, v{{d}}
ds_write_b16 v{K+4}, v{{d}} offset:{{wo}}
ds_write_b32 v{K+5}, v{{m}} offset:{{co}}''')
    WT=24; CI=40
    a('s_waitcnt lgkmcnt(0)')
    a(f'ds_read_b32 v{CI}, v{K+7} offset:{LC}')
    for p in range(7): a(f'ds_read_b64 v[{WT+2*p}:{WT+2*p+1}], v{K+6} offset:{LWB+32*p}')
    OAD=44
    srd(sT1,22,N*128)
    a(f'''v_and_b32 v{K}, 15, v{LN2}
v_mul_u32_u24 v{K}, 144, v{K}
v_add_u32 v{K}, v{K}, v{K+6}
v_lshrrev_b32 v{K+2}, 3, v{LN2}                 ; g
v_and_b32 v{K+3}, 7, v{LN2}
v_mul_u32_u24 v{K+1}, 144, v{K+2}
v_lshl_add_u32 v{K+1}, v{K+3}, 4, v{K+1}
v_add_u32 v{K+1}, s{sRB}, v{K+1}
v_lshrrev_b32 v{K+4}, 1, v{K+2}
v_lshlrev_b32 v{K+4}, 5, v{K+4}
v_and_b32 v{K+5}, 1, v{K+2}
s_lshl_b32 s{sB}, s{sW}, 1
v_add3_u32 v{K+4}, v{K+4}, v{K+5}, s{sB}         ; r
v_cmp_gt_u32 vcc, {NPW-128}, v{K+4}
s_mul_i32 s{sD}, s2, {NPW}
v_add_u32 v{K+4}, s{sD}, v{K+4}
v_lshlrev_b32 v{K+4}, 7, v{K+4}
v_lshl_add_u32 v{OAD}, v{K+3}, 4, v{K+4}
v_add_u32 v{OAD+1}, {128*128}, v{OAD}
v_mov_b32 v{K+4}, {OOB}
v_cndmask_b32 v{OAD+1}, v{K+4}, v{OAD+1}, vcc
s_waitcnt lgkmcnt(0)
v_mov_b32 v{CI+1}, v{CI}
v_mov_b32 v{CI+2}, v{CI}
v_mov_b32 v{CI+3}, v{CI}''')
    for g in range(4):
        if g==3:
            a(f'''s_cmp_ge_u32 s{sW}, 2
s_cbranch_scc1 L_f4''')
        for p in ((2*g,2*g+1) if g<3 else (6,)):
            m=sM if p%2==0 else sM2
            a(f'''s_mov_b32 s{m}, {0x00010001<<(2*p):#x}
s_mov_b32 s{m+1}, {0x00020002<<(2*p):#x}
v_cndmask_b32 v{WT+2*p}, 0, v{WT+2*p}, s[{m}:{m+1}]
v_cndmask_b32 v{WT+2*p+1}, 0, v{WT+2*p+1}, s[{m}:{m+1}]''')
        for t in range(4):
            c=f'v[{CI}:{CI+3}]' if g==0 else f'v[{F+4*t}:{F+4*t+3}]'
            r=o2reg(2*g,t)
            if g<3: a(f'v_mfma_f32_16x16x32_bf16 v[{F+4*t}:{F+4*t+3}], v[{r}:{r+3}], v[{WT+4*g}:{WT+4*g+3}], {c}')
            else: a(f'v_mfma_f32_16x16x16_bf16 v[{F+4*t}:{F+4*t+3}], v[{r}:{r+1}], v[{WT+12}:{WT+13}], {c}')
    a('L_f4:')
    for t in range(4):
        a(f'''v_cvt_pk_bf16_f32 v{48+2*t}, v{F+4*t}, v{F+4*t+1}
v_cvt_pk_bf16_f32 v{49+2*t}, v{F+4*t+2}, v{F+4*t+3}
ds_write_b64 v{K}, v[{48+2*t}:{49+2*t}] offset:{32*t}''')
    a(f'''s_waitcnt lgkmcnt(0)
ds_read_b128 v[24:27], v{K+1}
ds_read_b128 v[28:31], v{K+1} offset:1152
s_waitcnt lgkmcnt(1)
buffer_store_dwordx4 v[24:27], v{OAD}, s[{sT1}:{sT1+3}], 0 offen
s_waitcnt lgkmcnt(0)
buffer_store_dwordx4 v[28:31], v{OAD+1}, s[{sT1}:{sT1+3}], 0 offen''')
    if stamp:
        fst(2)
        a('s_waitcnt vmcnt(0)')
        fst(3)
        a(f'''v_mov_b32 v0, s82
v_mov_b32 v1, s83
v_mov_b32 v2, s84
v_mov_b32 v3, s85
v_mov_b32 v4, {59*4}
s_mov_b64 exec, 1
buffer_store_dwordx4 v[0:3], v4, s[{sWS}:{sWS+3}], s88 offen''')
    a('L_end:\ns_endpgm')
    body=a.pad(verbose=True)
    ref=open('standalone__hybrid_graph_tf_nagphormer__graph.s.ref').read().split('\n')
    head=[l for l in ref if l.startswith(';') and '@launch' not in l]
    out='\n'.join(head)+f'''
; @launch grid=(256,1,1) block=(1024,1,1) lds={LDS_BYTES}
.amdgcn_target "amdgcn-amd-amdhsa--gfx950"
.text
.globl {KNAME}
.p2align 8
.type {KNAME},@function
{KNAME}:
'''+body+f'''.section .rodata,"a"
.p2align 6
.amdhsa_kernel {KNAME}
  .amdhsa_next_free_vgpr 128
  .amdhsa_next_free_sgpr 96
  .amdhsa_accum_offset 128
  .amdhsa_group_segment_fixed_size 0
  .amdhsa_kernarg_size 96
  .amdhsa_user_sgpr_count 2
  .amdhsa_user_sgpr_kernarg_segment_ptr 1
  .amdhsa_system_sgpr_workgroup_id_x 1
  .amdhsa_float_denorm_mode_32 3
.end_amdhsa_kernel
'''
    return out
if __name__=='__main__':
    kw=eval('dict('+(sys.argv[2] if len(sys.argv)>2 else '')+')')
    open(sys.argv[1] if len(sys.argv)>1 else 'standalone__hybrid_graph_tf_nagphormer__graph.s','w').write(gen(**kw))
```

```python
import sys, struct
sys.path.insert(0,'gen')
from asmlib import Asm
N=50000; E=800000; NPW=196; CH=3125
KNAME='standalone__hybrid_graph_tf_nagphormer__graph_kernel'
TSTR=16<<20
MISC=112<<20
CHSTR=12544
OFFS=4<<20
SYNC=5<<20
STAMP=6<<20
WGT=(5<<20)+(512<<10)
PROBE=14<<20
WSTR=8960
L_RING=0; L_AL=6144; CAP=352; L_CL=L_AL+CAP*4; L_ST=7936
L_W=16*WSTR
L_CNT1=L_W+13312; L_BASE1=L_CNT1+1040
L_SH=L_W+16384
L_CNT2=L_SH; L_BASE2=L_SH+1040; L_SA=L_SH; L_MISC=L_SH+2304
LDS_BYTES=L_SH+4096
assert LDS_BYTES==163840 and L_CL+CAP<=L_ST and L_ST+1024<=WSTR
fb=lambda x: struct.unpack('<I',struct.pack('<f',x))[0]
LOG2E=1.4426950408889634
OOB=0x80000000

def gen(R=3, NBAR=6, stamp=False, force_slow=False, spinmax=1<<18, reps=2, sfirst=False, prio=0, skip=''):
    a=Asm()
    ACC=0; AOP=16; B0=24; B1=25; COLW=26; TMP=27; EN=28; DA=30; TRA=32; LO=36; AP=38; CP=39; NOTN=40
    S1=41; DIS=42; SA=43; SWA=45; SRA=46; TRD=47; STA=48; LANE=49; X=50; TS=69
    TG=70; T0=72
    T=lambda p:T0+8*p
    sWG=2; sW=3; sTIN=28; sTOUT=32; sWS=36; sT1=40; sT2=44
    sU=48; sREM=49; sBA=50; sBD=51; sRB=52; sK=53; sSLOW=54; sNB=55; sA=56; sB=57; sC=58; sD=59
    sK1=60; sK2=61; sSPIN=62; sEV=63; sM=64
    sP0=66; sP1=68; sPM=70; sSEG=71; sOFF=72; sCNT=73; sSTART=74; sBK=75; sSI=76; sXC=77; sDB=96; sPA=86; sPM2=87; sM2=78
    nst=[0]
    def st(i):
        if stamp:
            a(f'''s_memrealtime s[80:81]
s_waitcnt lgkmcnt(0)
s_add_u32 m0, s{sSI}, {i}
s_nop 0
v_writelane_b32 v{TS}, s80, m0''')
    def srd(d,lo,nbytes):
        a(f'''s_mov_b32 s{d}, s{lo}
s_mov_b32 s{d+1}, s{lo+1}
s_mov_b32 s{d+2}, {nbytes}
s_mov_b32 s{d+3}, 0x20000''')
    uid=[0]
    def L(x):
        uid[0]+=1; return f'L_{x}_{uid[0]}'
    def spin(lab):
        a(f'''s_sleep 1
s_add_u32 s{sSPIN}, s{sSPIN}, 1
s_cmp_lt_u32 s{sSPIN}, {spinmax}
s_cbranch_scc1 {lab}
s_endpgm''')
    a(f'''s_cmp_ge_u32 s2, 256
s_cbranch_scc1 L_end
s_load_dwordx16 s[4:19], s[0:1], 0
s_load_dwordx8 s[20:27], s[0:1], 64
v_lshrrev_b32 v1, 6, v0
v_and_b32 v{LANE}, 63, v0
v_readfirstlane_b32 s{sW}, v1
v_lshlrev_b32 v2, 4, v0
s_mul_i32 s{sA}, s2, {CH*4}
s_mov_b32 s{sSI}, 0
s_mov_b32 s{sSPIN}, 0
v_mov_b32 v{TS}, 0
s_mul_i32 s{sRB}, s{sW}, {WSTR}
s_cmp_lg_u32 s{sW}, 13
s_cbranch_scc1 L_nopf
s_getpc_b64 s[94:95]
L_pc1:
v_lshlrev_b32 v3, 7, v{LANE}
global_load_dword v4, v3, s[94:95]
v_add_u32 v3, 8192, v3
v_min_u32 v3, L_final-L_pc1, v3
global_load_dword v5, v3, s[94:95]
L_nopf:
v_mov_b32 v16, 0
v_mov_b32 v17, 0
v_lshlrev_b32 v22, 2, v0
v_add_u32 v22, {L_CNT1}, v22
v_lshrrev_b32 v18, 3, v{LANE}          ; g
v_lshrrev_b32 v14, 1, v18
v_lshlrev_b32 v14, 5, v14
v_and_b32 v15, 1, v18
s_lshl_b32 s{sB}, s{sW}, 1
v_add3_u32 v14, v14, v15, s{sB}        ; r
v_cmp_gt_u32 vcc, {NPW-128}, v14
s_mul_i32 s{sD}, s2, {NPW}
v_add_u32 v14, s{sD}, v14
v_add_u32 v15, 128, v14
v_mov_b32 v19, 0x01000000
v_cndmask_b32 v15, v19, v15, vcc
v_and_b32 v19, 7, v{LANE}
v_lshlrev_b32 v19, 4, v19
v_lshl_add_u32 v20, v14, 7, v19
v_lshl_add_u32 v21, v15, 7, v19
v_lshlrev_b32 v24, 1, v14
v_lshlrev_b32 v25, 1, v15
s_waitcnt lgkmcnt(0)
s_add_u32 s26, s26, 0x1fffff
s_addc_u32 s27, s27, 0
s_and_b32 s26, s26, 0xffe00000
s_add_u32 s{sWS}, s26, {MISC}
s_addc_u32 s{sWS+1}, s27, 0
s_mov_b32 s{sWS+2}, {8<<20}
s_mov_b32 s{sWS+3}, 0x20000''')
    srd(sT1,6,E*4); srd(sT2,8,E*4); srd(sDB,24,256)
    a(f'''s_cmp_ge_u32 s{sW}, 13
s_cbranch_scc1 L_noedge
buffer_load_dwordx4 v[4:7], v2, s[{sT2}:{sT2+3}], s{sA} offen
buffer_load_dwordx4 v[8:11], v2, s[{sT1}:{sT1+3}], s{sA} offen
s_cmp_ge_u32 s{sW}, 4
s_cbranch_scc1 L_b1
ds_write_b32 v22, v16
ds_write_b32 v22, v16 offset:{L_CNT2-L_CNT1}
ds_write_b32 v22, v16 offset:{L_MISC-L_CNT1}
s_branch L_b1
L_noedge:
s_cmp_lg_u32 s{sW}, 15
s_cbranch_scc1 L_b1
buffer_load_dword v4, v16, s[{sDB}:{sDB+3}], 0 offen offset:128 sc1
s_cmp_ge_u32 s2, 8
s_cbranch_scc1 L_b1
v_lshlrev_b32 v3, 4, v{LANE}
v_mov_b32 v8, 0
v_mov_b32 v9, 0
v_mov_b32 v10, 0
v_mov_b32 v11, 0
s_lshl_b32 s{sA}, s2, 10
s_add_u32 s{sA}, s{sA}, {SYNC}
buffer_store_dwordx4 v[8:11], v3, s[{sWS}:{sWS+3}], s{sA} offen sc1
s_add_u32 s{sA}, s{sA}, 8192
buffer_store_dwordx4 v[8:11], v3, s[{sWS}:{sWS+3}], s{sA} offen sc1
s_add_u32 s{sA}, s{sA}, 8192
buffer_store_dwordx4 v[8:11], v3, s[{sWS}:{sWS+3}], s{sA} offen sc1
L_b1:''')
    st(0)
    srd(sT1,4,N*128); srd(sT2,10,N*2)
    a(f'''s_add_u32 s90, s26, {PROBE}
s_addc_u32 s91, s27, 0
s_add_u32 s92, s26, {MISC+SYNC}
s_addc_u32 s93, s27, 0
s_waitcnt lgkmcnt(0)
s_barrier
s_cmp_lg_u32 s{sW}, 15
s_cbranch_scc1 L_xl
s_cmp_lg_u32 s2, 0
s_cbranch_scc1 L_xl
s_waitcnt vmcnt(0)
v_mov_b32 v3, 1
s_mov_b64 exec, 1
buffer_store_dword v3, v16, s[{sDB}:{sDB+3}], 0 offen sc1
s_mov_b64 exec, -1
L_xl:
buffer_load_dwordx4 v[{X}:{X+3}], v20, s[{sT1}:{sT1+3}], 0 offen
buffer_load_dwordx4 v[{X+4}:{X+7}], v21, s[{sT1}:{sT1+3}], 0 offen
buffer_load_ushort v26, v24, s[{sT2}:{sT2+3}], 0 offen
buffer_load_ushort v27, v25, s[{sT2}:{sT2+3}], 0 offen''')
    st(1)
    srd(sTIN,26,TSTR); srd(sTOUT,26,TSTR)
    for i in range(2):
        a(f'''v_and_b32 v20, 0x0100ffc0, v{14+i}
v_and_b32 v21, 0xffff, v{14+i}
v_add_u32 v20, v20, v21
v_and_b32 v21, 0x2000, v{14+i}
v_lshl_add_u32 v20, v20, 7, v21
v_add_u32 v{SA+i}, v20, v19''')
    a(f'''v_and_b32 v12, 15, v{LANE}            ; n
v_lshrrev_b32 v13, 4, v{LANE}          ; q''')
    a(f'''v_mov_b32 v16, 0
v_mov_b32 v18, {OOB}
v_mov_b32 v19, {OOB}
v_mov_b32 v20, {OOB}
v_mov_b32 v21, {OOB}
v_lshl_add_u32 v23, v{LANE}, 4, s{sRB}
ds_write_b128 v23, v[18:21] offset:{L_AL}
ds_write_b128 v23, v[18:21] offset:{L_AL+CAP*4-1024}
v_lshl_add_u32 v23, v{LANE}, 2, s{sRB}
ds_write_b32 v23, v16 offset:{L_CL}
ds_write_b32 v23, v16 offset:{L_CL+CAP-256}''')
    a(f'''; tr-read addresses: lane=(q, r, c): g=2q+(r&1), i=r>>1, swz=((g>>1)&1)*2+i
v_bfe_u32 v16, v{LANE}, 2, 1           ; r&1
v_bfe_u32 v17, v{LANE}, 3, 1           ; i
v_lshl_add_u32 v16, v13, 1, v16        ; g
v_lshlrev_b32 v16, 7, v16
v_lshl_add_u32 v16, v17, 10, v16
v_and_b32 v18, 1, v13
v_lshl_add_u32 v18, v18, 1, v17        ; swz
v_lshl_add_u32 v16, v18, 5, v16
v_and_b32 v18, 3, v{LANE}
v_lshl_add_u32 v16, v18, 3, v16
v_add_u32 v{TRA}, s{sRB}, v16
v_xor_b32 v{TRA+1}, 32, v{TRA}
v_xor_b32 v{TRA+2}, 64, v{TRA}
v_xor_b32 v{TRA+3}, 96, v{TRA}
v_and_b32 v16, 7, v{LANE}
v_bfe_u32 v17, v{LANE}, 4, 1           ; (g>>1)&1, g=lane>>3
v_lshlrev_b32 v17, 2, v17
v_xor_b32 v17, v17, v16
v_lshlrev_b32 v{LO}, 4, v17
v_xor_b32 v{LO+1}, 32, v{LO}
; ~(n*0x01010101)
s_mov_b32 s{sA}, 0x01010101
v_mul_lo_u32 v{NOTN}, v12, s{sA}
v_not_b32 v{NOTN}, v{NOTN}
s_mov_b32 s{sK1}, 0x40404041
s_mov_b32 s{sK2}, 0x40004000
v_mul_u32_u24 v17, 144, v12
v_lshl_add_u32 v17, v13, 3, v17
v_add_u32 v{SWA}, s{sRB}, v17
v_lshrrev_b32 v18, 3, v{LANE}          ; g
v_mul_u32_u24 v17, 144, v18
v_lshl_add_u32 v17, v16, 4, v17
v_add_u32 v{SRA}, s{sRB}, v17
v_bfe_u32 v17, v{LANE}, 3, 1
v_mul_u32_u24 v17, 144, v17
v_lshl_add_u32 v17, v13, 4, v17
v_add_u32 v{TRD}, s{sRB}, v17
v_lshl_add_u32 v{STA}, v12, 6, s{sRB}   ; col*64 (+k*8)
v_mov_b32 v{S1}, 1.0
s_cmp_lg_u32 s{sW}, 14
s_cbranch_scc1 L_np0
s_lshr_b32 s{sPA}, s2, 6
s_lshl_b32 s{sPA}, s{sPA}, 14
s_and_b32 s{sB}, s2, 63
s_lshl_b32 s{sB}, s{sB}, 7
s_add_u32 s{sPA}, s{sPA}, s{sB}
s_add_u32 s{sB}, s{sPA}, 0x2000
s_mov_b32 s{sC}, 1
s_mov_b32 s{sD}, 1
s_atomic_add s{sC}, s[90:91], s{sPA} glc
s_atomic_add s{sD}, s[90:91], s{sB} glc
s_barrier
s_barrier
s_branch L_g0
L_np0:
s_cmp_ge_u32 s{sW}, 13
s_cbranch_scc1 L_p1_b2''')
    a(f'''s_mov_b32 s{sA}, 85599
v_lshlrev_b32 v2, 2, v0
v_mov_b32 v3, 1
s_waitcnt vmcnt(5)''')
    for j in range(4):
        a(f'''v_mul_u32_u24 v16, s{sA}, v{4+j}
v_lshrrev_b32 v16, 24, v16            ; owner
v_mul_u32_u24 v17, {NPW}, v16
v_sub_u32 v{4+j}, v{4+j}, v17          ; r
v_and_b32 v17, 7, v16
v_lshrrev_b32 v16, 3, v16
v_lshl_add_u32 v16, v17, 5, v16
v_lshlrev_b32 v16, 2, v16
v_add_u32 v{12+j}, {L_CNT1}, v16
{'v_cmpx_gt_u32 vcc, %d, v2'%(CH-j) if j<2 else ''}
ds_add_rtn_u32 v{20+j}, v{12+j}, v3''')
    a('s_mov_b64 exec, -1')
    a('s_waitcnt vmcnt(4)')
    st(7)
    for j in range(4): a(f'v_lshl_or_b32 v{8+j}, v{4+j}, 16, v{8+j}')
    a(f'''L_p1_b2:
s_waitcnt lgkmcnt(0)
s_barrier''')
    st(2)
    def scan(cnt, c, quad):
        a(f'''v_lshlrev_b32 v{c+9}, 4, v{LANE}
v_add_u32 v{c+9}, {cnt}, v{c+9}
ds_read_b128 v[{c}:{c+3}], v{c+9}
s_waitcnt lgkmcnt(0)
v_add_u32 v{c+6}, v{c}, v{c+1}
v_add_u32 v{c+7}, v{c+6}, v{c+2}
v_add_u32 v{c+4}, v{c+7}, v{c+3}
v_mov_b32 v{c+8}, v{c+4}''')
        if quad:
            a(f'''v_mov_b32 v{c+5}, 0
v_mov_b32_dpp v{c+5}, v{c+8} quad_perm:[0,0,1,2] row_mask:0xf bank_mask:0xf
v_cndmask_b32 v{c+5}, v{c+5}, 0, s[{sM}:{sM+1}]
v_add_u32 v{c+8}, v{c+8}, v{c+5}
v_mov_b32_dpp v{c+5}, v{c+8} quad_perm:[0,0,0,1] row_mask:0xf bank_mask:0xf
v_cndmask_b32 v{c+5}, v{c+5}, 0, s[{sM2}:{sM2+1}]
v_add_u32 v{c+8}, v{c+8}, v{c+5}''')
        else:
            for m in ('row_shr:1 row_mask:0xf','row_shr:2 row_mask:0xf','row_shr:4 row_mask:0xf','row_shr:8 row_mask:0xf','row_bcast:15 row_mask:0xa','row_bcast:31 row_mask:0xc'):
                a(f'v_add_u32_dpp v{c+8}, v{c+8}, v{c+8} {m} bank_mask:0xf')
        a(f'''v_sub_u32 v{c+4}, v{c+8}, v{c+4}
v_add_u32 v{c+5}, v{c+4}, v{c}
v_add_u32 v{c+6}, v{c+4}, v{c+6}
v_add_u32 v{c+7}, v{c+4}, v{c+7}
ds_write_b128 v{c+9}, v[{c+4}:{c+7}] offset:1040''')
    a(f'''s_cmp_ge_u32 s{sW}, 14
s_cbranch_scc1 L_p1_b3''')
    scan(L_CNT1,58,False)
    a(f'''s_cmp_lg_u32 s{sW}, 13
s_cbranch_scc1 L_p1_sc''')
    for j in range(4): a(f'v_lshl_or_b32 v{58+j}, v{58+j}, 16, v{62+j}')
    a(f'''s_lshl_b32 s{sA}, s2, 10
s_add_u32 s{sA}, s{sA}, {OFFS}
v_lshlrev_b32 v16, 4, v{LANE}
buffer_store_dwordx4 v[58:61], v16, s[{sWS}:{sWS+3}], s{sA} offen sc1
s_branch L_p1_b3
L_p1_sc:
s_waitcnt lgkmcnt(0)''')
    for j in range(4):
        if j<2: a(f'v_cmpx_gt_u32 vcc, {CH-j}, v2')
        a(f'ds_read_b32 v{16+j}, v{12+j} offset:1040')
    a('s_mov_b64 exec, -1')
    for j in range(4):
        a(f'''s_waitcnt lgkmcnt(3)
v_add_lshl_u32 v{16+j}, v{16+j}, v{20+j}, 2
v_add_u32 v{16+j}, {L_W}, v{16+j}
{'v_cmpx_gt_u32 vcc, %d, v2'%(CH-j) if j<2 else ''}
ds_write_b32 v{16+j}, v{8+j}''')
    a('s_mov_b64 exec, -1')
    a(f'''L_p1_b3:
s_waitcnt lgkmcnt(0)
s_barrier
s_cmp_lt_u32 s{sW}, 13
s_cbranch_scc1 L_p1_st
s_cmp_lg_u32 s{sW}, 15
s_cbranch_scc1 L_g0
v_mov_b32 v16, 0
L_w15p:
buffer_load_dword v17, v16, s[{sDB}:{sDB+3}], 0 offen sc1
s_waitcnt vmcnt(0)
v_readfirstlane_b32 s{sA}, v17
s_cmp_lg_u32 s{sA}, 0
s_cbranch_scc1 L_g0''')
    spin('L_w15p')
    a(f'''L_p1_st:
v_lshlrev_b32 v2, 4, v0
v_add_u32 v3, {L_W}, v2
ds_read_b128 v[4:7], v3
s_mul_i32 s{sA}, s2, {CHSTR}
v_cmp_gt_u32 vcc, {CHSTR}, v2
v_mov_b32 v3, {OOB}
v_cndmask_b32 v2, v3, v2, vcc
s_waitcnt lgkmcnt(0)
buffer_store_dwordx4 v[4:7], v2, s[{sWS}:{sWS+3}], s{sA} offen sc1
s_waitcnt vmcnt(1)
s_branch L_g0b
L_g0:
s_waitcnt vmcnt(0)
L_g0b:
v_mov_b32 v68, v0
v_xor_b32 v{DA}, 0x2000, v{SA}
v_xor_b32 v{DA+1}, 0x2000, v{SA+1}''')
    for i in range(2):
        a(f'v_lshlrev_b32 v{26+i}, 16, v{26+i}')
        for c in range(4):
            a(f'''v_lshlrev_b32 v8, 16, v{X+4*i+c}
v_and_b32 v9, 0xffff0000, v{X+4*i+c}
v_mul_f32 v8, v8, v{26+i}
v_mul_f32 v9, v9, v{26+i}
v_cvt_pk_bf16_f32 v{X+8+4*i+c}, v8, v9''')
        a(f'''s_cmp_eq_u32 s{sW}, 15
s_cbranch_scc1 L_g0s{i}
buffer_store_dwordx4 v[{X+8+4*i}:{X+11+4*i}], v{SA+i}, s[{sTOUT}:{sTOUT+3}], 0 offen sc1
buffer_store_dwordx4 v[{X+8+4*i}:{X+11+4*i}], v{DA+i}, s[{sTOUT}:{sTOUT+3}], 0 offen sc1
L_g0s{i}:''')
    a(f'''s_waitcnt vmcnt(4)
s_barrier''')
    st(3)
    def signal(t0=16,t1=17):
        l=L('ns')
        a(f'''s_lshl_b32 s{sA}, s{sEV}, 10
s_and_b32 s{sB}, s2, 7
s_lshl_b32 s{sB}, s{sB}, 7
s_add_u32 s{sA}, s{sA}, s{sB}
s_mov_b32 s{sB}, 1
s_waitcnt lgkmcnt(0)
s_atomic_add s{sB}, s[92:93], s{sA} glc
s_add_u32 s{sC}, s{sA}, {SYNC+8192}
v_mov_b32 v{t0}, 0
v_mov_b32 v{t1}, 1
s_waitcnt lgkmcnt(0)
s_cmp_lg_u32 s{sB}, 31
s_cbranch_scc1 {l}
s_mov_b64 exec, 1
buffer_store_dword v{t1}, v{t0}, s[{sWS}:{sWS+3}], s{sC} offen sc1
s_mov_b64 exec, -1
{l}:''')
    def poll():
        l=L('pl'); d=L('pd')
        a(f'''s_lshl_b32 s{sA}, s{sEV}, 10
s_add_u32 s{sA}, s{sA}, {SYNC+8192}
v_lshlrev_b32 v16, 7, v{LANE}
s_mov_b64 exec, 0xff
{l}:
buffer_load_dword v17, v16, s[{sWS}:{sWS+3}], s{sA} offen sc1
s_waitcnt vmcnt(0)
v_cmp_eq_u32 vcc, 0, v17
s_cbranch_vccz {d}''')
        spin(l)
        a(f'''{d}:
s_mov_b64 exec, -1''')
    def gstore():
        a(f'v_mul_f32 v{TMP}, v{S1}, v{DIS}')
        for t in range(4):
            for r in range(4): a(f'v_mul_f32 v{X+r}, v{TMP}, v{ACC+4*t+r}')
            a(f'''v_cvt_pk_bf16_f32 v{AOP+2*t}, v{X}, v{X+1}
v_cvt_pk_bf16_f32 v{AOP+2*t+1}, v{X+2}, v{X+3}
ds_write_b64 v{SWA}, v[{AOP+2*t}:{AOP+2*t+1}] offset:{32*t}''')
        a(f'''v_xor_b32 v{DA}, 0x2000, v{SA}
v_xor_b32 v{DA+1}, 0x2000, v{SA+1}
s_waitcnt lgkmcnt(0)
ds_read_b128 v[{X+8}:{X+11}], v{SRA}
ds_read_b128 v[{X+12}:{X+15}], v{SRA} offset:1152
s_waitcnt lgkmcnt(1)
buffer_store_dwordx4 v[{X+8}:{X+11}], v{SA}, s[{sTOUT}:{sTOUT+3}], 0 offen sc1
buffer_store_dwordx4 v[{X+8}:{X+11}], v{DA}, s[{sTOUT}:{sTOUT+3}], 0 offen sc1
s_waitcnt lgkmcnt(0)
buffer_store_dwordx4 v[{X+12}:{X+15}], v{SA+1}, s[{sTOUT}:{sTOUT+3}], 0 offen sc1
buffer_store_dwordx4 v[{X+12}:{X+15}], v{DA+1}, s[{sTOUT}:{sTOUT+3}], 0 offen sc1''')
    def allq(r,t):
        a(f'''v_mov_b32 v{t}, v{r}
v_permlane16_swap_b32 v{t}, v{r}
v_add_f32 v{r}, v{r}, v{t}
v_mov_b32 v{t}, v{r}
v_permlane32_swap_b32 v{t}, v{r}
v_add_f32 v{r}, v{r}, v{t}''')
    def stats():
        for i in range(2): a(f'v_add_f32 v{X+i}, v{ACC+i}, v{ACC+2+i}')
        for i in range(2): a(f'v_mul_f32 v{X+4+i}, v{ACC+i}, v{ACC+i}')
        for i in range(2,16):
            if i>=4: a(f'v_add_f32 v{X+i%2}, v{X+i%2}, v{ACC+i}')
            a(f'v_fmac_f32 v{X+4+i%2}, v{ACC+i}, v{ACC+i}')
        a(f'''v_add_f32 v{X}, v{X}, v{X+1}
v_add_f32 v{X+4}, v{X+4}, v{X+5}
v_mul_f32 v{X+5}, v{S1}, v{S1}
v_permlane16_swap_b32 v{X}, v{X+4}
v_add_f32 v{X}, v{X}, v{X+4}
v_mov_b32 v{X+4}, v{X}
v_mov_b32 v{X+6}, {fb(1e-5):#x}
v_permlane32_swap_b32 v{X}, v{X+4}
v_add_f32 v{X}, v{X}, v{X+4}
v_mul_f32 v{X}, {fb(1/64):#x}, v{X}
v_mov_b32 v{X+4}, v{X}
s_lshl_b32 s{sA}, s{sK}, 3
v_add_u32 v{X+7}, s{sA}, v{STA}
v_permlane16_swap_b32 v{X}, v{X+4}
v_fma_f32 v{X+4}, -v{X}, v{X}, v{X+4}
v_max_f32 v{X+4}, 0, v{X+4}
v_fmac_f32 v{X+6}, v{X+5}, v{X+4}      ; var+eps
v_rsq_f32 v{X+5}, v{X+6}
v_mul_f32 v{X+3}, v{X}, v{S1}          ; mu
v_mul_f32 v{X+2}, v{X+6}, v{X+5}       ; sigma
v_mul_f32 v{X+4}, v{X+5}, v{S1}
v_mul_f32 v{X+5}, v{X+5}, v{X+3}
ds_write_b64 v{X+7}, v[{X+2}:{X+3}] offset:{L_ST}''')
        for t in range(4):
            for r in range(4): a(f'v_fma_f32 v{ACC+4*t+r}, v{X+4}, v{ACC+4*t+r}, -v{X+5}')
            a(f'''v_cvt_pk_bf16_f32 v{AOP+2*t}, v{ACC+4*t}, v{ACC+4*t+1}
v_cvt_pk_bf16_f32 v{AOP+2*t+1}, v{ACC+4*t+2}, v{ACC+4*t+3}
ds_write_b64 v{SWA}, v[{AOP+2*t}:{AOP+2*t+1}] offset:{2304+32*t}''')
        a(f'''s_lshl_b32 s{sA}, 0x01010101, s{sK}
s_mov_b32 exec_lo, s{sA}
s_mov_b32 exec_hi, s{sA}
s_waitcnt lgkmcnt(0)''')
        for p in range(7):
            for s in range(2): a(f'ds_read_b128 v[{T(p)+4*s}:{T(p)+4*s+3}], v{TRD} offset:{2304+288*p+64*s}')
        a(f'''s_mov_b64 exec, -1
s_waitcnt lgkmcnt(0)''')
    a(f'''s_mov_b32 s{sEV}, 0
s_mov_b32 s{sK}, 0
s_cmp_lg_u32 s{sW}, 15
s_cbranch_scc1 L_e0''')
    signal()
    a(f'''L_e0:
s_getreg_b32 s{sXC}, hwreg(HW_REG_XCC_ID, 0, 3)
s_lshl_b32 s{sXC}, s{sXC}, 7
s_add_u32 s{sXC}, s{sXC}, 16384
s_cmp_lg_u32 s{sW}, 14
s_cbranch_scc1 L_e1
; wave 14: timed memory-side round trips to copy 1 / copy 0, alternating; publish the best per die
s_setprio 3
s_waitcnt lgkmcnt(0)
s_mov_b32 s{sC}, 0
s_mov_b32 s{sPM}, 0
s_mov_b32 s{sPM2}, 0
L_pr:
s_mov_b32 s{sB}, 1
s_memtime s[{sP0}:{sP0+1}]
s_waitcnt lgkmcnt(0)
s_atomic_add s{sB}, s[90:91], s{sPA} glc
s_waitcnt lgkmcnt(0)
s_memtime s[{sP1}:{sP1+1}]
s_waitcnt lgkmcnt(0)
s_sub_u32 s{sB}, s{sP0}, s{sP1}
{('s_sub_u32 s80, 0, s%d'%sB+chr(10)+'s_lshl_b32 s%d, s%d, 3'%(sD,sC)+chr(10)+'s_add_u32 m0, s%d, 15'%sD+chr(10)+'s_nop 0'+chr(10)+'v_writelane_b32 v%d, s80, m0'%TS) if stamp else ''}
s_max_u32 s{sB}, s{sPM}, s{sB}
s_mov_b32 s{sPM}, s{sPM2}
s_mov_b32 s{sPM2}, s{sB}
s_xor_b32 s{sPA}, s{sPA}, 0x2000
s_add_u32 s{sC}, s{sC}, 1
s_cmp_lt_u32 s{sC}, {2*reps}
s_cbranch_scc1 L_pr
s_add_u32 s{sB}, s{sXC}, 4
s_atomic_umax s{sPM}, s[92:93], s{sXC} glc
s_atomic_umax s{sPM2}, s[92:93], s{sB} glc
s_setprio 0
L_e1:
ds_write_b128 v{SRA}, v[{X}:{X+3}]
ds_write_b128 v{SRA}, v[{X+4}:{X+7}] offset:1152
v_lshrrev_b32 v8, 3, v{LANE}
v_lshl_add_u32 v8, v8, 2, s{sRB}
ds_write2_b32 v8, v26, v27 offset0:{4608//4-1024} offset1:{4608//4-1024+8}
v_and_b32 v9, 15, v{LANE}
v_lshl_add_u32 v9, v9, 2, s{sRB}
s_waitcnt lgkmcnt(0)'''.replace('v_lshl_add_u32 v8, v8, 2, s%d'%sRB,'v_lshl_add_u32 v8, v8, 2, s%d\nv_add_u32 v8, 4096, v8'%sRB))
    for t in range(4): a(f'ds_read_b64 v[{X+2*t}:{X+2*t+1}], v{SWA} offset:{32*t}')
    a(f'''ds_read_b32 v{DIS}, v9 offset:4608
s_waitcnt lgkmcnt(0)''')
    for i in range(8):
        a(f'''v_lshlrev_b32 v{ACC+2*i}, 16, v{X+i}
v_and_b32 v{ACC+2*i+1}, 0xffff0000, v{X+i}''')
    stats()
    a(f'''v_mul_f32 v{S1}, 0.5, v{DIS}
s_cmp_lg_u32 s{sW}, 15
s_cbranch_scc1 L_e0w''')
    poll()
    for i in range(2):
        a(f'''buffer_store_dwordx4 v[{X+8+4*i}:{X+11+4*i}], v{SA+i}, s[{sTOUT}:{sTOUT+3}], 0 offen sc1
buffer_store_dwordx4 v[{X+8+4*i}:{X+11+4*i}], v{DA+i}, s[{sTOUT}:{sTOUT+3}], 0 offen sc1''')
    a(f'''L_e0w:
s_barrier''')
    st(4)
    a(f'''s_and_b32 s{sBK}, s2, 7
s_lshl_b32 s{sBK}, s{sBK}, 5
s_lshr_b32 s{sA}, s2, 3
s_add_u32 s{sBK}, s{sBK}, s{sA}
s_lshl_b32 s{sBK}, s{sBK}, 2
s_add_u32 s{sBK}, s{sBK}, {OFFS}
v_lshrrev_b32 v1, 2, v68               ; segment
v_lshlrev_b32 v2, 10, v1
buffer_load_dword v3, v2, s[{sWS}:{sWS+3}], s{sBK} offen sc1
s_mov_b32 s{sEV}, 1
v_mul_u32_u24 v1, {CHSTR}, v1
v_and_b32 v2, 3, v68
v_lshlrev_b32 v2, 2, v2                ; 4*sub
s_waitcnt vmcnt(0)
v_and_b32 v4, 0xffff, v3
v_lshrrev_b32 v3, 16, v3               ; count
v_add_u32 v4, v4, v2
v_lshl_add_u32 v4, v4, 2, v1
v_sub_u32 v3, v3, v2
buffer_load_dwordx4 v[8:11], v4, s[{sWS}:{sWS+3}], 0 offen sc1
v_cmp_lt_i32 vcc, 16, v3
v_mov_b32 v5, {OOB}
v_cndmask_b32 v5, v5, v4, vcc
buffer_load_dwordx4 v[12:15], v5, s[{sWS}:{sWS+3}], 0 offen offset:64 sc1
v_cmp_lt_i32 vcc, 32, v3
v_mov_b32 v6, 1
v_mov_b32 v7, {L_MISC}
s_cbranch_vccz L_p2b
ds_write_b32 v7, v6
L_p2b:''')
    for j in range(8):
        if j%4==0: a(f's_waitcnt vmcnt({1-j//4})')
        a(f'''v_bfe_u32 v0, v{8+j}, 17, 4            ; wave
v_bfe_u32 v1, v{8+j}, 12, 4            ; region
v_lshl_add_u32 v0, v0, 4, v1
v_lshlrev_b32 v0, 2, v0
v_add_u32 v{16+j}, {L_CNT2}, v0
v_cmpx_lt_i32 vcc, {j%4+16*(j//4)}, v3
ds_add_rtn_u32 v{X+j}, v{16+j}, v6''')
    a('s_mov_b64 exec, -1')
    a(f'''s_mov_b32 s{sM}, 0x11111111
s_mov_b32 s{sM+1}, 0x11111111
s_mov_b32 s{sM2}, 0x33333333
s_mov_b32 s{sM2+1}, 0x33333333
s_waitcnt lgkmcnt(0)
s_barrier''')
    st(5)
    a(f'''v_mov_b32 v2, {SYNC}
buffer_load_dwordx2 v[6:7], v2, s[{sWS}:{sWS+3}], s{sXC} offen sc1
s_cmp_lg_u32 s{sW}, 15
s_cbranch_scc1 L_p2a''')
    signal(0,1)
    a(f'''L_p2a:
v_mov_b32 v0, {L_MISC}
ds_read_b32 v1, v0''')
    scan(L_CNT2,58,True)
    a(f'''s_lshl_b32 s{sA}, s{sW}, 2
s_add_u32 s{sA}, s{sA}, 3
v_readlane_b32 s{sU}, v66, s{sA}
v_cmp_lt_u32 vcc, {CAP}, v66
v_readfirstlane_b32 s{sSLOW}, v1
s_or_b32 s{sA}, vcc_lo, vcc_hi
s_or_b32 s{sSLOW}, s{sSLOW}, s{sA}
{'s_mov_b32 s%d, 1'%sSLOW if force_slow else ''}
s_add_u32 s{sU}, s{sU}, 15
s_lshr_b32 s{sU}, s{sU}, 4
s_mov_b32 s{sNB}, {NBAR}
s_cmp_eq_u32 s{sSLOW}, 0
s_cbranch_scc1 L_p2c
s_mov_b32 s{sNB}, 0
s_mov_b32 s{sU}, 4
s_branch L_p2d
L_p2c:
s_waitcnt lgkmcnt(0)''')
    for j in range(8): a(f'v_cmpx_lt_i32 vcc, {j%4+16*(j//4)}, v3\nds_read_b32 v{24+j}, v{16+j} offset:1040')
    a('s_mov_b64 exec, -1')
    def conv(e,ad,col,t):
        a(f'''v_and_b32 v{t}, 0xffc0, v{e}
v_and_b32 v{ad}, 0xffff, v{e}
v_add_u32 v{t}, v{t}, v{ad}
v_and_b32 v{ad}, 0x2000, v{e}
v_lshl_add_u32 v{ad}, v{t}, 7, v{ad}
v_bfe_u32 v{col}, v{e}, 21, 3
v_bfe_u32 v{t}, v{e}, 16, 1
v_lshl_add_u32 v{col}, v{col}, 1, v{t}''')
    a(f's_movk_i32 s{sA}, {WSTR}')
    for j in range(8):
        conv(8+j,0,1,2)
        a(f'''v_bfe_u32 v2, v{8+j}, 17, 4
v_mul_u32_u24 v2, s{sA}, v2
{'s_waitcnt lgkmcnt(0)' if j==0 else ''}
v_add_u32 v4, v{24+j}, v{X+j}
v_add_u32 v5, v2, v4
v_lshl_add_u32 v4, v4, 2, v2
v_cmpx_lt_i32 vcc, {j%4+16*(j//4)}, v3
ds_write_b32 v4, v0 offset:{L_AL}
ds_write_b8 v5, v1 offset:{L_CL}''')
    a('s_mov_b64 exec, -1')
    a(f'''L_p2d:
s_waitcnt vmcnt(0)
v_cmp_gt_u32 s[{sM}:{sM+1}], v6, v7
v_mov_b32 v5, 0x2000
v_cndmask_b32 v5, 0, v5, s[{sM}:{sM+1}]
v_or_b32 v{LO}, v{LO}, v5
v_or_b32 v{LO+1}, v{LO+1}, v5
s_cmp_lg_u32 s{sW}, 15
s_cbranch_scc1 L_p2e''')
    poll()
    a(f'''L_p2e:
s_waitcnt lgkmcnt(0)
s_barrier''')
    st(6)
    a(f'''s_cmp_lg_u32 s2, 255
s_cbranch_scc1 L_hop
v_bfe_u32 v0, v{LANE}, 2, 2
v_and_b32 v1, 3, v{LANE}
v_lshl_add_u32 v0, v0, 3, v1           ; 8*(i>>2)+(i&3)
v_lshrrev_b32 v1, 4, v{LANE}           ; q
s_and_b32 s{sA}, s{sW}, 1
s_lshl_b32 s{sA}, s{sA}, 12            ; s*32 rows*128B
s_and_b32 s{sB}, s{sW}, 4
s_lshl_b32 s{sB}, s{sB}, 3
s_and_b32 s{sC}, s{sW}, 2
s_lshl_b32 s{sC}, s{sC}, 1
s_add_u32 s{sB}, s{sB}, s{sC}
v_lshlrev_b32 v2, 7, v0
v_lshl_add_u32 v2, v1, 4, v2           ; row*128 + q*16
s_cmp_ge_u32 s{sW}, 8
s_cbranch_scc1 L_jw''')
    srd(sT1,12,8192); srd(sT2,14,8192)
    a(f'''s_lshl_b32 s{sB}, s{sB}, 7
buffer_load_dwordx4 v[24:27], v2, s[{sT2}:{sT2+3}], s{sB} offen
buffer_load_dwordx4 v[28:31], v2, s[{sT2}:{sT2+3}], s{sB} offen offset:64
s_mov_b32 s{sC}, {fb(0.125*LOG2E):#x}
s_branch L_jm
L_jw:''')
    srd(sT1,16,8192); srd(sT2,18,8192)
    a(f'''s_lshl_b32 s{sB}, s{sB}, 1
v_lshlrev_b32 v3, 1, v0
v_lshl_add_u32 v3, v1, 10, v3          ; (8q)*128 + col*2
v_add_u32 v4, 4096, v3''')
    for s in range(2):
        for j in range(8):
            a(f'buffer_load_ushort v{X+8*s+j}, v{3+s}, s[{sT2}:{sT2+3}], s{sB} offen offset:{128*j}')
    a('s_waitcnt vmcnt(0)')
    for i in range(8): a(f'v_lshl_or_b32 v{24+i}, v{X+2*i+1}, 16, v{X+2*i}')
    a(f'''s_mov_b32 s{sC}, 1.0
L_jm:
buffer_load_dwordx4 v[8:11], v2, s[{sT1}:{sT1+3}], s{sA} offen
buffer_load_dwordx4 v[12:15], v2, s[{sT1}:{sT1+3}], s{sA} offen offset:64
buffer_load_dwordx4 v[16:19], v2, s[{sT1}:{sT1+3}], s{sA} offen offset:512
buffer_load_dwordx4 v[20:23], v2, s[{sT1}:{sT1+3}], s{sA} offen offset:576
s_lshl_b32 s{sD}, s{sW}, 10
s_add_u32 s{sD}, s{sD}, {WGT}
v_lshlrev_b32 v5, 4, v{LANE}
s_waitcnt vmcnt(0)
v_mfma_f32_16x16x32_bf16 v[{X}:{X+3}], v[8:11], v[24:27], 0
v_mfma_f32_16x16x32_bf16 v[{X+4}:{X+7}], v[16:19], v[24:27], 0
v_mfma_f32_16x16x32_bf16 v[{X}:{X+3}], v[12:15], v[28:31], v[{X}:{X+3}]
v_mfma_f32_16x16x32_bf16 v[{X+4}:{X+7}], v[20:23], v[28:31], v[{X+4}:{X+7}]''')
    for i in range(8): a(f'v_mul_f32 v{X+i}, s{sC}, v{X+i}')
    for i in range(4): a(f'v_cvt_pk_bf16_f32 v{12+i}, v{X+2*i}, v{X+2*i+1}')
    a(f'''buffer_store_dwordx4 v[12:15], v5, s[{sWS}:{sWS+3}], s{sD} offen sc1
s_cmp_ge_u32 s{sW}, 2
s_cbranch_scc1 L_jend''')
    srd(sT1,20,128)
    a(f'''v_lshlrev_b32 v2, 4, v1
s_lshl_b32 s{sA}, s{sW}, 6
buffer_load_dwordx4 v[8:11], v2, s[{sT1}:{sT1+3}], s{sA} offen
v_lshlrev_b32 v3, 1, v{LANE}
buffer_load_ushort v4, v3, s[{sT1}:{sT1+3}], 0 offen
s_mov_b32 s{sM}, 0x11111111
s_mov_b32 s{sM+1}, 0x11111111
s_mov_b32 s{sM2}, 0x22222222
s_mov_b32 s{sM2+1}, 0x22222222
v_mov_b32 v6, 0x3f803f80
v_cndmask_b32 v6, 0, v6, s[{sM}:{sM+1}]
s_add_u32 s{sD}, s{sD}, 16384
s_waitcnt vmcnt(0)''')
    for i in range(4): a(f'v_cndmask_b32 v{8+i}, v6, v{8+i}, s[{sM2}:{sM2+1}]')
    a(f'''buffer_store_dwordx4 v[8:11], v5, s[{sWS}:{sWS+3}], s{sD} offen sc1
v_lshlrev_b32 v4, 16, v4''')
    for m in ('quad_perm:[1,0,3,2]','quad_perm:[2,3,0,1]','row_half_mirror','row_mirror'):
        a(f'v_add_f32_dpp v4, v4, v4 {m} row_mask:0xf bank_mask:0xf')
    allq(4,6)
    a(f'''s_mov_b32 s{sA}, {WGT+18432}
v_lshlrev_b32 v3, 2, v{LANE}
buffer_store_dword v4, v3, s[{sWS}:{sWS+3}], s{sA} offen sc1
L_jend:
s_waitcnt vmcnt(0)''')
    a(f'''L_hop:
s_add_u32 s{sK}, s{sK}, 1
s_add_u32 s{sSI}, s{sSI}, 8
s_add_u32 s{sTOUT}, s{sTOUT}, {TSTR}
s_addc_u32 s{sTOUT+1}, s{sTOUT+1}, 0''')
    for i in range(16): a(f'v_mov_b32 v{ACC+i}, 0')
    a(f'''s_mov_b32 s{sSEG}, 0
s_mov_b32 s{sOFF}, 0
s_mov_b32 s{sCNT}, 0
''')
    st(0)
    a(f'''s_cmp_eq_u32 s{sSLOW}, 0
s_cbranch_scc1 L_gather
L_slow:
s_cmp_lt_u32 s{sOFF}, s{sCNT}
s_cbranch_scc1 L_slow2
s_cmp_ge_u32 s{sSEG}, 256
s_cbranch_scc1 L_gdone
s_lshl_b32 s{sA}, s{sSEG}, 10
v_mov_b32 v16, s{sA}
buffer_load_dword v17, v16, s[{sWS}:{sWS+3}], s{sBK} offen sc1
s_mul_i32 s{sSTART}, s{sSEG}, {CHSTR}
s_add_u32 s{sSEG}, s{sSEG}, 1
s_mov_b32 s{sOFF}, 0
s_waitcnt vmcnt(0)
v_readfirstlane_b32 s{sA}, v17
s_lshr_b32 s{sCNT}, s{sA}, 16
s_and_b32 s{sA}, s{sA}, 0xffff
s_lshl_b32 s{sA}, s{sA}, 2
s_add_u32 s{sSTART}, s{sSTART}, s{sA}
s_branch L_slow
L_slow2:
v_add_u32 v16, s{sOFF}, v{LANE}
v_lshl_add_u32 v17, v16, 2, s{sSTART}
buffer_load_dword v18, v17, s[{sWS}:{sWS+3}], 0 offen sc1
s_add_u32 s{sOFF}, s{sOFF}, 64
v_cmp_gt_u32 s[{sM}:{sM+1}], s{sCNT}, v16
s_waitcnt vmcnt(0)
v_bfe_u32 v19, v18, 17, 4
v_cmp_eq_u32 vcc, s{sW}, v19
s_and_b64 s[{sM}:{sM+1}], s[{sM}:{sM+1}], vcc''')
    conv(18,20,21,22)
    a(f'''v_mov_b32 v22, {OOB}
v_cndmask_b32 v20, v22, v20, s[{sM}:{sM+1}]
v_lshl_add_u32 v22, v{LANE}, 2, s{sRB}
v_add_u32 v23, s{sRB}, v{LANE}
ds_write_b32 v22, v20 offset:{L_AL}
ds_write_b8 v23, v21 offset:{L_CL}
s_waitcnt lgkmcnt(0)''')
    def issue(b,e):
        a(f'''v_xor_b32 v{DA}, v{e}, v{LO}
v_xor_b32 v{DA+1}, v{e+1}, v{LO+1}
s_add_u32 m0, s{sRB}, {2048*b}
buffer_load_dwordx4 v{DA}, s[{sTIN}:{sTIN+3}], 0 offen sc1 lds
s_add_u32 m0, s{sRB}, {2048*b+1024}
buffer_load_dwordx4 v{DA+1}, s[{sTIN}:{sTIN+3}], 0 offen sc1 lds''')
    a(f'''L_gather:
{'s_setprio 3' if prio else ''}
v_lshrrev_b32 v{AP}, 3, v{LANE}
v_lshl_add_u32 v{AP}, v{AP}, 3, s{sRB}
v_lshrrev_b32 v{CP}, 4, v{LANE}
v_lshl_add_u32 v{CP}, v{CP}, 2, s{sRB}''')
    for b in range(R): a(f'ds_read_b64 v[{X+2*b}:{X+2*b+1}], v{AP} offset:{L_AL+64*b}')
    a(f'''ds_read_b64 v[{EN}:{EN+1}], v{AP} offset:{L_AL+64*R}
s_mov_b32 s{sREM}, s{sU}
s_mov_b32 s{sBA}, {R*(NBAR+1)}
s_mov_b32 s{sBD}, 0
s_waitcnt lgkmcnt(0)''')
    for b in range(R):
        a(f'''s_cmp_le_u32 s{sU}, {b}
s_cbranch_scc1 L_gl''')
        issue(b,X+2*b)
    a('L_gl:')
    for b in range(R):
        a(f'''s_cmp_ge_u32 s{sREM}, {R}
s_cbranch_scc1 L_gw{b}
s_cmp_eq_u32 s{sREM}, 0
s_cbranch_scc1 L_gend''')
        for m in range(R-1,1,-1):
            a(f'''s_waitcnt vmcnt({2*(m-1)})
s_cmp_eq_u32 s{sREM}, {m}
s_cbranch_scc1 L_gw{b}''')
        a(f'''s_waitcnt vmcnt(0)
L_gw{b}:
s_waitcnt vmcnt({2*(R-1)})''')
        a(f'ds_read_b32 v{COLW}, v{CP} offset:{L_CL+16*b}')
        for t in range(4 if 'tr' not in skip else 0): a(f'ds_read_b64_tr_b16 v[{AOP+2*t}:{AOP+2*t+1}], v{TRA+t} offset:{2048*b}')
        a(f'''s_waitcnt lgkmcnt(4)
v_xad_u32 v{TMP}, v{COLW}, v{NOTN}, s{sK1}
v_and_b32 v{B1}, s{sK2}, v{TMP}
v_lshlrev_b32 v{TMP}, 8, v{TMP}
v_and_b32 v{B0}, s{sK2}, v{TMP}
s_cmp_le_u32 s{sREM}, {R}
s_waitcnt lgkmcnt(0)
s_cbranch_scc1 L_gn{b}''')
        issue(b,EN)
        a(f'''ds_read_b64 v[{EN}:{EN+1}], v{AP} offset:{L_AL+64*(R+1+b)}
s_add_u32 s{sBA}, s{sBA}, {NBAR+1}''')
        if prio:
            a(f'''s_lshl_b32 s{sA}, s{sBA}, 2
s_setprio 3
s_cmp_lt_u32 s{sA}, s{sU}
s_cbranch_scc1 L_gn{b}
s_setprio 2
s_sub_u32 s{sA}, s{sA}, s{sU}
s_cmp_lt_u32 s{sA}, s{sU}
s_cbranch_scc1 L_gn{b}
s_setprio 1
s_sub_u32 s{sA}, s{sA}, s{sU}
s_cmp_lt_u32 s{sA}, s{sU}
s_cbranch_scc1 L_gn{b}
s_setprio 0''')
        a(f'L_gn{b}:')
        for t in range(4 if 'mfma' not in skip else 0): a(f'v_mfma_f32_16x16x16_bf16 v[{ACC+4*t}:{ACC+4*t+3}], v[{AOP+2*t}:{AOP+2*t+1}], v[{B0}:{B1}], v[{ACC+4*t}:{ACC+4*t+3}]')
        a(f's_sub_u32 s{sREM}, s{sREM}, 1')
        if NBAR:
            a(f'''L_gb{b}:
s_cmp_lt_u32 s{sBA}, s{sU}
s_cbranch_scc1 L_gc{b}
s_cmp_ge_u32 s{sBD}, s{sNB}
s_cbranch_scc1 L_gc{b}
s_sub_u32 s{sBA}, s{sBA}, s{sU}
s_add_u32 s{sBD}, s{sBD}, 1
s_barrier
{'s_setprio 3' if prio else ''}
s_branch L_gb{b}
L_gc{b}:''')
    a(f'''v_add_u32 v{AP}, {64*R}, v{AP}
v_add_u32 v{CP}, {16*R}, v{CP}
s_branch L_gl
L_gend:
s_waitcnt lgkmcnt(0)
s_cmp_ge_u32 s{sBD}, s{sNB}
s_cbranch_scc1 L_gend2
s_add_u32 s{sBD}, s{sBD}, 1
s_barrier
s_branch L_gend
L_gend2:
s_cmp_lg_u32 s{sSLOW}, 0
s_cbranch_scc1 L_slow
L_gdone:
{'s_setprio 0' if prio else ''}''')
    st(1)
    a(f'''s_cmp_eq_u32 s{sK}, 7
s_cbranch_scc1 L_final''')
    if sfirst: a('s_setprio 1')
    gstore()
    if sfirst: a('s_setprio 0')
    st(2)
    a(f'''s_add_u32 s{sEV}, s{sEV}, 1
s_add_u32 s{sTIN}, s{sTIN}, {TSTR}
s_addc_u32 s{sTIN+1}, s{sTIN+1}, 0
s_cmp_lg_u32 s{sW}, 15
s_cbranch_scc1 L_hA''')
    stats()
    a('''s_waitcnt vmcnt(0)
s_barrier''')
    signal()
    st(4)
    poll()
    a(f'''s_branch L_job
L_hA:''')
    if sfirst: stats()
    a('s_waitcnt vmcnt(0)')
    st(3)
    a('s_barrier')
    if not sfirst: stats()
    st(4)
    a(f'''L_job:
s_cmp_lg_u32 s{sK}, 2
s_cbranch_scc1 L_jpf0
s_lshl_b32 s{sA}, s{sW}, 10
s_add_u32 m0, s{sA}, {L_W}
s_add_u32 s{sA}, s{sA}, {WGT}
v_lshlrev_b32 v3, 4, v{LANE}
buffer_load_dwordx4 v3, s[{sWS}:{sWS+3}], s{sA} offen sc1 lds
s_cmp_ge_u32 s{sW}, 3
s_cbranch_scc1 L_hB
s_add_u32 m0, m0, 16384
s_add_u32 s{sA}, s{sA}, 16384
buffer_load_dwordx4 v3, s[{sWS}:{sWS+3}], s{sA} offen sc1 lds
s_branch L_hB
L_jpf0:
s_cmp_lg_u32 s{sW}, 14
s_cbranch_scc1 L_hB
L_jpf:
s_cmp_lg_u32 s{sK}, 6
s_cbranch_scc1 L_hB
s_getpc_b64 s[94:95]
L_pc2:
v_lshlrev_b32 v3, 7, v{LANE}
v_min_u32 v4, L_end-L_pc2, v3
global_load_dword v4, v4, s[94:95]
v_add_u32 v3, 8192, v3
v_min_u32 v3, L_end-L_pc2, v3
global_load_dword v5, v3, s[94:95]
s_waitcnt vmcnt(0)''')
    a(f'''L_hB:
s_waitcnt lgkmcnt(0)''')
    st(5)
    a('''s_barrier
s_branch L_hop''')
    a('L_final:')
    stats()
    st(2)
    if stamp:
        a(f'''s_lshl_b32 s{sA}, s2, 4
s_add_u32 s{sA}, s{sA}, s{sW}
s_lshl_b32 s{sA}, s{sA}, 8
s_add_u32 s88, s{sA}, {STAMP}
v_lshlrev_b32 v16, 2, v{LANE}
buffer_store_dword v{TS}, v16, s[{sWS}:{sWS+3}], s88 offen
s_waitcnt vmcnt(0)''')
    def fst(i):
        if stamp: a(f'''s_memrealtime s[80:81]
s_waitcnt lgkmcnt(0)
s_mov_b32 s{82+i}, s80''')
    U=32; SAa=48; SBb=52; Y=56; P=62
    a(f'''v_lshlrev_b32 v{Y}, 4, v{LANE}
v_add_u32 v{Y}, {L_W}, v{Y}''')
    for f in range(8): a(f'ds_read_b128 v[{4*f}:{4*f+3}], v{Y} offset:{1024*f}')
    LN=TG+1; SG=TG
    a(f'''v_mov_b32 v{LN}, v{LANE}
v_lshrrev_b32 v{Y+1}, 5, v{LN}           ; q>>1
v_bfe_u32 v{Y+2}, v{LN}, 3, 1            ; b
v_xor_b32 v{Y+2}, v{Y+2}, v{Y+1}         ; invalid
v_and_b32 v{Y+3}, 7, v{LN}
v_lshl_add_u32 v{Y+3}, v{Y+1}, 3, v{Y+3}
v_lshlrev_b32 v{Y+3}, 3, v{Y+3}
v_lshl_add_u32 v{Y+3}, v{Y+2}, 7, v{Y+3}
v_add_u32 v{SG}, s{sRB}, v{Y+3}
s_waitcnt lgkmcnt(0)''')
    def scores(p,S):
        for s in range(2):
            for t in range(4):
                c='0' if s==0 else f'v[{U+4*t}:{U+4*t+3}]'
                a(f'v_mfma_f32_16x16x32_bf16 v[{U+4*t}:{U+4*t+3}], v[{8*t+4*s}:{8*t+4*s+3}], v[{T(p)+4*s}:{T(p)+4*s+3}], {c}')
        for i in range(8): a(f'v_cvt_pk_bf16_f32 v{U+i}, v{U+2*i}, v{U+2*i+1}')
        a(f'''v_mfma_f32_16x16x32_bf16 v[{S}:{S+3}], v[{T(p)}:{T(p)+3}], v[{U}:{U+3}], 0
v_mfma_f32_16x16x32_bf16 v[{S}:{S+3}], v[{T(p)+4}:{T(p)+7}], v[{U+4}:{U+7}], v[{S}:{S+3}]''')
    for g in range(4):
        if g==3:
            a(f'''s_cmp_ge_u32 s{sW}, 2
s_cbranch_scc1 L_f2''')
        a(f'ds_read_b32 v{Y+4}, v{SG} offset:{L_ST+256*g}')
        scores(2*g,SAa)
        if g<3:
            scores(2*g+1,SBb)
            for r in range(4):
                a(f'''v_mov_b32_dpp v{SAa+r}, v{SBb+r} row_ror:8 row_mask:0x3 bank_mask:0xc
v_mov_b32_dpp v{SAa+r}, v{SBb+r} row_ror:8 row_mask:0xc bank_mask:0x3''')
        S=SAa
        a(f'''v_max3_f32 v{Y}, v{S}, v{S+1}, v{S+2}
v_max_f32 v{Y}, v{Y}, v{S+3}
v_mov_b32 v{Y+1}, v{Y}
v_permlane16_swap_b32 v{Y+1}, v{Y}
v_max_f32 v{Y}, v{Y}, v{Y+1}''')
        for r in range(4): a(f'v_sub_f32 v{S+r}, v{S+r}, v{Y}')
        for r in range(4): a(f'v_exp_f32 v{S+r}, v{S+r}')
        a(f'''v_add_f32 v{Y}, v{S}, v{S+1}
v_add_f32 v{Y+1}, v{S+2}, v{S+3}
v_add_f32 v{Y}, v{Y}, v{Y+1}
v_mov_b32 v{Y+1}, v{Y}
v_permlane16_swap_b32 v{Y+1}, v{Y}
v_add_f32 v{Y}, v{Y}, v{Y+1}
s_waitcnt lgkmcnt(0)
v_mul_f32 v{Y}, v{Y}, v{Y+4}
v_rcp_f32 v{Y}, v{Y}''')
        for r in range(4): a(f'v_mul_f32 v{S+r}, v{S+r}, v{Y}')
        a(f'''v_cvt_pk_bf16_f32 v{P+2*g}, v{S}, v{S+1}
v_cvt_pk_bf16_f32 v{P+2*g+1}, v{S+2}, v{S+3}''')
    a('L_f2:')
    fst(0)
    OA=32; ZT=48; VM=56; OW=57; OT=58; GW=59; SAD=60; LN2=61
    LO_IMG=0; LG=4608; LS=LG+7*256; LWB=LS+7*128; LC=LWB+256
    assert LC+64<=L_ST
    a(f'''v_mov_b32 v{LN2}, v{LN}
v_lshlrev_b32 v{SAD}, 4, v{LN2}
v_add_u32 v{OA}, {L_W+8192}, v{SAD}
v_add_u32 v{SAD}, {L_SA}, v{SAD}''')
    for f in range(8): a(f'ds_read_b128 v[{4*f}:{4*f+3}], v{OA} offset:{1024*f}')
    a(f'''v_lshrrev_b32 v{OA+1}, 5, v{LN2}
v_bfe_u32 v{OA+2}, v{LN2}, 3, 1
v_xor_b32 v{OA+2}, v{OA+2}, v{OA+1}
v_add_u32 v{VM}, -1, v{OA+2}             ; valid ? ~0 : 0
v_and_b32 v{OA+1}, 15, v{LN2}            ; n
v_lshrrev_b32 v{OA+2}, 4, v{LN2}         ; q
v_mul_u32_u24 v{OA+3}, 144, v{OA+1}
v_lshl_add_u32 v{OA+3}, v{OA+2}, 4, v{OA+3}
v_add_u32 v{OW}, s{sRB}, v{OA+3}
v_lshrrev_b32 v{OA+3}, 2, v{LN2}         ; row 4q+r
v_mul_u32_u24 v{OA+3}, 144, v{OA+3}
v_and_b32 v{OA+4}, 3, v{LN2}
v_lshl_add_u32 v{OA+3}, v{OA+4}, 3, v{OA+3}
v_add_u32 v{OT}, s{sRB}, v{OA+3}
v_lshl_add_u32 v{GW}, v{OA+1}, 3, s{sRB}
v_add_u32 v{GW}, {LG}, v{GW}
v_lshlrev_b32 v{OA+2}, 2, v{OA+2}
v_sub_u32 v{OA+1}, v{OA+1}, v{OA+2}       ; m-4q
v_mov_b32 v{OA+3}, 0x3f80
v_mov_b32 v{OA+4}, 0x3f800000''')
    for h in range(2):
        a(f'''v_cmp_eq_u32 s[{sM}:{sM+1}], {2*h}, v{OA+1}
v_cmp_eq_u32 s[{sM2}:{sM2+1}], {2*h+1}, v{OA+1}
v_cndmask_b32 v{ZT+2+h}, 0, v{OA+3}, s[{sM}:{sM+1}]
v_cndmask_b32 v{ZT+2+h}, v{ZT+2+h}, v{OA+4}, s[{sM2}:{sM2+1}]
v_mov_b32 v{ZT+6+h}, v{ZT+2+h}''')
    a(f'''s_mov_b32 s{sM}, 0x00f0000f
s_mov_b32 s{sM+1}, 0xf0000f00
s_waitcnt lgkmcnt(0)''')
    def o2reg(p,t):
        g=p//2
        return (TG+16*g+4*t+2*(p&1)) if p<6 else (TG+48+2*t)
    for p in range(7):
        if p==6:
            a(f'''s_cmp_ge_u32 s{sW}, 2
s_cbranch_scc1 L_f3''')
        tp=T(p); pm=P+2*(p//2)
        for s in range(2):
            for t in range(4):
                c='0' if s==0 else f'v[{OA+4*t}:{OA+4*t+3}]'
                a(f'v_mfma_f32_16x16x32_bf16 v[{OA+4*t}:{OA+4*t+3}], v[{tp+4*s}:{tp+4*s+3}], v[{8*t+4*s}:{8*t+4*s+3}], {c}')
        for t in range(4):
            z=ZT+4*(t&1); b=tp-2+2*t
            if t==0:
                for h in range(2):
                    if p&1: a(f'v_and_b32_dpp v{b+h}, v{pm+h}, v{VM} row_ror:8 row_mask:0xf bank_mask:0xf')
                    else: a(f'v_and_b32 v{b+h}, v{pm+h}, v{VM}')
            else: a(f'v_mov_b64 v[{b}:{b+1}], v[{b-2}:{b-1}]')
            a(f'''v_cvt_pk_bf16_f32 v{z}, v{OA+4*t}, v{OA+4*t+1}
v_cvt_pk_bf16_f32 v{z+1}, v{OA+4*t+2}, v{OA+4*t+3}
v_mfma_f32_16x16x32_bf16 v[{OA+4*t}:{OA+4*t+3}], v[{z}:{z+3}], v[{b}:{b+3}], 0''')
        ob=tp-2
        for i in range(8): a(f'v_cvt_pk_bf16_f32 v{ob+i}, v{OA+2*i}, v{OA+2*i+1}')
        img=LO_IMG+2304*(p&1)
        a(f'''ds_read_b128 v[{OA}:{OA+3}], v{SAD}
ds_read_b128 v[{OA+4}:{OA+7}], v{SAD} offset:1024
ds_write_b128 v{OW}, v[{ob}:{ob+3}] offset:{img}
ds_write_b128 v{OW}, v[{ob+4}:{ob+7}] offset:{img+64}
v_mfma_f32_16x16x32_bf16 v[{OA+8}:{OA+11}], v[{ob}:{ob+3}], v[{ob}:{ob+3}], 0
v_mfma_f32_16x16x32_bf16 v[{OA+8}:{OA+11}], v[{ob+4}:{ob+7}], v[{ob+4}:{ob+7}], v[{OA+8}:{OA+11}]
s_waitcnt lgkmcnt(2)
v_mfma_f32_16x16x32_bf16 v[{OA+12}:{OA+15}], v[{OA}:{OA+3}], v[{ob}:{ob+3}], 0
v_mfma_f32_16x16x32_bf16 v[{OA+12}:{OA+15}], v[{OA+4}:{OA+7}], v[{ob+4}:{ob+7}], v[{OA+12}:{OA+15}]
s_mov_b64 exec, s[{sM}:{sM+1}]
ds_write2_b64 v{GW}, v[{OA+8}:{OA+9}], v[{OA+10}:{OA+11}] offset0:{(256*p)//8} offset1:{(256*p+128)//8}''')
        a(f'''ds_write_b64 v{GW}, v[{OA+12}:{OA+13}] offset:{7*256+128*p}
s_mov_b64 exec, -1''')
        if p&1 or p==6:
            a('s_waitcnt lgkmcnt(2)')
            for pp in ((p-1,p) if p<6 else (6,)):
                for t in range(4):
                    r=o2reg(pp,t)
                    a(f'ds_read_b64_tr_b16 v[{r}:{r+1}], v{OT} offset:{LO_IMG+2304*(pp&1)+32*t}')
        a('s_waitcnt lgkmcnt(0)')
    a('L_f3:')
    fst(1)
    F=0; K=16
    a(f'''v_lshl_add_u32 v{K}, v{LN2}, 3, s{sRB}          ; lane*8
v_lshrrev_b32 v{K+1}, 4, v{LN2}                 ; q
v_bfe_u32 v{K+2}, v{LN2}, 1, 1
v_add_u32 v{K+2}, v{K+2}, v{K+1}
v_lshl_add_u32 v{K+2}, v{K+2}, 7, v{K}
v_and_b32 v{K+3}, 1, v{LN2}
v_lshl_add_u32 v{K+2}, v{K+3}, 2, v{K+2}
v_mov_b32 v{K+3}, {L_SH+2048}
ds_read_b32 v{K+3}, v{K+3}''')
    Rr=lambda h:24+10*h
    for h in range(2):
        r=Rr(h)
        a(f'''ds_read_b32 v{r}, v{K+2} offset:{LG+1024*h}
ds_read_b64 v[{r+2}:{r+3}], v{K} offset:{LS+512*h}
ds_read_b64 v[{r+4}:{r+5}], v{K} offset:{L_ST+512*h}''')
    a(f'''v_lshl_add_u32 v{K+4}, v{LN2}, 1, s{sRB}        ; w write
v_lshrrev_b32 v{K+5}, 3, v{LN2}
v_lshl_add_u32 v{K+5}, v{K+5}, 2, s{sRB}        ; c write
v_lshl_add_u32 v{K+6}, v{K+1}, 3, s{sRB}        ; w read
v_and_b32 v{K+7}, 15, v{LN2}
v_lshl_add_u32 v{K+7}, v{K+7}, 2, s{sRB}        ; c read
s_waitcnt lgkmcnt(0)''')
    def both(txt):
        for ln in txt.strip().split('\n'):
            for h in range(2):
                r=Rr(h)
                a(ln.format(q=r,u=r+1,s=r+2,d=r+3,g=r+4,m=r+5,a=r+6,b=r+7,c=r+8,h=h,wo=LWB+128*h,co=LC+32*h))
    red=lambda op,x: '\n'.join(f'{op}_dpp v{{{x}}}, v{{{x}}}, v{{{x}}} {m} row_mask:0xf bank_mask:0xf' for m in('quad_perm:[1,0,3,2]','quad_perm:[2,3,0,1]','row_half_mirror'))
    both(f'''v_mul_f32 v{{s}}, {fb(1/64):#x}, v{{s}}
v_mul_f32 v{{q}}, {fb(1/64):#x}, v{{q}}
v_fma_f32 v{{q}}, -v{{s}}, v{{s}}, v{{q}}
v_max_f32 v{{q}}, 0, v{{q}}
v_mul_f32 v{{a}}, v{{g}}, v{{g}}
v_mov_b32 v{{b}}, {fb(1e-5):#x}
v_fmac_f32 v{{b}}, v{{a}}, v{{q}}
v_rsq_f32 v{{b}}, v{{b}}
v_fma_f32 v{{d}}, -v{{s}}, v{K+3}, v{{d}}
v_mul_f32 v{{a}}, {fb(LOG2E):#x}, v{{g}}
v_mul_f32 v{{d}}, v{{d}}, v{{a}}
v_mul_f32 v{{d}}, v{{d}}, v{{b}}
v_mov_b32 v{{a}}, v{{d}}
{red('v_max_f32','a')}
v_sub_f32 v{{d}}, v{{d}}, v{{a}}
v_exp_f32 v{{d}}, v{{d}}
v_mov_b32 v{{a}}, v{{d}}
v_mul_f32 v{{m}}, v{{m}}, v{{d}}
{red('v_add_f32','a')}
{red('v_add_f32','m')}
v_rcp_f32 v{{a}}, v{{a}}
v_mul_f32 v{{d}}, v{{d}}, v{{g}}
v_mul_f32 v{{d}}, v{{d}}, v{{a}}
v_mul_f32 v{{m}}, v{{m}}, v{{a}}
v_cvt_pk_bf16_f32 v{{d}}, v{{d}}, v{{d}}
ds_write_b16 v{K+4}, v{{d}} offset:{{wo}}
ds_write_b32 v{K+5}, v{{m}} offset:{{co}}''')
    WT=24; CI=40
    a('s_waitcnt lgkmcnt(0)')
    a(f'ds_read_b32 v{CI}, v{K+7} offset:{LC}')
    for p in range(7): a(f'ds_read_b64 v[{WT+2*p}:{WT+2*p+1}], v{K+6} offset:{LWB+32*p}')
    OAD=44
    srd(sT1,22,N*128)
    a(f'''v_and_b32 v{K}, 15, v{LN2}
v_mul_u32_u24 v{K}, 144, v{K}
v_add_u32 v{K}, v{K}, v{K+6}
v_lshrrev_b32 v{K+2}, 3, v{LN2}                 ; g
v_and_b32 v{K+3}, 7, v{LN2}
v_mul_u32_u24 v{K+1}, 144, v{K+2}
v_lshl_add_u32 v{K+1}, v{K+3}, 4, v{K+1}
v_add_u32 v{K+1}, s{sRB}, v{K+1}
v_lshrrev_b32 v{K+4}, 1, v{K+2}
v_lshlrev_b32 v{K+4}, 5, v{K+4}
v_and_b32 v{K+5}, 1, v{K+2}
s_lshl_b32 s{sB}, s{sW}, 1
v_add3_u32 v{K+4}, v{K+4}, v{K+5}, s{sB}         ; r
v_cmp_gt_u32 vcc, {NPW-128}, v{K+4}
s_mul_i32 s{sD}, s2, {NPW}
v_add_u32 v{K+4}, s{sD}, v{K+4}
v_lshlrev_b32 v{K+4}, 7, v{K+4}
v_lshl_add_u32 v{OAD}, v{K+3}, 4, v{K+4}
v_add_u32 v{OAD+1}, {128*128}, v{OAD}
v_mov_b32 v{K+4}, {OOB}
v_cndmask_b32 v{OAD+1}, v{K+4}, v{OAD+1}, vcc
s_waitcnt lgkmcnt(0)
v_mov_b32 v{CI+1}, v{CI}
v_mov_b32 v{CI+2}, v{CI}
v_mov_b32 v{CI+3}, v{CI}''')
    for g in range(4):
        if g==3:
            a(f'''s_cmp_ge_u32 s{sW}, 2
s_cbranch_scc1 L_f4''')
        for p in ((2*g,2*g+1) if g<3 else (6,)):
            m=sM if p%2==0 else sM2
            a(f'''s_mov_b32 s{m}, {0x00010001<<(2*p):#x}
s_mov_b32 s{m+1}, {0x00020002<<(2*p):#x}
v_cndmask_b32 v{WT+2*p}, 0, v{WT+2*p}, s[{m}:{m+1}]
v_cndmask_b32 v{WT+2*p+1}, 0, v{WT+2*p+1}, s[{m}:{m+1}]''')
        for t in range(4):
            c=f'v[{CI}:{CI+3}]' if g==0 else f'v[{F+4*t}:{F+4*t+3}]'
            r=o2reg(2*g,t)
            if g<3: a(f'v_mfma_f32_16x16x32_bf16 v[{F+4*t}:{F+4*t+3}], v[{r}:{r+3}], v[{WT+4*g}:{WT+4*g+3}], {c}')
            else: a(f'v_mfma_f32_16x16x16_bf16 v[{F+4*t}:{F+4*t+3}], v[{r}:{r+1}], v[{WT+12}:{WT+13}], {c}')
    a('L_f4:')
    for t in range(4):
        a(f'''v_cvt_pk_bf16_f32 v{48+2*t}, v{F+4*t}, v{F+4*t+1}
v_cvt_pk_bf16_f32 v{49+2*t}, v{F+4*t+2}, v{F+4*t+3}
ds_write_b64 v{K}, v[{48+2*t}:{49+2*t}] offset:{32*t}''')
    a(f'''s_waitcnt lgkmcnt(0)
ds_read_b128 v[24:27], v{K+1}
ds_read_b128 v[28:31], v{K+1} offset:1152
s_waitcnt lgkmcnt(1)
buffer_store_dwordx4 v[24:27], v{OAD}, s[{sT1}:{sT1+3}], 0 offen
s_waitcnt lgkmcnt(0)
buffer_store_dwordx4 v[28:31], v{OAD+1}, s[{sT1}:{sT1+3}], 0 offen''')
    if stamp:
        fst(2)
        a('s_waitcnt vmcnt(0)')
        fst(3)
        a(f'''v_mov_b32 v0, s82
v_mov_b32 v1, s83
v_mov_b32 v2, s84
v_mov_b32 v3, s85
v_mov_b32 v4, {59*4}
s_mov_b64 exec, 1
buffer_store_dwordx4 v[0:3], v4, s[{sWS}:{sWS+3}], s88 offen''')
    a('L_end:\ns_endpgm')
    body=a.pad(verbose=True)
    ref=open('standalone__hybrid_graph_tf_nagphormer__graph.s.ref').read().split('\n')
    head=[l for l in ref if l.startswith(';') and '@launch' not in l]
    out='\n'.join(head)+f'''
; @launch grid=(256,1,1) block=(1024,1,1) lds={LDS_BYTES}
.amdgcn_target "amdgcn-amd-amdhsa--gfx950"
.text
.globl {KNAME}
.p2align 8
.type {KNAME},@function
{KNAME}:
'''+body+f'''.section .rodata,"a"
.p2align 6
.amdhsa_kernel {KNAME}
  .amdhsa_next_free_vgpr 128
  .amdhsa_next_free_sgpr 100
  .amdhsa_accum_offset 128
  .amdhsa_group_segment_fixed_size 0
  .amdhsa_kernarg_size 96
  .amdhsa_user_sgpr_count 2
  .amdhsa_user_sgpr_kernarg_segment_ptr 1
  .amdhsa_system_sgpr_workgroup_id_x 1
  .amdhsa_float_denorm_mode_32 3
.end_amdhsa_kernel
'''
    return out
if __name__=='__main__':
    kw=eval('dict('+(sys.argv[2] if len(sys.argv)>2 else '')+')')
    open(sys.argv[1] if len(sys.argv)>1 else 'standalone__hybrid_graph_tf_nagphormer__graph.s','w').write(gen(**kw))
```

```python
import sys, struct
sys.path.insert(0,'gen')
from asmlib import Asm
N=50000; E=800000; NPW=196; CH=3125
KNAME='standalone__hybrid_graph_tf_nagphormer__graph_kernel'
TSTR=16<<20
MISC=112<<20
CHSTR=12544
OFFS=4<<20
SYNC=5<<20
STAMP=6<<20
WGT=(5<<20)+(512<<10)
PROBE=14<<20
WSTR=8960
L_RING=0; L_AL=6144; CAP=352; L_CL=L_AL+CAP*4; L_ST=7936
L_W=16*WSTR
L_CNT1=L_W+13312; L_BASE1=L_CNT1+1040
L_SH=L_W+16384
L_CNT2=L_SH; L_BASE2=L_SH+1040; L_SA=L_SH; L_MISC=L_SH+2304
LDS_BYTES=L_SH+4096
assert LDS_BYTES==163840 and L_CL+CAP<=L_ST and L_ST+1024<=WSTR
fb=lambda x: struct.unpack('<I',struct.pack('<f',x))[0]
LOG2E=1.4426950408889634
OOB=0x80000000

def gen(R=3, NBAR=6, stamp=False, force_slow=False, spinmax=1<<18, reps=2, sfirst=False, prio=0, skip='', dbg=False):
    a=Asm()
    ACC=0; AOP=16; B0=24; B1=25; COLW=26; TMP=27; EN=28; DA=30; TRA=32; LO=36; AP=38; CP=39; NOTN=40
    S1=41; DIS=42; SA=43; SWA=45; SRA=46; TRD=47; STA=48; LANE=49; X=50; TS=69
    TG=70; T0=72
    T=lambda p:T0+8*p
    sWG=2; sW=3; sTIN=28; sTOUT=32; sWS=36; sT1=40; sT2=44
    sU=48; sREM=49; sBA=50; sBD=51; sRB=52; sK=53; sSLOW=54; sNB=55; sA=56; sB=57; sC=58; sD=59
    sK1=60; sK2=61; sSPIN=62; sEV=63; sM=64
    sP0=66; sP1=68; sPM=70; sSEG=71; sOFF=72; sCNT=73; sSTART=74; sBK=75; sSI=76; sXC=77; sDB=96; sPA=86; sPM2=87; sM2=78
    nst=[0]
    def st(i):
        if stamp:
            a(f'''s_memrealtime s[80:81]
s_waitcnt lgkmcnt(0)
s_add_u32 m0, s{sSI}, {i}
s_nop 0
v_writelane_b32 v{TS}, s80, m0''')
    def srd(d,lo,nbytes):
        a(f'''s_mov_b32 s{d}, s{lo}
s_mov_b32 s{d+1}, s{lo+1}
s_mov_b32 s{d+2}, {nbytes}
s_mov_b32 s{d+3}, 0x20000''')
    uid=[0]
    def L(x):
        uid[0]+=1; return f'L_{x}_{uid[0]}'
    def spin(lab):
        a(f'''s_sleep 1
s_add_u32 s{sSPIN}, s{sSPIN}, 1
s_cmp_lt_u32 s{sSPIN}, {spinmax}
s_cbranch_scc1 {lab}
s_endpgm''')
    a(f'''s_cmp_ge_u32 s2, 256
s_cbranch_scc1 L_end
s_load_dwordx16 s[4:19], s[0:1], 0
s_load_dwordx8 s[20:27], s[0:1], 64
v_lshrrev_b32 v1, 6, v0
v_and_b32 v{LANE}, 63, v0
v_readfirstlane_b32 s{sW}, v1
v_lshlrev_b32 v2, 4, v0
s_mul_i32 s{sA}, s2, {CH*4}
s_mov_b32 s{sSI}, 0
s_mov_b32 s{sSPIN}, 0
v_mov_b32 v{TS}, 0
s_mul_i32 s{sRB}, s{sW}, {WSTR}
s_cmp_lg_u32 s{sW}, 13
s_cbranch_scc1 L_nopf
s_getpc_b64 s[94:95]
L_pc1:
v_lshlrev_b32 v3, 7, v{LANE}
global_load_dword v4, v3, s[94:95]
v_add_u32 v3, 8192, v3
v_min_u32 v3, L_final-L_pc1, v3
global_load_dword v5, v3, s[94:95]
L_nopf:
v_mov_b32 v16, 0
v_mov_b32 v17, 0
v_lshlrev_b32 v22, 2, v0
v_add_u32 v22, {L_CNT1}, v22
v_lshrrev_b32 v18, 3, v{LANE}          ; g
v_lshrrev_b32 v14, 1, v18
v_lshlrev_b32 v14, 5, v14
v_and_b32 v15, 1, v18
s_lshl_b32 s{sB}, s{sW}, 1
v_add3_u32 v14, v14, v15, s{sB}        ; r
v_cmp_gt_u32 vcc, {NPW-128}, v14
s_mul_i32 s{sD}, s2, {NPW}
v_add_u32 v14, s{sD}, v14
v_add_u32 v15, 128, v14
v_mov_b32 v19, 0x01000000
v_cndmask_b32 v15, v19, v15, vcc
v_and_b32 v19, 7, v{LANE}
v_lshlrev_b32 v19, 4, v19
v_lshl_add_u32 v20, v14, 7, v19
v_lshl_add_u32 v21, v15, 7, v19
v_lshlrev_b32 v24, 1, v14
v_lshlrev_b32 v25, 1, v15
s_waitcnt lgkmcnt(0)
s_add_u32 s26, s26, 0x1fffff
s_addc_u32 s27, s27, 0
s_and_b32 s26, s26, 0xffe00000
s_add_u32 s{sWS}, s26, {MISC}
s_addc_u32 s{sWS+1}, s27, 0
s_mov_b32 s{sWS+2}, {8<<20}
s_mov_b32 s{sWS+3}, 0x20000''')
    srd(sT1,6,E*4); srd(sT2,8,E*4); srd(sDB,24,256)
    a(f'''s_cmp_ge_u32 s{sW}, 13
s_cbranch_scc1 L_noedge
buffer_load_dwordx4 v[4:7], v2, s[{sT2}:{sT2+3}], s{sA} offen
buffer_load_dwordx4 v[8:11], v2, s[{sT1}:{sT1+3}], s{sA} offen
s_cmp_ge_u32 s{sW}, 4
s_cbranch_scc1 L_b1
ds_write_b32 v22, v16
ds_write_b32 v22, v16 offset:{L_CNT2-L_CNT1}
ds_write_b32 v22, v16 offset:{L_MISC-L_CNT1}
s_branch L_b1
L_noedge:
s_cmp_lg_u32 s{sW}, 15
s_cbranch_scc1 L_b1
buffer_load_dword v4, v16, s[{sDB}:{sDB+3}], 0 offen offset:128 sc1
s_cmp_ge_u32 s2, 8
s_cbranch_scc1 L_b1
v_lshlrev_b32 v3, 4, v{LANE}
v_mov_b32 v8, 0
v_mov_b32 v9, 0
v_mov_b32 v10, 0
v_mov_b32 v11, 0
s_lshl_b32 s{sA}, s2, 10
s_add_u32 s{sA}, s{sA}, {SYNC}
buffer_store_dwordx4 v[8:11], v3, s[{sWS}:{sWS+3}], s{sA} offen sc1
s_add_u32 s{sA}, s{sA}, 8192
buffer_store_dwordx4 v[8:11], v3, s[{sWS}:{sWS+3}], s{sA} offen sc1
s_add_u32 s{sA}, s{sA}, 8192
buffer_store_dwordx4 v[8:11], v3, s[{sWS}:{sWS+3}], s{sA} offen sc1
L_b1:''')
    st(0)
    srd(sT1,4,N*128); srd(sT2,10,N*2)
    a(f'''s_add_u32 s90, s26, {PROBE}
s_addc_u32 s91, s27, 0
s_add_u32 s92, s26, {MISC+SYNC}
s_addc_u32 s93, s27, 0
s_waitcnt lgkmcnt(0)
s_barrier
s_cmp_lg_u32 s{sW}, 15
s_cbranch_scc1 L_xl
s_cmp_lg_u32 s2, 0
s_cbranch_scc1 L_xl
s_waitcnt vmcnt(0)
v_mov_b32 v3, 1
s_mov_b64 exec, 1
buffer_store_dword v3, v16, s[{sDB}:{sDB+3}], 0 offen sc1
s_mov_b64 exec, -1
L_xl:
buffer_load_dwordx4 v[{X}:{X+3}], v20, s[{sT1}:{sT1+3}], 0 offen
buffer_load_dwordx4 v[{X+4}:{X+7}], v21, s[{sT1}:{sT1+3}], 0 offen
buffer_load_ushort v26, v24, s[{sT2}:{sT2+3}], 0 offen
buffer_load_ushort v27, v25, s[{sT2}:{sT2+3}], 0 offen''')
    st(1)
    srd(sTIN,26,TSTR); srd(sTOUT,26,TSTR)
    for i in range(2):
        a(f'''v_and_b32 v20, 0x0100ffc0, v{14+i}
v_and_b32 v21, 0xffff, v{14+i}
v_add_u32 v20, v20, v21
v_and_b32 v21, 0x2000, v{14+i}
v_lshl_add_u32 v20, v20, 7, v21
v_add_u32 v{SA+i}, v20, v19''')
    a(f'''v_and_b32 v12, 15, v{LANE}            ; n
v_lshrrev_b32 v13, 4, v{LANE}          ; q''')
    a(f'''v_mov_b32 v16, 0
v_mov_b32 v18, {OOB}
v_mov_b32 v19, {OOB}
v_mov_b32 v20, {OOB}
v_mov_b32 v21, {OOB}
v_lshl_add_u32 v23, v{LANE}, 4, s{sRB}
ds_write_b128 v23, v[18:21] offset:{L_AL}
ds_write_b128 v23, v[18:21] offset:{L_AL+CAP*4-1024}
v_lshl_add_u32 v23, v{LANE}, 2, s{sRB}
ds_write_b32 v23, v16 offset:{L_CL}
ds_write_b32 v23, v16 offset:{L_CL+CAP-256}''')
    a(f'''; tr-read addresses: lane=(q, r, c): g=2q+(r&1), i=r>>1, swz=((g>>1)&1)*2+i
v_bfe_u32 v16, v{LANE}, 2, 1           ; r&1
v_bfe_u32 v17, v{LANE}, 3, 1           ; i
v_lshl_add_u32 v16, v13, 1, v16        ; g
v_lshlrev_b32 v16, 7, v16
v_lshl_add_u32 v16, v17, 10, v16
v_and_b32 v18, 1, v13
v_lshl_add_u32 v18, v18, 1, v17        ; swz
v_lshl_add_u32 v16, v18, 5, v16
v_and_b32 v18, 3, v{LANE}
v_lshl_add_u32 v16, v18, 3, v16
v_add_u32 v{TRA}, s{sRB}, v16
v_xor_b32 v{TRA+1}, 32, v{TRA}
v_xor_b32 v{TRA+2}, 64, v{TRA}
v_xor_b32 v{TRA+3}, 96, v{TRA}
v_and_b32 v16, 7, v{LANE}
v_bfe_u32 v17, v{LANE}, 4, 1           ; (g>>1)&1, g=lane>>3
v_lshlrev_b32 v17, 2, v17
v_xor_b32 v17, v17, v16
v_lshlrev_b32 v{LO}, 4, v17
v_xor_b32 v{LO+1}, 32, v{LO}
; ~(n*0x01010101)
s_mov_b32 s{sA}, 0x01010101
v_mul_lo_u32 v{NOTN}, v12, s{sA}
v_not_b32 v{NOTN}, v{NOTN}
s_mov_b32 s{sK1}, 0x40404041
s_mov_b32 s{sK2}, 0x40004000
v_mul_u32_u24 v17, 144, v12
v_lshl_add_u32 v17, v13, 3, v17
v_add_u32 v{SWA}, s{sRB}, v17
v_lshrrev_b32 v18, 3, v{LANE}          ; g
v_mul_u32_u24 v17, 144, v18
v_lshl_add_u32 v17, v16, 4, v17
v_add_u32 v{SRA}, s{sRB}, v17
v_bfe_u32 v17, v{LANE}, 3, 1
v_mul_u32_u24 v17, 144, v17
v_lshl_add_u32 v17, v13, 4, v17
v_add_u32 v{TRD}, s{sRB}, v17
v_lshl_add_u32 v{STA}, v12, 6, s{sRB}   ; col*64 (+k*8)
v_mov_b32 v{S1}, 1.0
s_cmp_lg_u32 s{sW}, 14
s_cbranch_scc1 L_np0
s_lshr_b32 s{sPA}, s2, 6
s_lshl_b32 s{sPA}, s{sPA}, 14
s_and_b32 s{sB}, s2, 63
s_lshl_b32 s{sB}, s{sB}, 7
s_add_u32 s{sPA}, s{sPA}, s{sB}
s_add_u32 s{sB}, s{sPA}, 0x2000
s_mov_b32 s{sC}, 1
s_mov_b32 s{sD}, 1
s_atomic_add s{sC}, s[90:91], s{sPA} glc
s_atomic_add s{sD}, s[90:91], s{sB} glc
s_barrier
s_barrier
s_branch L_g0
L_np0:
s_cmp_ge_u32 s{sW}, 13
s_cbranch_scc1 L_p1_b2''')
    a(f'''s_mov_b32 s{sA}, 85599
v_lshlrev_b32 v2, 2, v0
v_mov_b32 v3, 1
s_waitcnt vmcnt(5)''')
    for j in range(4):
        a(f'''v_mul_u32_u24 v16, s{sA}, v{4+j}
v_lshrrev_b32 v16, 24, v16            ; owner
v_mul_u32_u24 v17, {NPW}, v16
v_sub_u32 v{4+j}, v{4+j}, v17          ; r
v_and_b32 v17, 7, v16
v_lshrrev_b32 v16, 3, v16
v_lshl_add_u32 v16, v17, 5, v16
v_lshlrev_b32 v16, 2, v16
v_add_u32 v{12+j}, {L_CNT1}, v16
{'v_cmpx_gt_u32 vcc, %d, v2'%(CH-j) if j<2 else ''}
ds_add_rtn_u32 v{20+j}, v{12+j}, v3''')
    a('s_mov_b64 exec, -1')
    a('s_waitcnt vmcnt(4)')
    st(7)
    for j in range(4): a(f'v_lshl_or_b32 v{8+j}, v{4+j}, 16, v{8+j}')
    a(f'''L_p1_b2:
s_waitcnt lgkmcnt(0)
s_barrier''')
    st(2)
    def scan(cnt, c, quad):
        a(f'''v_lshlrev_b32 v{c+9}, 4, v{LANE}
v_add_u32 v{c+9}, {cnt}, v{c+9}
ds_read_b128 v[{c}:{c+3}], v{c+9}
s_waitcnt lgkmcnt(0)
v_add_u32 v{c+6}, v{c}, v{c+1}
v_add_u32 v{c+7}, v{c+6}, v{c+2}
v_add_u32 v{c+4}, v{c+7}, v{c+3}
v_mov_b32 v{c+8}, v{c+4}''')
        if quad:
            a(f'''v_mov_b32 v{c+5}, 0
v_mov_b32_dpp v{c+5}, v{c+8} quad_perm:[0,0,1,2] row_mask:0xf bank_mask:0xf
v_cndmask_b32 v{c+5}, v{c+5}, 0, s[{sM}:{sM+1}]
v_add_u32 v{c+8}, v{c+8}, v{c+5}
v_mov_b32_dpp v{c+5}, v{c+8} quad_perm:[0,0,0,1] row_mask:0xf bank_mask:0xf
v_cndmask_b32 v{c+5}, v{c+5}, 0, s[{sM2}:{sM2+1}]
v_add_u32 v{c+8}, v{c+8}, v{c+5}''')
        else:
            for m in ('row_shr:1 row_mask:0xf','row_shr:2 row_mask:0xf','row_shr:4 row_mask:0xf','row_shr:8 row_mask:0xf','row_bcast:15 row_mask:0xa','row_bcast:31 row_mask:0xc'):
                a(f'v_add_u32_dpp v{c+8}, v{c+8}, v{c+8} {m} bank_mask:0xf')
        a(f'''v_sub_u32 v{c+4}, v{c+8}, v{c+4}
v_add_u32 v{c+5}, v{c+4}, v{c}
v_add_u32 v{c+6}, v{c+4}, v{c+6}
v_add_u32 v{c+7}, v{c+4}, v{c+7}
ds_write_b128 v{c+9}, v[{c+4}:{c+7}] offset:1040''')
    a(f'''s_cmp_ge_u32 s{sW}, 14
s_cbranch_scc1 L_p1_b3''')
    scan(L_CNT1,58,False)
    a(f'''s_cmp_lg_u32 s{sW}, 13
s_cbranch_scc1 L_p1_sc''')
    for j in range(4): a(f'v_lshl_or_b32 v{58+j}, v{58+j}, 16, v{62+j}')
    a(f'''s_lshl_b32 s{sA}, s2, 10
s_add_u32 s{sA}, s{sA}, {OFFS}
v_lshlrev_b32 v16, 4, v{LANE}
buffer_store_dwordx4 v[58:61], v16, s[{sWS}:{sWS+3}], s{sA} offen sc1
s_branch L_p1_b3
L_p1_sc:
s_waitcnt lgkmcnt(0)''')
    for j in range(4):
        if j<2: a(f'v_cmpx_gt_u32 vcc, {CH-j}, v2')
        a(f'ds_read_b32 v{16+j}, v{12+j} offset:1040')
    a('s_mov_b64 exec, -1')
    for j in range(4):
        a(f'''s_waitcnt lgkmcnt(3)
v_add_lshl_u32 v{16+j}, v{16+j}, v{20+j}, 2
v_add_u32 v{16+j}, {L_W}, v{16+j}
{'v_cmpx_gt_u32 vcc, %d, v2'%(CH-j) if j<2 else ''}
ds_write_b32 v{16+j}, v{8+j}''')
    a('s_mov_b64 exec, -1')
    a(f'''L_p1_b3:
s_waitcnt lgkmcnt(0)
s_barrier
s_cmp_lt_u32 s{sW}, 13
s_cbranch_scc1 L_p1_st
s_cmp_lg_u32 s{sW}, 15
s_cbranch_scc1 L_g0
v_mov_b32 v16, 0
L_w15p:
buffer_load_dword v17, v16, s[{sDB}:{sDB+3}], 0 offen sc1
s_waitcnt vmcnt(0)
v_readfirstlane_b32 s{sA}, v17
s_cmp_lg_u32 s{sA}, 0
s_cbranch_scc1 L_g0''')
    spin('L_w15p')
    a(f'''L_p1_st:
v_lshlrev_b32 v2, 4, v0
v_add_u32 v3, {L_W}, v2
ds_read_b128 v[4:7], v3
s_mul_i32 s{sA}, s2, {CHSTR}
v_cmp_gt_u32 vcc, {CHSTR}, v2
v_mov_b32 v3, {OOB}
v_cndmask_b32 v2, v3, v2, vcc
s_waitcnt lgkmcnt(0)
buffer_store_dwordx4 v[4:7], v2, s[{sWS}:{sWS+3}], s{sA} offen sc1
s_waitcnt vmcnt(1)
s_branch L_g0b
L_g0:
s_waitcnt vmcnt(0)
L_g0b:
v_mov_b32 v68, v0
v_xor_b32 v{DA}, 0x2000, v{SA}
v_xor_b32 v{DA+1}, 0x2000, v{SA+1}''')
    for i in range(2):
        a(f'v_lshlrev_b32 v{26+i}, 16, v{26+i}')
        for c in range(4):
            a(f'''v_lshlrev_b32 v8, 16, v{X+4*i+c}
v_and_b32 v9, 0xffff0000, v{X+4*i+c}
v_mul_f32 v8, v8, v{26+i}
v_mul_f32 v9, v9, v{26+i}
v_cvt_pk_bf16_f32 v{X+8+4*i+c}, v8, v9''')
        a(f'''s_cmp_eq_u32 s{sW}, 15
s_cbranch_scc1 L_g0s{i}
buffer_store_dwordx4 v[{X+8+4*i}:{X+11+4*i}], v{SA+i}, s[{sTOUT}:{sTOUT+3}], 0 offen sc1
buffer_store_dwordx4 v[{X+8+4*i}:{X+11+4*i}], v{DA+i}, s[{sTOUT}:{sTOUT+3}], 0 offen sc1
L_g0s{i}:''')
    a(f'''s_waitcnt vmcnt(4)
s_barrier''')
    st(3)
    def signal(t0=16,t1=17):
        l=L('ns')
        a(f'''s_lshl_b32 s{sA}, s{sEV}, 10
s_and_b32 s{sB}, s2, 7
s_lshl_b32 s{sB}, s{sB}, 7
s_add_u32 s{sA}, s{sA}, s{sB}
s_mov_b32 s{sB}, 1
s_waitcnt lgkmcnt(0)
s_atomic_add s{sB}, s[92:93], s{sA} glc
s_add_u32 s{sC}, s{sA}, {SYNC+8192}
v_mov_b32 v{t0}, 0
v_mov_b32 v{t1}, 1
s_waitcnt lgkmcnt(0)
s_cmp_lg_u32 s{sB}, 31
s_cbranch_scc1 {l}
s_mov_b64 exec, 1
buffer_store_dword v{t1}, v{t0}, s[{sWS}:{sWS+3}], s{sC} offen sc1
s_mov_b64 exec, -1
{l}:''')
    def poll():
        l=L('pl'); d=L('pd')
        a(f'''s_lshl_b32 s{sA}, s{sEV}, 10
s_add_u32 s{sA}, s{sA}, {SYNC+8192}
v_lshlrev_b32 v16, 7, v{LANE}
s_mov_b64 exec, 0xff
{l}:
buffer_load_dword v17, v16, s[{sWS}:{sWS+3}], s{sA} offen sc1
s_waitcnt vmcnt(0)
v_cmp_eq_u32 vcc, 0, v17
s_cbranch_vccz {d}''')
        spin(l)
        a(f'''{d}:
s_mov_b64 exec, -1''')
    def gstore():
        a(f'v_mul_f32 v{TMP}, v{S1}, v{DIS}')
        for t in range(4):
            for r in range(4): a(f'v_mul_f32 v{X+r}, v{TMP}, v{ACC+4*t+r}')
            a(f'''v_cvt_pk_bf16_f32 v{AOP+2*t}, v{X}, v{X+1}
v_cvt_pk_bf16_f32 v{AOP+2*t+1}, v{X+2}, v{X+3}
ds_write_b64 v{SWA}, v[{AOP+2*t}:{AOP+2*t+1}] offset:{32*t}''')
        a(f'''v_xor_b32 v{DA}, 0x2000, v{SA}
v_xor_b32 v{DA+1}, 0x2000, v{SA+1}
s_waitcnt lgkmcnt(0)
ds_read_b128 v[{X+8}:{X+11}], v{SRA}
ds_read_b128 v[{X+12}:{X+15}], v{SRA} offset:1152
s_waitcnt lgkmcnt(1)
buffer_store_dwordx4 v[{X+8}:{X+11}], v{SA}, s[{sTOUT}:{sTOUT+3}], 0 offen sc1
buffer_store_dwordx4 v[{X+8}:{X+11}], v{DA}, s[{sTOUT}:{sTOUT+3}], 0 offen sc1
s_waitcnt lgkmcnt(0)
buffer_store_dwordx4 v[{X+12}:{X+15}], v{SA+1}, s[{sTOUT}:{sTOUT+3}], 0 offen sc1
buffer_store_dwordx4 v[{X+12}:{X+15}], v{DA+1}, s[{sTOUT}:{sTOUT+3}], 0 offen sc1''')
    def allq(r,t):
        a(f'''v_mov_b32 v{t}, v{r}
v_permlane16_swap_b32 v{t}, v{r}
v_add_f32 v{r}, v{r}, v{t}
v_mov_b32 v{t}, v{r}
v_permlane32_swap_b32 v{t}, v{r}
v_add_f32 v{r}, v{r}, v{t}''')
    def stats():
        for i in range(2): a(f'v_add_f32 v{X+i}, v{ACC+i}, v{ACC+2+i}')
        for i in range(2): a(f'v_mul_f32 v{X+4+i}, v{ACC+i}, v{ACC+i}')
        for i in range(2,16):
            if i>=4: a(f'v_add_f32 v{X+i%2}, v{X+i%2}, v{ACC+i}')
            a(f'v_fmac_f32 v{X+4+i%2}, v{ACC+i}, v{ACC+i}')
        a(f'''v_add_f32 v{X}, v{X}, v{X+1}
v_add_f32 v{X+4}, v{X+4}, v{X+5}
v_mul_f32 v{X+5}, v{S1}, v{S1}
v_permlane16_swap_b32 v{X}, v{X+4}
v_add_f32 v{X}, v{X}, v{X+4}
v_mov_b32 v{X+4}, v{X}
v_mov_b32 v{X+6}, {fb(1e-5):#x}
v_permlane32_swap_b32 v{X}, v{X+4}
v_add_f32 v{X}, v{X}, v{X+4}
v_mul_f32 v{X}, {fb(1/64):#x}, v{X}
v_mov_b32 v{X+4}, v{X}
s_lshl_b32 s{sA}, s{sK}, 3
v_add_u32 v{X+7}, s{sA}, v{STA}
v_permlane16_swap_b32 v{X}, v{X+4}
v_fma_f32 v{X+4}, -v{X}, v{X}, v{X+4}
v_max_f32 v{X+4}, 0, v{X+4}
v_fmac_f32 v{X+6}, v{X+5}, v{X+4}      ; var+eps
v_rsq_f32 v{X+5}, v{X+6}
v_mul_f32 v{X+3}, v{X}, v{S1}          ; mu
v_mul_f32 v{X+2}, v{X+6}, v{X+5}       ; sigma
v_mul_f32 v{X+4}, v{X+5}, v{S1}
v_mul_f32 v{X+5}, v{X+5}, v{X+3}
ds_write_b64 v{X+7}, v[{X+2}:{X+3}] offset:{L_ST}''')
        for t in range(4):
            for r in range(4): a(f'v_fma_f32 v{ACC+4*t+r}, v{X+4}, v{ACC+4*t+r}, -v{X+5}')
            a(f'''v_cvt_pk_bf16_f32 v{AOP+2*t}, v{ACC+4*t}, v{ACC+4*t+1}
v_cvt_pk_bf16_f32 v{AOP+2*t+1}, v{ACC+4*t+2}, v{ACC+4*t+3}
ds_write_b64 v{SWA}, v[{AOP+2*t}:{AOP+2*t+1}] offset:{2304+32*t}''')
        a(f'''s_lshl_b32 s{sA}, 0x01010101, s{sK}
s_mov_b32 exec_lo, s{sA}
s_mov_b32 exec_hi, s{sA}
s_waitcnt lgkmcnt(0)''')
        for p in range(7):
            for s in range(2): a(f'ds_read_b128 v[{T(p)+4*s}:{T(p)+4*s+3}], v{TRD} offset:{2304+288*p+64*s}')
        a(f'''s_mov_b64 exec, -1
s_waitcnt lgkmcnt(0)''')
    a(f'''s_mov_b32 s{sEV}, 0
s_mov_b32 s{sK}, 0
s_cmp_lg_u32 s{sW}, 15
s_cbranch_scc1 L_e0''')
    signal()
    a(f'''L_e0:
s_getreg_b32 s{sXC}, hwreg(HW_REG_XCC_ID, 0, 3)
s_lshl_b32 s{sXC}, s{sXC}, 7
s_add_u32 s{sXC}, s{sXC}, 16384
s_cmp_lg_u32 s{sW}, 14
s_cbranch_scc1 L_e1
; wave 14: timed memory-side round trips to copy 1 / copy 0, alternating; publish the best per die
s_setprio 3
s_waitcnt lgkmcnt(0)
s_mov_b32 s{sC}, 0
s_mov_b32 s{sPM}, 0
s_mov_b32 s{sPM2}, 0
L_pr:
s_mov_b32 s{sB}, 1
s_memtime s[{sP0}:{sP0+1}]
s_waitcnt lgkmcnt(0)
s_atomic_add s{sB}, s[90:91], s{sPA} glc
s_waitcnt lgkmcnt(0)
s_memtime s[{sP1}:{sP1+1}]
s_waitcnt lgkmcnt(0)
s_sub_u32 s{sB}, s{sP0}, s{sP1}
{('s_sub_u32 s80, 0, s%d'%sB+chr(10)+'s_lshl_b32 s%d, s%d, 3'%(sD,sC)+chr(10)+'s_add_u32 m0, s%d, 15'%sD+chr(10)+'s_nop 0'+chr(10)+'v_writelane_b32 v%d, s80, m0'%TS) if stamp else ''}
s_max_u32 s{sB}, s{sPM}, s{sB}
s_mov_b32 s{sPM}, s{sPM2}
s_mov_b32 s{sPM2}, s{sB}
s_xor_b32 s{sPA}, s{sPA}, 0x2000
s_add_u32 s{sC}, s{sC}, 1
s_cmp_lt_u32 s{sC}, {2*reps}
s_cbranch_scc1 L_pr
s_add_u32 s{sB}, s{sXC}, 4
s_atomic_umax s{sPM}, s[92:93], s{sXC} glc
s_atomic_umax s{sPM2}, s[92:93], s{sB} glc
s_setprio 0
L_e1:
ds_write_b128 v{SRA}, v[{X}:{X+3}]
ds_write_b128 v{SRA}, v[{X+4}:{X+7}] offset:1152
v_lshrrev_b32 v8, 3, v{LANE}
v_lshl_add_u32 v8, v8, 2, s{sRB}
ds_write2_b32 v8, v26, v27 offset0:{4608//4-1024} offset1:{4608//4-1024+8}
v_and_b32 v9, 15, v{LANE}
v_lshl_add_u32 v9, v9, 2, s{sRB}
s_waitcnt lgkmcnt(0)'''.replace('v_lshl_add_u32 v8, v8, 2, s%d'%sRB,'v_lshl_add_u32 v8, v8, 2, s%d\nv_add_u32 v8, 4096, v8'%sRB))
    for t in range(4): a(f'ds_read_b64 v[{X+2*t}:{X+2*t+1}], v{SWA} offset:{32*t}')
    a(f'''ds_read_b32 v{DIS}, v9 offset:4608
s_waitcnt lgkmcnt(0)''')
    for i in range(8):
        a(f'''v_lshlrev_b32 v{ACC+2*i}, 16, v{X+i}
v_and_b32 v{ACC+2*i+1}, 0xffff0000, v{X+i}''')
    stats()
    a(f'''v_mul_f32 v{S1}, 0.5, v{DIS}
s_cmp_lg_u32 s{sW}, 15
s_cbranch_scc1 L_e0w''')
    poll()
    for i in range(2):
        a(f'''buffer_store_dwordx4 v[{X+8+4*i}:{X+11+4*i}], v{SA+i}, s[{sTOUT}:{sTOUT+3}], 0 offen sc1
buffer_store_dwordx4 v[{X+8+4*i}:{X+11+4*i}], v{DA+i}, s[{sTOUT}:{sTOUT+3}], 0 offen sc1''')
    a(f'''L_e0w:
s_barrier''')
    st(4)
    a(f'''s_and_b32 s{sBK}, s2, 7
s_lshl_b32 s{sBK}, s{sBK}, 5
s_lshr_b32 s{sA}, s2, 3
s_add_u32 s{sBK}, s{sBK}, s{sA}
s_lshl_b32 s{sBK}, s{sBK}, 2
s_add_u32 s{sBK}, s{sBK}, {OFFS}
v_lshrrev_b32 v1, 2, v68               ; segment
v_lshlrev_b32 v2, 10, v1
buffer_load_dword v3, v2, s[{sWS}:{sWS+3}], s{sBK} offen sc1
s_mov_b32 s{sEV}, 1
v_mul_u32_u24 v1, {CHSTR}, v1
v_and_b32 v2, 3, v68
v_lshlrev_b32 v2, 2, v2                ; 4*sub
s_waitcnt vmcnt(0)
v_and_b32 v4, 0xffff, v3
v_lshrrev_b32 v3, 16, v3               ; count
v_add_u32 v4, v4, v2
v_lshl_add_u32 v4, v4, 2, v1
v_sub_u32 v3, v3, v2
buffer_load_dwordx4 v[8:11], v4, s[{sWS}:{sWS+3}], 0 offen sc1
v_cmp_lt_i32 vcc, 16, v3
v_mov_b32 v5, {OOB}
v_cndmask_b32 v5, v5, v4, vcc
buffer_load_dwordx4 v[12:15], v5, s[{sWS}:{sWS+3}], 0 offen offset:64 sc1
v_cmp_lt_i32 vcc, 32, v3
v_mov_b32 v6, 1
v_mov_b32 v7, {L_MISC}
s_cbranch_vccz L_p2b
ds_write_b32 v7, v6
L_p2b:''')
    for j in range(8):
        if j%4==0: a(f's_waitcnt vmcnt({1-j//4})')
        a(f'''v_bfe_u32 v0, v{8+j}, 17, 4            ; wave
v_bfe_u32 v1, v{8+j}, 12, 4            ; region
v_lshl_add_u32 v0, v0, 4, v1
v_lshlrev_b32 v0, 2, v0
v_add_u32 v{16+j}, {L_CNT2}, v0
v_cmpx_lt_i32 vcc, {j%4+16*(j//4)}, v3
ds_add_rtn_u32 v{X+j}, v{16+j}, v6''')
    a('s_mov_b64 exec, -1')
    a(f'''s_mov_b32 s{sM}, 0x11111111
s_mov_b32 s{sM+1}, 0x11111111
s_mov_b32 s{sM2}, 0x33333333
s_mov_b32 s{sM2+1}, 0x33333333
s_waitcnt lgkmcnt(0)
s_barrier''')
    st(5)
    a(f'''v_mov_b32 v2, {SYNC}
buffer_load_dwordx2 v[6:7], v2, s[{sWS}:{sWS+3}], s{sXC} offen sc1
s_cmp_lg_u32 s{sW}, 15
s_cbranch_scc1 L_p2a''')
    signal(0,1)
    a(f'''L_p2a:
v_mov_b32 v0, {L_MISC}
ds_read_b32 v1, v0''')
    scan(L_CNT2,58,True)
    a(f'''s_lshl_b32 s{sA}, s{sW}, 2
s_add_u32 s{sA}, s{sA}, 3
v_readlane_b32 s{sU}, v66, s{sA}
v_cmp_lt_u32 vcc, {CAP}, v66
v_readfirstlane_b32 s{sSLOW}, v1
s_or_b32 s{sA}, vcc_lo, vcc_hi
s_or_b32 s{sSLOW}, s{sSLOW}, s{sA}
{'s_mov_b32 s%d, 1'%sSLOW if force_slow else ''}
s_add_u32 s{sU}, s{sU}, 15
s_lshr_b32 s{sU}, s{sU}, 4
s_mov_b32 s{sNB}, {NBAR}
s_cmp_eq_u32 s{sSLOW}, 0
s_cbranch_scc1 L_p2c
s_mov_b32 s{sNB}, 0
s_mov_b32 s{sU}, 4
s_branch L_p2d
L_p2c:
s_waitcnt lgkmcnt(0)''')
    for j in range(8): a(f'v_cmpx_lt_i32 vcc, {j%4+16*(j//4)}, v3\nds_read_b32 v{24+j}, v{16+j} offset:1040')
    a('s_mov_b64 exec, -1')
    def conv(e,ad,col,t):
        a(f'''v_and_b32 v{t}, 0xffc0, v{e}
v_and_b32 v{ad}, 0xffff, v{e}
v_add_u32 v{t}, v{t}, v{ad}
v_and_b32 v{ad}, 0x2000, v{e}
v_lshl_add_u32 v{ad}, v{t}, 7, v{ad}
v_bfe_u32 v{col}, v{e}, 21, 3
v_bfe_u32 v{t}, v{e}, 16, 1
v_lshl_add_u32 v{col}, v{col}, 1, v{t}''')
    a(f's_movk_i32 s{sA}, {WSTR}')
    for j in range(8):
        conv(8+j,0,1,2)
        a(f'''v_bfe_u32 v2, v{8+j}, 17, 4
v_mul_u32_u24 v2, s{sA}, v2
{'s_waitcnt lgkmcnt(0)' if j==0 else ''}
v_add_u32 v4, v{24+j}, v{X+j}
v_add_u32 v5, v2, v4
v_lshl_add_u32 v4, v4, 2, v2
v_cmpx_lt_i32 vcc, {j%4+16*(j//4)}, v3
ds_write_b32 v4, v0 offset:{L_AL}
ds_write_b8 v5, v1 offset:{L_CL}''')
    a('s_mov_b64 exec, -1')
    a(f'''L_p2d:
s_waitcnt vmcnt(0)
v_cmp_gt_u32 s[{sM}:{sM+1}], v6, v7
v_mov_b32 v5, 0x2000
v_cndmask_b32 v5, 0, v5, s[{sM}:{sM+1}]
v_or_b32 v{LO}, v{LO}, v5
v_or_b32 v{LO+1}, v{LO+1}, v5
s_cmp_lg_u32 s{sW}, 15
s_cbranch_scc1 L_p2e''')
    poll()
    a(f'''L_p2e:
s_waitcnt lgkmcnt(0)
s_barrier''')
    st(6)
    a(f'''s_cmp_lg_u32 s2, 255
s_cbranch_scc1 L_hop
v_bfe_u32 v0, v{LANE}, 2, 2
v_and_b32 v1, 3, v{LANE}
v_lshl_add_u32 v0, v0, 3, v1           ; 8*(i>>2)+(i&3)
v_lshrrev_b32 v1, 4, v{LANE}           ; q
s_and_b32 s{sA}, s{sW}, 1
s_lshl_b32 s{sA}, s{sA}, 12            ; s*32 rows*128B
s_and_b32 s{sB}, s{sW}, 4
s_lshl_b32 s{sB}, s{sB}, 3
s_and_b32 s{sC}, s{sW}, 2
s_lshl_b32 s{sC}, s{sC}, 1
s_add_u32 s{sB}, s{sB}, s{sC}
v_lshlrev_b32 v2, 7, v0
v_lshl_add_u32 v2, v1, 4, v2           ; row*128 + q*16
s_cmp_ge_u32 s{sW}, 8
s_cbranch_scc1 L_jw''')
    srd(sT1,12,8192); srd(sT2,14,8192)
    a(f'''s_lshl_b32 s{sB}, s{sB}, 7
buffer_load_dwordx4 v[24:27], v2, s[{sT2}:{sT2+3}], s{sB} offen
buffer_load_dwordx4 v[28:31], v2, s[{sT2}:{sT2+3}], s{sB} offen offset:64
s_mov_b32 s{sC}, {fb(0.125*LOG2E):#x}
s_branch L_jm
L_jw:''')
    srd(sT1,16,8192); srd(sT2,18,8192)
    a(f'''s_lshl_b32 s{sB}, s{sB}, 1
v_lshlrev_b32 v3, 1, v0
v_lshl_add_u32 v3, v1, 10, v3          ; (8q)*128 + col*2
v_add_u32 v4, 4096, v3''')
    for s in range(2):
        for j in range(8):
            a(f'buffer_load_ushort v{X+8*s+j}, v{3+s}, s[{sT2}:{sT2+3}], s{sB} offen offset:{128*j}')
    a('s_waitcnt vmcnt(0)')
    for i in range(8): a(f'v_lshl_or_b32 v{24+i}, v{X+2*i+1}, 16, v{X+2*i}')
    a(f'''s_mov_b32 s{sC}, 1.0
L_jm:
buffer_load_dwordx4 v[8:11], v2, s[{sT1}:{sT1+3}], s{sA} offen
buffer_load_dwordx4 v[12:15], v2, s[{sT1}:{sT1+3}], s{sA} offen offset:64
buffer_load_dwordx4 v[16:19], v2, s[{sT1}:{sT1+3}], s{sA} offen offset:512
buffer_load_dwordx4 v[20:23], v2, s[{sT1}:{sT1+3}], s{sA} offen offset:576
s_lshl_b32 s{sD}, s{sW}, 10
s_add_u32 s{sD}, s{sD}, {WGT}
v_lshlrev_b32 v5, 4, v{LANE}
s_waitcnt vmcnt(0)
v_mfma_f32_16x16x32_bf16 v[{X}:{X+3}], v[8:11], v[24:27], 0
v_mfma_f32_16x16x32_bf16 v[{X+4}:{X+7}], v[16:19], v[24:27], 0
v_mfma_f32_16x16x32_bf16 v[{X}:{X+3}], v[12:15], v[28:31], v[{X}:{X+3}]
v_mfma_f32_16x16x32_bf16 v[{X+4}:{X+7}], v[20:23], v[28:31], v[{X+4}:{X+7}]''')
    for i in range(8): a(f'v_mul_f32 v{X+i}, s{sC}, v{X+i}')
    for i in range(4): a(f'v_cvt_pk_bf16_f32 v{12+i}, v{X+2*i}, v{X+2*i+1}')
    a(f'''buffer_store_dwordx4 v[12:15], v5, s[{sWS}:{sWS+3}], s{sD} offen sc1
s_cmp_ge_u32 s{sW}, 2
s_cbranch_scc1 L_jend''')
    srd(sT1,20,128)
    a(f'''v_lshlrev_b32 v2, 4, v1
s_lshl_b32 s{sA}, s{sW}, 6
buffer_load_dwordx4 v[8:11], v2, s[{sT1}:{sT1+3}], s{sA} offen
v_lshlrev_b32 v3, 1, v{LANE}
buffer_load_ushort v4, v3, s[{sT1}:{sT1+3}], 0 offen
s_mov_b32 s{sM}, 0x11111111
s_mov_b32 s{sM+1}, 0x11111111
s_mov_b32 s{sM2}, 0x22222222
s_mov_b32 s{sM2+1}, 0x22222222
v_mov_b32 v6, 0x3f803f80
v_cndmask_b32 v6, 0, v6, s[{sM}:{sM+1}]
s_add_u32 s{sD}, s{sD}, 16384
s_waitcnt vmcnt(0)''')
    for i in range(4): a(f'v_cndmask_b32 v{8+i}, v6, v{8+i}, s[{sM2}:{sM2+1}]')
    a(f'''buffer_store_dwordx4 v[8:11], v5, s[{sWS}:{sWS+3}], s{sD} offen sc1
v_lshlrev_b32 v4, 16, v4''')
    for m in ('quad_perm:[1,0,3,2]','quad_perm:[2,3,0,1]','row_half_mirror','row_mirror'):
        a(f'v_add_f32_dpp v4, v4, v4 {m} row_mask:0xf bank_mask:0xf')
    allq(4,6)
    a(f'''s_mov_b32 s{sA}, {WGT+18432}
v_lshlrev_b32 v3, 2, v{LANE}
buffer_store_dword v4, v3, s[{sWS}:{sWS+3}], s{sA} offen sc1
L_jend:
s_waitcnt vmcnt(0)''')
    a(f'''L_hop:
s_add_u32 s{sK}, s{sK}, 1
s_add_u32 s{sSI}, s{sSI}, 8
s_add_u32 s{sTOUT}, s{sTOUT}, {TSTR}
s_addc_u32 s{sTOUT+1}, s{sTOUT+1}, 0''')
    for i in range(16): a(f'v_mov_b32 v{ACC+i}, 0')
    a(f'''s_mov_b32 s{sSEG}, 0
s_mov_b32 s{sOFF}, 0
s_mov_b32 s{sCNT}, 0
''')
    st(0)
    a(f'''s_cmp_eq_u32 s{sSLOW}, 0
s_cbranch_scc1 L_gather
L_slow:
s_cmp_lt_u32 s{sOFF}, s{sCNT}
s_cbranch_scc1 L_slow2
s_cmp_ge_u32 s{sSEG}, 256
s_cbranch_scc1 L_gdone
s_lshl_b32 s{sA}, s{sSEG}, 10
v_mov_b32 v16, s{sA}
buffer_load_dword v17, v16, s[{sWS}:{sWS+3}], s{sBK} offen sc1
s_mul_i32 s{sSTART}, s{sSEG}, {CHSTR}
s_add_u32 s{sSEG}, s{sSEG}, 1
s_mov_b32 s{sOFF}, 0
s_waitcnt vmcnt(0)
v_readfirstlane_b32 s{sA}, v17
s_lshr_b32 s{sCNT}, s{sA}, 16
s_and_b32 s{sA}, s{sA}, 0xffff
s_lshl_b32 s{sA}, s{sA}, 2
s_add_u32 s{sSTART}, s{sSTART}, s{sA}
s_branch L_slow
L_slow2:
v_add_u32 v16, s{sOFF}, v{LANE}
v_lshl_add_u32 v17, v16, 2, s{sSTART}
buffer_load_dword v18, v17, s[{sWS}:{sWS+3}], 0 offen sc1
s_add_u32 s{sOFF}, s{sOFF}, 64
v_cmp_gt_u32 s[{sM}:{sM+1}], s{sCNT}, v16
s_waitcnt vmcnt(0)
v_bfe_u32 v19, v18, 17, 4
v_cmp_eq_u32 vcc, s{sW}, v19
s_and_b64 s[{sM}:{sM+1}], s[{sM}:{sM+1}], vcc''')
    conv(18,20,21,22)
    a(f'''v_mov_b32 v22, {OOB}
v_cndmask_b32 v20, v22, v20, s[{sM}:{sM+1}]
v_lshl_add_u32 v22, v{LANE}, 2, s{sRB}
v_add_u32 v23, s{sRB}, v{LANE}
ds_write_b32 v22, v20 offset:{L_AL}
ds_write_b8 v23, v21 offset:{L_CL}
s_waitcnt lgkmcnt(0)''')
    def issue(b,e):
        a(f'''v_xor_b32 v{DA}, v{e}, v{LO}
v_xor_b32 v{DA+1}, v{e+1}, v{LO+1}
s_add_u32 m0, s{sRB}, {2048*b}
buffer_load_dwordx4 v{DA}, s[{sTIN}:{sTIN+3}], 0 offen sc1 lds
s_add_u32 m0, s{sRB}, {2048*b+1024}
buffer_load_dwordx4 v{DA+1}, s[{sTIN}:{sTIN+3}], 0 offen sc1 lds''')
    a(f'''L_gather:
{'s_setprio 3' if prio else ''}
v_lshrrev_b32 v{AP}, 3, v{LANE}
v_lshl_add_u32 v{AP}, v{AP}, 3, s{sRB}
v_lshrrev_b32 v{CP}, 4, v{LANE}
v_lshl_add_u32 v{CP}, v{CP}, 2, s{sRB}''')
    for b in range(R): a(f'ds_read_b64 v[{X+2*b}:{X+2*b+1}], v{AP} offset:{L_AL+64*b}')
    a(f'''ds_read_b64 v[{EN}:{EN+1}], v{AP} offset:{L_AL+64*R}
s_mov_b32 s{sREM}, s{sU}
s_mov_b32 s{sBA}, {R*(NBAR+1)}
s_mov_b32 s{sBD}, 0
s_waitcnt lgkmcnt(0)''')
    for b in range(R):
        a(f'''s_cmp_le_u32 s{sU}, {b}
s_cbranch_scc1 L_gl''')
        issue(b,X+2*b)
    a('L_gl:')
    for b in range(R):
        a(f'''s_cmp_ge_u32 s{sREM}, {R}
s_cbranch_scc1 L_gw{b}
s_cmp_eq_u32 s{sREM}, 0
s_cbranch_scc1 L_gend''')
        for m in range(R-1,1,-1):
            a(f'''s_waitcnt vmcnt({2*(m-1)})
s_cmp_eq_u32 s{sREM}, {m}
s_cbranch_scc1 L_gw{b}''')
        a(f'''s_waitcnt vmcnt(0)
L_gw{b}:
s_waitcnt vmcnt({2*(R-1)})''')
        a(f'ds_read_b32 v{COLW}, v{CP} offset:{L_CL+16*b}')
        for t in range(4 if 'tr' not in skip else 0): a(f'ds_read_b64_tr_b16 v[{AOP+2*t}:{AOP+2*t+1}], v{TRA+t} offset:{2048*b}')
        a(f'''s_waitcnt lgkmcnt(4)
v_xad_u32 v{TMP}, v{COLW}, v{NOTN}, s{sK1}
v_and_b32 v{B1}, s{sK2}, v{TMP}
v_lshlrev_b32 v{TMP}, 8, v{TMP}
v_and_b32 v{B0}, s{sK2}, v{TMP}
s_cmp_le_u32 s{sREM}, {R}
s_waitcnt lgkmcnt(0)
s_cbranch_scc1 L_gn{b}''')
        issue(b,EN)
        a(f'''ds_read_b64 v[{EN}:{EN+1}], v{AP} offset:{L_AL+64*(R+1+b)}
s_add_u32 s{sBA}, s{sBA}, {NBAR+1}''')
        if prio:
            a(f'''s_lshl_b32 s{sA}, s{sBA}, 2
s_setprio 3
s_cmp_lt_u32 s{sA}, s{sU}
s_cbranch_scc1 L_gn{b}
s_setprio 2
s_sub_u32 s{sA}, s{sA}, s{sU}
s_cmp_lt_u32 s{sA}, s{sU}
s_cbranch_scc1 L_gn{b}
s_setprio 1
s_sub_u32 s{sA}, s{sA}, s{sU}
s_cmp_lt_u32 s{sA}, s{sU}
s_cbranch_scc1 L_gn{b}
s_setprio 0''')
        a(f'L_gn{b}:')
        for t in range(4 if 'mfma' not in skip else 0): a(f'v_mfma_f32_16x16x16_bf16 v[{ACC+4*t}:{ACC+4*t+3}], v[{AOP+2*t}:{AOP+2*t+1}], v[{B0}:{B1}], v[{ACC+4*t}:{ACC+4*t+3}]')
        a(f's_sub_u32 s{sREM}, s{sREM}, 1')
        if NBAR:
            a(f'''L_gb{b}:
s_cmp_lt_u32 s{sBA}, s{sU}
s_cbranch_scc1 L_gc{b}
s_cmp_ge_u32 s{sBD}, s{sNB}
s_cbranch_scc1 L_gc{b}
s_sub_u32 s{sBA}, s{sBA}, s{sU}
s_add_u32 s{sBD}, s{sBD}, 1
s_barrier
{'s_setprio 3' if prio else ''}
s_branch L_gb{b}
L_gc{b}:''')
    a(f'''v_add_u32 v{AP}, {64*R}, v{AP}
v_add_u32 v{CP}, {16*R}, v{CP}
s_branch L_gl
L_gend:
s_waitcnt lgkmcnt(0)
s_cmp_ge_u32 s{sBD}, s{sNB}
s_cbranch_scc1 L_gend2
s_add_u32 s{sBD}, s{sBD}, 1
s_barrier
s_branch L_gend
L_gend2:
s_cmp_lg_u32 s{sSLOW}, 0
s_cbranch_scc1 L_slow
L_gdone:
{'s_setprio 0' if prio else ''}''')
    st(1)
    a(f'''s_cmp_eq_u32 s{sK}, 7
s_cbranch_scc1 L_final''')
    if sfirst: a('s_setprio 1')
    gstore()
    if sfirst: a('s_setprio 0')
    st(2)
    a(f'''s_add_u32 s{sEV}, s{sEV}, 1
s_add_u32 s{sTIN}, s{sTIN}, {TSTR}
s_addc_u32 s{sTIN+1}, s{sTIN+1}, 0
s_cmp_lg_u32 s{sW}, 15
s_cbranch_scc1 L_hA''')
    stats()
    a('''s_waitcnt vmcnt(0)
s_barrier''')
    signal()
    st(4)
    poll()
    a(f'''s_branch L_job
L_hA:''')
    if sfirst: stats()
    a('s_waitcnt vmcnt(0)')
    st(3)
    a('s_barrier')
    if not sfirst: stats()
    st(4)
    a(f'''L_job:
s_cmp_lg_u32 s{sK}, 2
s_cbranch_scc1 L_jpf0
s_lshl_b32 s{sA}, s{sW}, 10
s_add_u32 m0, s{sA}, {L_W}
s_add_u32 s{sA}, s{sA}, {WGT}
v_lshlrev_b32 v3, 4, v{LANE}
buffer_load_dwordx4 v3, s[{sWS}:{sWS+3}], s{sA} offen sc1 lds
s_cmp_ge_u32 s{sW}, 3
s_cbranch_scc1 L_hB
s_add_u32 m0, m0, 16384
s_add_u32 s{sA}, s{sA}, 16384
buffer_load_dwordx4 v3, s[{sWS}:{sWS+3}], s{sA} offen sc1 lds
s_branch L_hB
L_jpf0:
s_cmp_lg_u32 s{sW}, 14
s_cbranch_scc1 L_hB
L_jpf:
s_cmp_lg_u32 s{sK}, 6
s_cbranch_scc1 L_hB
s_getpc_b64 s[94:95]
L_pc2:
v_lshlrev_b32 v3, 7, v{LANE}
v_min_u32 v4, L_end-L_pc2, v3
global_load_dword v4, v4, s[94:95]
v_add_u32 v3, 8192, v3
v_min_u32 v3, L_end-L_pc2, v3
global_load_dword v5, v3, s[94:95]
s_waitcnt vmcnt(0)''')
    a(f'''L_hB:
s_waitcnt lgkmcnt(0)''')
    st(5)
    a('''s_barrier
s_branch L_hop''')
    a('L_final:')
    stats()
    st(2)
    if stamp:
        a(f'''s_lshl_b32 s{sA}, s2, 4
s_add_u32 s{sA}, s{sA}, s{sW}
s_lshl_b32 s{sA}, s{sA}, 8
s_add_u32 s88, s{sA}, {STAMP}
v_lshlrev_b32 v16, 2, v{LANE}
buffer_store_dword v{TS}, v16, s[{sWS}:{sWS+3}], s88 offen
s_waitcnt vmcnt(0)''')
        if dbg:
            a(f'''s_cmp_lg_u32 s2, 100
s_cbranch_scc1 L_nodbg
s_cmp_lg_u32 s{sW}, 15
s_cbranch_scc1 L_nodbg
v_readlane_b32 s89, v{TS}, 0''')
            for i,l in enumerate((2,3,4,5,8,9,16,24,32,40,48,56,57)):
                a(f'''v_readlane_b32 s{sA}, v{TS}, {l}
s_sub_u32 s{sA}, s{sA}, s89
v_mov_b32 v16, s{sA}
v_mov_b32 v17, {4*(i+1)}
buffer_store_dword v16, v17, s[{sDB}:{sDB+3}], 0 offen''')
            a('L_nodbg:')
    def fst(i):
        if stamp: a(f'''s_memrealtime s[80:81]
s_waitcnt lgkmcnt(0)
s_mov_b32 s{82+i}, s80''')
    U=32; SAa=48; SBb=52; Y=56; P=62
    a(f'''v_lshlrev_b32 v{Y}, 4, v{LANE}
v_add_u32 v{Y}, {L_W}, v{Y}''')
    for f in range(8): a(f'ds_read_b128 v[{4*f}:{4*f+3}], v{Y} offset:{1024*f}')
    LN=TG+1; SG=TG
    a(f'''v_mov_b32 v{LN}, v{LANE}
v_lshrrev_b32 v{Y+1}, 5, v{LN}           ; q>>1
v_bfe_u32 v{Y+2}, v{LN}, 3, 1            ; b
v_xor_b32 v{Y+2}, v{Y+2}, v{Y+1}         ; invalid
v_and_b32 v{Y+3}, 7, v{LN}
v_lshl_add_u32 v{Y+3}, v{Y+1}, 3, v{Y+3}
v_lshlrev_b32 v{Y+3}, 3, v{Y+3}
v_lshl_add_u32 v{Y+3}, v{Y+2}, 7, v{Y+3}
v_add_u32 v{SG}, s{sRB}, v{Y+3}
s_waitcnt lgkmcnt(0)''')
    def scores(p,S):
        for s in range(2):
            for t in range(4):
                c='0' if s==0 else f'v[{U+4*t}:{U+4*t+3}]'
                a(f'v_mfma_f32_16x16x32_bf16 v[{U+4*t}:{U+4*t+3}], v[{8*t+4*s}:{8*t+4*s+3}], v[{T(p)+4*s}:{T(p)+4*s+3}], {c}')
        for i in range(8): a(f'v_cvt_pk_bf16_f32 v{U+i}, v{U+2*i}, v{U+2*i+1}')
        a(f'''v_mfma_f32_16x16x32_bf16 v[{S}:{S+3}], v[{T(p)}:{T(p)+3}], v[{U}:{U+3}], 0
v_mfma_f32_16x16x32_bf16 v[{S}:{S+3}], v[{T(p)+4}:{T(p)+7}], v[{U+4}:{U+7}], v[{S}:{S+3}]''')
    for g in range(4):
        if g==3:
            a(f'''s_cmp_ge_u32 s{sW}, 2
s_cbranch_scc1 L_f2''')
        a(f'ds_read_b32 v{Y+4}, v{SG} offset:{L_ST+256*g}')
        scores(2*g,SAa)
        if g<3:
            scores(2*g+1,SBb)
            for r in range(4):
                a(f'''v_mov_b32_dpp v{SAa+r}, v{SBb+r} row_ror:8 row_mask:0x3 bank_mask:0xc
v_mov_b32_dpp v{SAa+r}, v{SBb+r} row_ror:8 row_mask:0xc bank_mask:0x3''')
        S=SAa
        a(f'''v_max3_f32 v{Y}, v{S}, v{S+1}, v{S+2}
v_max_f32 v{Y}, v{Y}, v{S+3}
v_mov_b32 v{Y+1}, v{Y}
v_permlane16_swap_b32 v{Y+1}, v{Y}
v_max_f32 v{Y}, v{Y}, v{Y+1}''')
        for r in range(4): a(f'v_sub_f32 v{S+r}, v{S+r}, v{Y}')
        for r in range(4): a(f'v_exp_f32 v{S+r}, v{S+r}')
        a(f'''v_add_f32 v{Y}, v{S}, v{S+1}
v_add_f32 v{Y+1}, v{S+2}, v{S+3}
v_add_f32 v{Y}, v{Y}, v{Y+1}
v_mov_b32 v{Y+1}, v{Y}
v_permlane16_swap_b32 v{Y+1}, v{Y}
v_add_f32 v{Y}, v{Y}, v{Y+1}
s_waitcnt lgkmcnt(0)
v_mul_f32 v{Y}, v{Y}, v{Y+4}
v_rcp_f32 v{Y}, v{Y}''')
        for r in range(4): a(f'v_mul_f32 v{S+r}, v{S+r}, v{Y}')
        a(f'''v_cvt_pk_bf16_f32 v{P+2*g}, v{S}, v{S+1}
v_cvt_pk_bf16_f32 v{P+2*g+1}, v{S+2}, v{S+3}''')
    a('L_f2:')
    fst(0)
    OA=32; ZT=48; VM=56; OW=57; OT=58; GW=59; SAD=60; LN2=61
    LO_IMG=0; LG=4608; LS=LG+7*256; LWB=LS+7*128; LC=LWB+256
    assert LC+64<=L_ST
    a(f'''v_mov_b32 v{LN2}, v{LN}
v_lshlrev_b32 v{SAD}, 4, v{LN2}
v_add_u32 v{OA}, {L_W+8192}, v{SAD}
v_add_u32 v{SAD}, {L_SA}, v{SAD}''')
    for f in range(8): a(f'ds_read_b128 v[{4*f}:{4*f+3}], v{OA} offset:{1024*f}')
    a(f'''v_lshrrev_b32 v{OA+1}, 5, v{LN2}
v_bfe_u32 v{OA+2}, v{LN2}, 3, 1
v_xor_b32 v{OA+2}, v{OA+2}, v{OA+1}
v_add_u32 v{VM}, -1, v{OA+2}             ; valid ? ~0 : 0
v_and_b32 v{OA+1}, 15, v{LN2}            ; n
v_lshrrev_b32 v{OA+2}, 4, v{LN2}         ; q
v_mul_u32_u24 v{OA+3}, 144, v{OA+1}
v_lshl_add_u32 v{OA+3}, v{OA+2}, 4, v{OA+3}
v_add_u32 v{OW}, s{sRB}, v{OA+3}
v_lshrrev_b32 v{OA+3}, 2, v{LN2}         ; row 4q+r
v_mul_u32_u24 v{OA+3}, 144, v{OA+3}
v_and_b32 v{OA+4}, 3, v{LN2}
v_lshl_add_u32 v{OA+3}, v{OA+4}, 3, v{OA+3}
v_add_u32 v{OT}, s{sRB}, v{OA+3}
v_lshl_add_u32 v{GW}, v{OA+1}, 3, s{sRB}
v_add_u32 v{GW}, {LG}, v{GW}
v_lshlrev_b32 v{OA+2}, 2, v{OA+2}
v_sub_u32 v{OA+1}, v{OA+1}, v{OA+2}       ; m-4q
v_mov_b32 v{OA+3}, 0x3f80
v_mov_b32 v{OA+4}, 0x3f800000''')
    for h in range(2):
        a(f'''v_cmp_eq_u32 s[{sM}:{sM+1}], {2*h}, v{OA+1}
v_cmp_eq_u32 s[{sM2}:{sM2+1}], {2*h+1}, v{OA+1}
v_cndmask_b32 v{ZT+2+h}, 0, v{OA+3}, s[{sM}:{sM+1}]
v_cndmask_b32 v{ZT+2+h}, v{ZT+2+h}, v{OA+4}, s[{sM2}:{sM2+1}]
v_mov_b32 v{ZT+6+h}, v{ZT+2+h}''')
    a(f'''s_mov_b32 s{sM}, 0x00f0000f
s_mov_b32 s{sM+1}, 0xf0000f00
s_waitcnt lgkmcnt(0)''')
    def o2reg(p,t):
        g=p//2
        return (TG+16*g+4*t+2*(p&1)) if p<6 else (TG+48+2*t)
    for p in range(7):
        if p==6:
            a(f'''s_cmp_ge_u32 s{sW}, 2
s_cbranch_scc1 L_f3''')
        tp=T(p); pm=P+2*(p//2)
        for s in range(2):
            for t in range(4):
                c='0' if s==0 else f'v[{OA+4*t}:{OA+4*t+3}]'
                a(f'v_mfma_f32_16x16x32_bf16 v[{OA+4*t}:{OA+4*t+3}], v[{tp+4*s}:{tp+4*s+3}], v[{8*t+4*s}:{8*t+4*s+3}], {c}')
        for t in range(4):
            z=ZT+4*(t&1); b=tp-2+2*t
            if t==0:
                for h in range(2):
                    if p&1: a(f'v_and_b32_dpp v{b+h}, v{pm+h}, v{VM} row_ror:8 row_mask:0xf bank_mask:0xf')
                    else: a(f'v_and_b32 v{b+h}, v{pm+h}, v{VM}')
            else: a(f'v_mov_b64 v[{b}:{b+1}], v[{b-2}:{b-1}]')
            a(f'''v_cvt_pk_bf16_f32 v{z}, v{OA+4*t}, v{OA+4*t+1}
v_cvt_pk_bf16_f32 v{z+1}, v{OA+4*t+2}, v{OA+4*t+3}
v_mfma_f32_16x16x32_bf16 v[{OA+4*t}:{OA+4*t+3}], v[{z}:{z+3}], v[{b}:{b+3}], 0''')
        ob=tp-2
        for i in range(8): a(f'v_cvt_pk_bf16_f32 v{ob+i}, v{OA+2*i}, v{OA+2*i+1}')
        img=LO_IMG+2304*(p&1)
        a(f'''ds_read_b128 v[{OA}:{OA+3}], v{SAD}
ds_read_b128 v[{OA+4}:{OA+7}], v{SAD} offset:1024
ds_write_b128 v{OW}, v[{ob}:{ob+3}] offset:{img}
ds_write_b128 v{OW}, v[{ob+4}:{ob+7}] offset:{img+64}
v_mfma_f32_16x16x32_bf16 v[{OA+8}:{OA+11}], v[{ob}:{ob+3}], v[{ob}:{ob+3}], 0
v_mfma_f32_16x16x32_bf16 v[{OA+8}:{OA+11}], v[{ob+4}:{ob+7}], v[{ob+4}:{ob+7}], v[{OA+8}:{OA+11}]
s_waitcnt lgkmcnt(2)
v_mfma_f32_16x16x32_bf16 v[{OA+12}:{OA+15}], v[{OA}:{OA+3}], v[{ob}:{ob+3}], 0
v_mfma_f32_16x16x32_bf16 v[{OA+12}:{OA+15}], v[{OA+4}:{OA+7}], v[{ob+4}:{ob+7}], v[{OA+12}:{OA+15}]
s_mov_b64 exec, s[{sM}:{sM+1}]
ds_write2_b64 v{GW}, v[{OA+8}:{OA+9}], v[{OA+10}:{OA+11}] offset0:{(256*p)//8} offset1:{(256*p+128)//8}''')
        a(f'''ds_write_b64 v{GW}, v[{OA+12}:{OA+13}] offset:{7*256+128*p}
s_mov_b64 exec, -1''')
        if p&1 or p==6:
            a('s_waitcnt lgkmcnt(2)')
            for pp in ((p-1,p) if p<6 else (6,)):
                for t in range(4):
                    r=o2reg(pp,t)
                    a(f'ds_read_b64_tr_b16 v[{r}:{r+1}], v{OT} offset:{LO_IMG+2304*(pp&1)+32*t}')
        a('s_waitcnt lgkmcnt(0)')
    a('L_f3:')
    fst(1)
    F=0; K=16
    a(f'''v_lshl_add_u32 v{K}, v{LN2}, 3, s{sRB}          ; lane*8
v_lshrrev_b32 v{K+1}, 4, v{LN2}                 ; q
v_bfe_u32 v{K+2}, v{LN2}, 1, 1
v_add_u32 v{K+2}, v{K+2}, v{K+1}
v_lshl_add_u32 v{K+2}, v{K+2}, 7, v{K}
v_and_b32 v{K+3}, 1, v{LN2}
v_lshl_add_u32 v{K+2}, v{K+3}, 2, v{K+2}
v_mov_b32 v{K+3}, {L_SH+2048}
ds_read_b32 v{K+3}, v{K+3}''')
    Rr=lambda h:24+10*h
    for h in range(2):
        r=Rr(h)
        a(f'''ds_read_b32 v{r}, v{K+2} offset:{LG+1024*h}
ds_read_b64 v[{r+2}:{r+3}], v{K} offset:{LS+512*h}
ds_read_b64 v[{r+4}:{r+5}], v{K} offset:{L_ST+512*h}''')
    a(f'''v_lshl_add_u32 v{K+4}, v{LN2}, 1, s{sRB}        ; w write
v_lshrrev_b32 v{K+5}, 3, v{LN2}
v_lshl_add_u32 v{K+5}, v{K+5}, 2, s{sRB}        ; c write
v_lshl_add_u32 v{K+6}, v{K+1}, 3, s{sRB}        ; w read
v_and_b32 v{K+7}, 15, v{LN2}
v_lshl_add_u32 v{K+7}, v{K+7}, 2, s{sRB}        ; c read
s_waitcnt lgkmcnt(0)''')
    def both(txt):
        for ln in txt.strip().split('\n'):
            for h in range(2):
                r=Rr(h)
                a(ln.format(q=r,u=r+1,s=r+2,d=r+3,g=r+4,m=r+5,a=r+6,b=r+7,c=r+8,h=h,wo=LWB+128*h,co=LC+32*h))
    red=lambda op,x: '\n'.join(f'{op}_dpp v{{{x}}}, v{{{x}}}, v{{{x}}} {m} row_mask:0xf bank_mask:0xf' for m in('quad_perm:[1,0,3,2]','quad_perm:[2,3,0,1]','row_half_mirror'))
    both(f'''v_mul_f32 v{{s}}, {fb(1/64):#x}, v{{s}}
v_mul_f32 v{{q}}, {fb(1/64):#x}, v{{q}}
v_fma_f32 v{{q}}, -v{{s}}, v{{s}}, v{{q}}
v_max_f32 v{{q}}, 0, v{{q}}
v_mul_f32 v{{a}}, v{{g}}, v{{g}}
v_mov_b32 v{{b}}, {fb(1e-5):#x}
v_fmac_f32 v{{b}}, v{{a}}, v{{q}}
v_rsq_f32 v{{b}}, v{{b}}
v_fma_f32 v{{d}}, -v{{s}}, v{K+3}, v{{d}}
v_mul_f32 v{{a}}, {fb(LOG2E):#x}, v{{g}}
v_mul_f32 v{{d}}, v{{d}}, v{{a}}
v_mul_f32 v{{d}}, v{{d}}, v{{b}}
v_mov_b32 v{{a}}, v{{d}}
{red('v_max_f32','a')}
v_sub_f32 v{{d}}, v{{d}}, v{{a}}
v_exp_f32 v{{d}}, v{{d}}
v_mov_b32 v{{a}}, v{{d}}
v_mul_f32 v{{m}}, v{{m}}, v{{d}}
{red('v_add_f32','a')}
{red('v_add_f32','m')}
v_rcp_f32 v{{a}}, v{{a}}
v_mul_f32 v{{d}}, v{{d}}, v{{g}}
v_mul_f32 v{{d}}, v{{d}}, v{{a}}
v_mul_f32 v{{m}}, v{{m}}, v{{a}}
v_cvt_pk_bf16_f32 v{{d}}, v{{d}}, v{{d}}
ds_write_b16 v{K+4}, v{{d}} offset:{{wo}}
ds_write_b32 v{K+5}, v{{m}} offset:{{co}}''')
    WT=24; CI=40
    a('s_waitcnt lgkmcnt(0)')
    a(f'ds_read_b32 v{CI}, v{K+7} offset:{LC}')
    for p in range(7): a(f'ds_read_b64 v[{WT+2*p}:{WT+2*p+1}], v{K+6} offset:{LWB+32*p}')
    OAD=44
    srd(sT1,22,N*128)
    a(f'''v_and_b32 v{K}, 15, v{LN2}
v_mul_u32_u24 v{K}, 144, v{K}
v_add_u32 v{K}, v{K}, v{K+6}
v_lshrrev_b32 v{K+2}, 3, v{LN2}                 ; g
v_and_b32 v{K+3}, 7, v{LN2}
v_mul_u32_u24 v{K+1}, 144, v{K+2}
v_lshl_add_u32 v{K+1}, v{K+3}, 4, v{K+1}
v_add_u32 v{K+1}, s{sRB}, v{K+1}
v_lshrrev_b32 v{K+4}, 1, v{K+2}
v_lshlrev_b32 v{K+4}, 5, v{K+4}
v_and_b32 v{K+5}, 1, v{K+2}
s_lshl_b32 s{sB}, s{sW}, 1
v_add3_u32 v{K+4}, v{K+4}, v{K+5}, s{sB}         ; r
v_cmp_gt_u32 vcc, {NPW-128}, v{K+4}
s_mul_i32 s{sD}, s2, {NPW}
v_add_u32 v{K+4}, s{sD}, v{K+4}
v_lshlrev_b32 v{K+4}, 7, v{K+4}
v_lshl_add_u32 v{OAD}, v{K+3}, 4, v{K+4}
v_add_u32 v{OAD+1}, {128*128}, v{OAD}
v_mov_b32 v{K+4}, {OOB}
v_cndmask_b32 v{OAD+1}, v{K+4}, v{OAD+1}, vcc
s_waitcnt lgkmcnt(0)
v_mov_b32 v{CI+1}, v{CI}
v_mov_b32 v{CI+2}, v{CI}
v_mov_b32 v{CI+3}, v{CI}''')
    for g in range(4):
        if g==3:
            a(f'''s_cmp_ge_u32 s{sW}, 2
s_cbranch_scc1 L_f4''')
        for p in ((2*g,2*g+1) if g<3 else (6,)):
            m=sM if p%2==0 else sM2
            a(f'''s_mov_b32 s{m}, {0x00010001<<(2*p):#x}
s_mov_b32 s{m+1}, {0x00020002<<(2*p):#x}
v_cndmask_b32 v{WT+2*p}, 0, v{WT+2*p}, s[{m}:{m+1}]
v_cndmask_b32 v{WT+2*p+1}, 0, v{WT+2*p+1}, s[{m}:{m+1}]''')
        for t in range(4):
            c=f'v[{CI}:{CI+3}]' if g==0 else f'v[{F+4*t}:{F+4*t+3}]'
            r=o2reg(2*g,t)
            if g<3: a(f'v_mfma_f32_16x16x32_bf16 v[{F+4*t}:{F+4*t+3}], v[{r}:{r+3}], v[{WT+4*g}:{WT+4*g+3}], {c}')
            else: a(f'v_mfma_f32_16x16x16_bf16 v[{F+4*t}:{F+4*t+3}], v[{r}:{r+1}], v[{WT+12}:{WT+13}], {c}')
    a('L_f4:')
    for t in range(4):
        a(f'''v_cvt_pk_bf16_f32 v{48+2*t}, v{F+4*t}, v{F+4*t+1}
v_cvt_pk_bf16_f32 v{49+2*t}, v{F+4*t+2}, v{F+4*t+3}
ds_write_b64 v{K}, v[{48+2*t}:{49+2*t}] offset:{32*t}''')
    a(f'''s_waitcnt lgkmcnt(0)
ds_read_b128 v[24:27], v{K+1}
ds_read_b128 v[28:31], v{K+1} offset:1152
s_waitcnt lgkmcnt(1)
buffer_store_dwordx4 v[24:27], v{OAD}, s[{sT1}:{sT1+3}], 0 offen
s_waitcnt lgkmcnt(0)
buffer_store_dwordx4 v[28:31], v{OAD+1}, s[{sT1}:{sT1+3}], 0 offen''')
    if stamp:
        fst(2)
        a('s_waitcnt vmcnt(0)')
        fst(3)
        a(f'''v_mov_b32 v0, s82
v_mov_b32 v1, s83
v_mov_b32 v2, s84
v_mov_b32 v3, s85
v_mov_b32 v4, {59*4}
s_mov_b64 exec, 1
buffer_store_dwordx4 v[0:3], v4, s[{sWS}:{sWS+3}], s88 offen''')
        if dbg:
            a(f'''s_cmp_lg_u32 s2, 100
s_cbranch_scc1 L_end
s_cmp_lg_u32 s{sW}, 15
s_cbranch_scc1 L_end
s_sub_u32 s82, s82, s89
s_sub_u32 s85, s85, s89
v_mov_b32 v0, s82
v_mov_b32 v1, s85
v_mov_b32 v4, 56
buffer_store_dwordx2 v[0:1], v4, s[{sDB}:{sDB+3}], 0 offen''')
    a('L_end:\ns_endpgm')
    body=a.pad(verbose=True)
    ref=open('standalone__hybrid_graph_tf_nagphormer__graph.s.ref').read().split('\n')
    head=[l for l in ref if l.startswith(';') and '@launch' not in l]
    out='\n'.join(head)+f'''
; @launch grid=(256,1,1) block=(1024,1,1) lds={LDS_BYTES}
.amdgcn_target "amdgcn-amd-amdhsa--gfx950"
.text
.globl {KNAME}
.p2align 8
.type {KNAME},@function
{KNAME}:
'''+body+f'''.section .rodata,"a"
.p2align 6
.amdhsa_kernel {KNAME}
  .amdhsa_next_free_vgpr 128
  .amdhsa_next_free_sgpr 100
  .amdhsa_accum_offset 128
  .amdhsa_group_segment_fixed_size 0
  .amdhsa_kernarg_size 96
  .amdhsa_user_sgpr_count 2
  .amdhsa_user_sgpr_kernarg_segment_ptr 1
  .amdhsa_system_sgpr_workgroup_id_x 1
  .amdhsa_float_denorm_mode_32 3
.end_amdhsa_kernel
'''
    return out
if __name__=='__main__':
    kw=eval('dict('+(sys.argv[2] if len(sys.argv)>2 else '')+')')
    open(sys.argv[1] if len(sys.argv)>1 else 'standalone__hybrid_graph_tf_nagphormer__graph.s','w').write(gen(**kw))
```

```python
import sys, struct
sys.path.insert(0,'gen')
from asmlib import Asm
N=50000; E=800000; NPW=196; CH=3125
KNAME='standalone__hybrid_graph_tf_nagphormer__graph_kernel'
TSTR=16<<20
MISC=112<<20
CHSTR=12544
OFFS=4<<20
SYNC=5<<20
STAMP=6<<20
WGT=(5<<20)+(512<<10)
PROBE=14<<20
WSTR=8960
L_RING=0; L_AL=6144; CAP=352; L_CL=L_AL+CAP*4; L_ST=7936
L_W=16*WSTR
L_CNT1=L_W+13312; L_BASE1=L_CNT1+1040
L_SH=L_W+16384
L_CNT2=L_SH; L_BASE2=L_SH+1040; L_SA=L_SH; L_MISC=L_SH+2304
LDS_BYTES=L_SH+4096
assert LDS_BYTES==163840 and L_CL+CAP<=L_ST and L_ST+1024<=WSTR
fb=lambda x: struct.unpack('<I',struct.pack('<f',x))[0]
LOG2E=1.4426950408889634
OOB=0x80000000

def gen(R=3, NBAR=6, stamp=False, force_slow=False, spinmax=1<<18, reps=2, sfirst=False, prio=0, skip='', dbg=False, enc=None, nopf=False):
    a=Asm()
    ACC=0; AOP=16; B0=24; B1=25; COLW=26; TMP=27; EN=28; DA=30; TRA=32; LO=36; AP=38; CP=39; NOTN=40
    S1=41; DIS=42; SA=43; SWA=45; SRA=46; TRD=47; STA=48; LANE=49; X=50; TS=69
    TG=70; T0=72
    T=lambda p:T0+8*p
    sWG=2; sW=3; sTIN=28; sTOUT=32; sWS=36; sT1=40; sT2=44
    sU=48; sREM=49; sBA=50; sBD=51; sRB=52; sK=53; sSLOW=54; sNB=55; sA=56; sB=57; sC=58; sD=59
    sK1=60; sK2=61; sSPIN=62; sEV=63; sM=64
    sP0=66; sP1=68; sPM=70; sSEG=71; sOFF=72; sCNT=73; sSTART=74; sBK=75; sSI=76; sXC=77; sDB=96; sPA=86; sPM2=87; sM2=78
    nst=[0]
    def st(i):
        if enc:
            for j,pt in enumerate(enc[:2]):
                if pt is not None and pt%8==i:
                    nst[0]+=1
                    a(f'''s_cmp_lg_u32 s{sSI}, {pt-i}
s_cbranch_scc1 L_enc{nst[0]}
s_memrealtime s[{82+2*j}:{83+2*j}]
s_waitcnt lgkmcnt(0)
L_enc{nst[0]}:''')
        if stamp:
            a(f'''s_memrealtime s[80:81]
s_waitcnt lgkmcnt(0)
s_add_u32 m0, s{sSI}, {i}
s_nop 0
v_writelane_b32 v{TS}, s80, m0''')
    def srd(d,lo,nbytes):
        a(f'''s_mov_b32 s{d}, s{lo}
s_mov_b32 s{d+1}, s{lo+1}
s_mov_b32 s{d+2}, {nbytes}
s_mov_b32 s{d+3}, 0x20000''')
    uid=[0]
    def L(x):
        uid[0]+=1; return f'L_{x}_{uid[0]}'
    def spin(lab):
        a(f'''s_sleep 1
s_add_u32 s{sSPIN}, s{sSPIN}, 1
s_cmp_lt_u32 s{sSPIN}, {spinmax}
s_cbranch_scc1 {lab}
s_endpgm''')
    a(f'''s_cmp_ge_u32 s2, 256
s_cbranch_scc1 L_end
s_load_dwordx16 s[4:19], s[0:1], 0
s_load_dwordx8 s[20:27], s[0:1], 64
v_lshrrev_b32 v1, 6, v0
v_and_b32 v{LANE}, 63, v0
v_readfirstlane_b32 s{sW}, v1
v_lshlrev_b32 v2, 4, v0
s_mul_i32 s{sA}, s2, {CH*4}
s_mov_b32 s{sSI}, 0
s_mov_b32 s{sSPIN}, 0
v_mov_b32 v{TS}, 0
s_mul_i32 s{sRB}, s{sW}, {WSTR}
s_cmp_lg_u32 s{sW}, {13 if not nopf else 99}
s_cbranch_scc1 L_nopf
s_getpc_b64 s[94:95]
L_pc1:
v_lshlrev_b32 v3, 7, v{LANE}
global_load_dword v4, v3, s[94:95]
v_add_u32 v3, 8192, v3
v_min_u32 v3, L_final-L_pc1, v3
global_load_dword v5, v3, s[94:95]
L_nopf:
v_mov_b32 v16, 0
v_mov_b32 v17, 0
v_lshlrev_b32 v22, 2, v0
v_add_u32 v22, {L_CNT1}, v22
v_lshrrev_b32 v18, 3, v{LANE}          ; g
v_lshrrev_b32 v14, 1, v18
v_lshlrev_b32 v14, 5, v14
v_and_b32 v15, 1, v18
s_lshl_b32 s{sB}, s{sW}, 1
v_add3_u32 v14, v14, v15, s{sB}        ; r
v_cmp_gt_u32 vcc, {NPW-128}, v14
s_mul_i32 s{sD}, s2, {NPW}
v_add_u32 v14, s{sD}, v14
v_add_u32 v15, 128, v14
v_mov_b32 v19, 0x01000000
v_cndmask_b32 v15, v19, v15, vcc
v_and_b32 v19, 7, v{LANE}
v_lshlrev_b32 v19, 4, v19
v_lshl_add_u32 v20, v14, 7, v19
v_lshl_add_u32 v21, v15, 7, v19
v_lshlrev_b32 v24, 1, v14
v_lshlrev_b32 v25, 1, v15
s_waitcnt lgkmcnt(0)
s_add_u32 s26, s26, 0x1fffff
s_addc_u32 s27, s27, 0
s_and_b32 s26, s26, 0xffe00000
s_add_u32 s{sWS}, s26, {MISC}
s_addc_u32 s{sWS+1}, s27, 0
s_mov_b32 s{sWS+2}, {8<<20}
s_mov_b32 s{sWS+3}, 0x20000''')
    srd(sT1,6,E*4); srd(sT2,8,E*4); srd(sDB,24,256)
    a(f'''s_cmp_ge_u32 s{sW}, 13
s_cbranch_scc1 L_noedge
buffer_load_dwordx4 v[4:7], v2, s[{sT2}:{sT2+3}], s{sA} offen
buffer_load_dwordx4 v[8:11], v2, s[{sT1}:{sT1+3}], s{sA} offen
s_cmp_ge_u32 s{sW}, 4
s_cbranch_scc1 L_b1
ds_write_b32 v22, v16
ds_write_b32 v22, v16 offset:{L_CNT2-L_CNT1}
ds_write_b32 v22, v16 offset:{L_MISC-L_CNT1}
s_branch L_b1
L_noedge:
s_cmp_lg_u32 s{sW}, 15
s_cbranch_scc1 L_b1
buffer_load_dword v4, v16, s[{sDB}:{sDB+3}], 0 offen offset:128 sc1
s_cmp_ge_u32 s2, 8
s_cbranch_scc1 L_b1
v_lshlrev_b32 v3, 4, v{LANE}
v_mov_b32 v8, 0
v_mov_b32 v9, 0
v_mov_b32 v10, 0
v_mov_b32 v11, 0
s_lshl_b32 s{sA}, s2, 10
s_add_u32 s{sA}, s{sA}, {SYNC}
buffer_store_dwordx4 v[8:11], v3, s[{sWS}:{sWS+3}], s{sA} offen sc1
s_add_u32 s{sA}, s{sA}, 8192
buffer_store_dwordx4 v[8:11], v3, s[{sWS}:{sWS+3}], s{sA} offen sc1
s_add_u32 s{sA}, s{sA}, 8192
buffer_store_dwordx4 v[8:11], v3, s[{sWS}:{sWS+3}], s{sA} offen sc1
L_b1:''')
    st(0)
    srd(sT1,4,N*128); srd(sT2,10,N*2)
    a(f'''s_add_u32 s90, s26, {PROBE}
s_addc_u32 s91, s27, 0
s_add_u32 s92, s26, {MISC+SYNC}
s_addc_u32 s93, s27, 0
s_waitcnt lgkmcnt(0)
s_barrier
s_cmp_lg_u32 s{sW}, 15
s_cbranch_scc1 L_xl
s_cmp_lg_u32 s2, 0
s_cbranch_scc1 L_xl
s_waitcnt vmcnt(0)
v_mov_b32 v3, 1
s_mov_b64 exec, 1
buffer_store_dword v3, v16, s[{sDB}:{sDB+3}], 0 offen sc1
s_mov_b64 exec, -1
L_xl:
buffer_load_dwordx4 v[{X}:{X+3}], v20, s[{sT1}:{sT1+3}], 0 offen
buffer_load_dwordx4 v[{X+4}:{X+7}], v21, s[{sT1}:{sT1+3}], 0 offen
buffer_load_ushort v26, v24, s[{sT2}:{sT2+3}], 0 offen
buffer_load_ushort v27, v25, s[{sT2}:{sT2+3}], 0 offen''')
    st(1)
    srd(sTIN,26,TSTR); srd(sTOUT,26,TSTR)
    for i in range(2):
        a(f'''v_and_b32 v20, 0x0100ffc0, v{14+i}
v_and_b32 v21, 0xffff, v{14+i}
v_add_u32 v20, v20, v21
v_and_b32 v21, 0x2000, v{14+i}
v_lshl_add_u32 v20, v20, 7, v21
v_add_u32 v{SA+i}, v20, v19''')
    a(f'''v_and_b32 v12, 15, v{LANE}            ; n
v_lshrrev_b32 v13, 4, v{LANE}          ; q''')
    a(f'''v_mov_b32 v16, 0
v_mov_b32 v18, {OOB}
v_mov_b32 v19, {OOB}
v_mov_b32 v20, {OOB}
v_mov_b32 v21, {OOB}
v_lshl_add_u32 v23, v{LANE}, 4, s{sRB}
ds_write_b128 v23, v[18:21] offset:{L_AL}
ds_write_b128 v23, v[18:21] offset:{L_AL+CAP*4-1024}
v_lshl_add_u32 v23, v{LANE}, 2, s{sRB}
ds_write_b32 v23, v16 offset:{L_CL}
ds_write_b32 v23, v16 offset:{L_CL+CAP-256}''')
    a(f'''; tr-read addresses: lane=(q, r, c): g=2q+(r&1), i=r>>1, swz=((g>>1)&1)*2+i
v_bfe_u32 v16, v{LANE}, 2, 1           ; r&1
v_bfe_u32 v17, v{LANE}, 3, 1           ; i
v_lshl_add_u32 v16, v13, 1, v16        ; g
v_lshlrev_b32 v16, 7, v16
v_lshl_add_u32 v16, v17, 10, v16
v_and_b32 v18, 1, v13
v_lshl_add_u32 v18, v18, 1, v17        ; swz
v_lshl_add_u32 v16, v18, 5, v16
v_and_b32 v18, 3, v{LANE}
v_lshl_add_u32 v16, v18, 3, v16
v_add_u32 v{TRA}, s{sRB}, v16
v_xor_b32 v{TRA+1}, 32, v{TRA}
v_xor_b32 v{TRA+2}, 64, v{TRA}
v_xor_b32 v{TRA+3}, 96, v{TRA}
v_and_b32 v16, 7, v{LANE}
v_bfe_u32 v17, v{LANE}, 4, 1           ; (g>>1)&1, g=lane>>3
v_lshlrev_b32 v17, 2, v17
v_xor_b32 v17, v17, v16
v_lshlrev_b32 v{LO}, 4, v17
v_xor_b32 v{LO+1}, 32, v{LO}
; ~(n*0x01010101)
s_mov_b32 s{sA}, 0x01010101
v_mul_lo_u32 v{NOTN}, v12, s{sA}
v_not_b32 v{NOTN}, v{NOTN}
s_mov_b32 s{sK1}, 0x40404041
s_mov_b32 s{sK2}, 0x40004000
v_mul_u32_u24 v17, 144, v12
v_lshl_add_u32 v17, v13, 3, v17
v_add_u32 v{SWA}, s{sRB}, v17
v_lshrrev_b32 v18, 3, v{LANE}          ; g
v_mul_u32_u24 v17, 144, v18
v_lshl_add_u32 v17, v16, 4, v17
v_add_u32 v{SRA}, s{sRB}, v17
v_bfe_u32 v17, v{LANE}, 3, 1
v_mul_u32_u24 v17, 144, v17
v_lshl_add_u32 v17, v13, 4, v17
v_add_u32 v{TRD}, s{sRB}, v17
v_lshl_add_u32 v{STA}, v12, 6, s{sRB}   ; col*64 (+k*8)
v_mov_b32 v{S1}, 1.0
s_cmp_lg_u32 s{sW}, 14
s_cbranch_scc1 L_np0
s_lshr_b32 s{sPA}, s2, 6
s_lshl_b32 s{sPA}, s{sPA}, 14
s_and_b32 s{sB}, s2, 63
s_lshl_b32 s{sB}, s{sB}, 7
s_add_u32 s{sPA}, s{sPA}, s{sB}
s_add_u32 s{sB}, s{sPA}, 0x2000
s_mov_b32 s{sC}, 1
s_mov_b32 s{sD}, 1
s_atomic_add s{sC}, s[90:91], s{sPA} glc
s_atomic_add s{sD}, s[90:91], s{sB} glc
s_barrier
s_barrier
s_branch L_g0
L_np0:
s_cmp_ge_u32 s{sW}, 13
s_cbranch_scc1 L_p1_b2''')
    a(f'''s_mov_b32 s{sA}, 85599
v_lshlrev_b32 v2, 2, v0
v_mov_b32 v3, 1
s_waitcnt vmcnt(5)''')
    for j in range(4):
        a(f'''v_mul_u32_u24 v16, s{sA}, v{4+j}
v_lshrrev_b32 v16, 24, v16            ; owner
v_mul_u32_u24 v17, {NPW}, v16
v_sub_u32 v{4+j}, v{4+j}, v17          ; r
v_and_b32 v17, 7, v16
v_lshrrev_b32 v16, 3, v16
v_lshl_add_u32 v16, v17, 5, v16
v_lshlrev_b32 v16, 2, v16
v_add_u32 v{12+j}, {L_CNT1}, v16
{'v_cmpx_gt_u32 vcc, %d, v2'%(CH-j) if j<2 else ''}
ds_add_rtn_u32 v{20+j}, v{12+j}, v3''')
    a('s_mov_b64 exec, -1')
    a('s_waitcnt vmcnt(4)')
    st(7)
    for j in range(4): a(f'v_lshl_or_b32 v{8+j}, v{4+j}, 16, v{8+j}')
    a(f'''L_p1_b2:
s_waitcnt lgkmcnt(0)
s_barrier''')
    st(2)
    def scan(cnt, c, quad):
        a(f'''v_lshlrev_b32 v{c+9}, 4, v{LANE}
v_add_u32 v{c+9}, {cnt}, v{c+9}
ds_read_b128 v[{c}:{c+3}], v{c+9}
s_waitcnt lgkmcnt(0)
v_add_u32 v{c+6}, v{c}, v{c+1}
v_add_u32 v{c+7}, v{c+6}, v{c+2}
v_add_u32 v{c+4}, v{c+7}, v{c+3}
v_mov_b32 v{c+8}, v{c+4}''')
        if quad:
            a(f'''v_mov_b32 v{c+5}, 0
v_mov_b32_dpp v{c+5}, v{c+8} quad_perm:[0,0,1,2] row_mask:0xf bank_mask:0xf
v_cndmask_b32 v{c+5}, v{c+5}, 0, s[{sM}:{sM+1}]
v_add_u32 v{c+8}, v{c+8}, v{c+5}
v_mov_b32_dpp v{c+5}, v{c+8} quad_perm:[0,0,0,1] row_mask:0xf bank_mask:0xf
v_cndmask_b32 v{c+5}, v{c+5}, 0, s[{sM2}:{sM2+1}]
v_add_u32 v{c+8}, v{c+8}, v{c+5}''')
        else:
            for m in ('row_shr:1 row_mask:0xf','row_shr:2 row_mask:0xf','row_shr:4 row_mask:0xf','row_shr:8 row_mask:0xf','row_bcast:15 row_mask:0xa','row_bcast:31 row_mask:0xc'):
                a(f'v_add_u32_dpp v{c+8}, v{c+8}, v{c+8} {m} bank_mask:0xf')
        a(f'''v_sub_u32 v{c+4}, v{c+8}, v{c+4}
v_add_u32 v{c+5}, v{c+4}, v{c}
v_add_u32 v{c+6}, v{c+4}, v{c+6}
v_add_u32 v{c+7}, v{c+4}, v{c+7}
ds_write_b128 v{c+9}, v[{c+4}:{c+7}] offset:1040''')
    a(f'''s_cmp_ge_u32 s{sW}, 14
s_cbranch_scc1 L_p1_b3''')
    scan(L_CNT1,58,False)
    a(f'''s_cmp_lg_u32 s{sW}, 13
s_cbranch_scc1 L_p1_sc''')
    for j in range(4): a(f'v_lshl_or_b32 v{58+j}, v{58+j}, 16, v{62+j}')
    a(f'''s_lshl_b32 s{sA}, s2, 10
s_add_u32 s{sA}, s{sA}, {OFFS}
v_lshlrev_b32 v16, 4, v{LANE}
buffer_store_dwordx4 v[58:61], v16, s[{sWS}:{sWS+3}], s{sA} offen sc1
s_branch L_p1_b3
L_p1_sc:
s_waitcnt lgkmcnt(0)''')
    for j in range(4):
        if j<2: a(f'v_cmpx_gt_u32 vcc, {CH-j}, v2')
        a(f'ds_read_b32 v{16+j}, v{12+j} offset:1040')
    a('s_mov_b64 exec, -1')
    for j in range(4):
        a(f'''s_waitcnt lgkmcnt(3)
v_add_lshl_u32 v{16+j}, v{16+j}, v{20+j}, 2
v_add_u32 v{16+j}, {L_W}, v{16+j}
{'v_cmpx_gt_u32 vcc, %d, v2'%(CH-j) if j<2 else ''}
ds_write_b32 v{16+j}, v{8+j}''')
    a('s_mov_b64 exec, -1')
    a(f'''L_p1_b3:
s_waitcnt lgkmcnt(0)
s_barrier
s_cmp_lt_u32 s{sW}, 13
s_cbranch_scc1 L_p1_st
s_cmp_lg_u32 s{sW}, 15
s_cbranch_scc1 L_g0
v_mov_b32 v16, 0
L_w15p:
buffer_load_dword v17, v16, s[{sDB}:{sDB+3}], 0 offen sc1
s_waitcnt vmcnt(0)
v_readfirstlane_b32 s{sA}, v17
s_cmp_lg_u32 s{sA}, 0
s_cbranch_scc1 L_g0''')
    spin('L_w15p')
    a(f'''L_p1_st:
v_lshlrev_b32 v2, 4, v0
v_add_u32 v3, {L_W}, v2
ds_read_b128 v[4:7], v3
s_mul_i32 s{sA}, s2, {CHSTR}
v_cmp_gt_u32 vcc, {CHSTR}, v2
v_mov_b32 v3, {OOB}
v_cndmask_b32 v2, v3, v2, vcc
s_waitcnt lgkmcnt(0)
buffer_store_dwordx4 v[4:7], v2, s[{sWS}:{sWS+3}], s{sA} offen sc1
s_waitcnt vmcnt(1)
s_branch L_g0b
L_g0:
s_waitcnt vmcnt(0)
L_g0b:
v_mov_b32 v68, v0
v_xor_b32 v{DA}, 0x2000, v{SA}
v_xor_b32 v{DA+1}, 0x2000, v{SA+1}''')
    for i in range(2):
        a(f'v_lshlrev_b32 v{26+i}, 16, v{26+i}')
        for c in range(4):
            a(f'''v_lshlrev_b32 v8, 16, v{X+4*i+c}
v_and_b32 v9, 0xffff0000, v{X+4*i+c}
v_mul_f32 v8, v8, v{26+i}
v_mul_f32 v9, v9, v{26+i}
v_cvt_pk_bf16_f32 v{X+8+4*i+c}, v8, v9''')
        a(f'''s_cmp_eq_u32 s{sW}, 15
s_cbranch_scc1 L_g0s{i}
buffer_store_dwordx4 v[{X+8+4*i}:{X+11+4*i}], v{SA+i}, s[{sTOUT}:{sTOUT+3}], 0 offen sc1
buffer_store_dwordx4 v[{X+8+4*i}:{X+11+4*i}], v{DA+i}, s[{sTOUT}:{sTOUT+3}], 0 offen sc1
L_g0s{i}:''')
    a(f'''s_waitcnt vmcnt(4)
s_barrier''')
    st(3)
    def signal(t0=16,t1=17):
        l=L('ns')
        a(f'''s_lshl_b32 s{sA}, s{sEV}, 10
s_and_b32 s{sB}, s2, 7
s_lshl_b32 s{sB}, s{sB}, 7
s_add_u32 s{sA}, s{sA}, s{sB}
s_mov_b32 s{sB}, 1
s_waitcnt lgkmcnt(0)
s_atomic_add s{sB}, s[92:93], s{sA} glc
s_add_u32 s{sC}, s{sA}, {SYNC+8192}
v_mov_b32 v{t0}, 0
v_mov_b32 v{t1}, 1
s_waitcnt lgkmcnt(0)
s_cmp_lg_u32 s{sB}, 31
s_cbranch_scc1 {l}
s_mov_b64 exec, 1
buffer_store_dword v{t1}, v{t0}, s[{sWS}:{sWS+3}], s{sC} offen sc1
s_mov_b64 exec, -1
{l}:''')
    def poll():
        l=L('pl'); d=L('pd')
        a(f'''s_lshl_b32 s{sA}, s{sEV}, 10
s_add_u32 s{sA}, s{sA}, {SYNC+8192}
v_lshlrev_b32 v16, 7, v{LANE}
s_mov_b64 exec, 0xff
{l}:
buffer_load_dword v17, v16, s[{sWS}:{sWS+3}], s{sA} offen sc1
s_waitcnt vmcnt(0)
v_cmp_eq_u32 vcc, 0, v17
s_cbranch_vccz {d}''')
        spin(l)
        a(f'''{d}:
s_mov_b64 exec, -1''')
    def gstore():
        a(f'v_mul_f32 v{TMP}, v{S1}, v{DIS}')
        for t in range(4):
            for r in range(4): a(f'v_mul_f32 v{X+r}, v{TMP}, v{ACC+4*t+r}')
            a(f'''v_cvt_pk_bf16_f32 v{AOP+2*t}, v{X}, v{X+1}
v_cvt_pk_bf16_f32 v{AOP+2*t+1}, v{X+2}, v{X+3}
ds_write_b64 v{SWA}, v[{AOP+2*t}:{AOP+2*t+1}] offset:{32*t}''')
        a(f'''v_xor_b32 v{DA}, 0x2000, v{SA}
v_xor_b32 v{DA+1}, 0x2000, v{SA+1}
s_waitcnt lgkmcnt(0)
ds_read_b128 v[{X+8}:{X+11}], v{SRA}
ds_read_b128 v[{X+12}:{X+15}], v{SRA} offset:1152
s_waitcnt lgkmcnt(1)
buffer_store_dwordx4 v[{X+8}:{X+11}], v{SA}, s[{sTOUT}:{sTOUT+3}], 0 offen sc1
buffer_store_dwordx4 v[{X+8}:{X+11}], v{DA}, s[{sTOUT}:{sTOUT+3}], 0 offen sc1
s_waitcnt lgkmcnt(0)
buffer_store_dwordx4 v[{X+12}:{X+15}], v{SA+1}, s[{sTOUT}:{sTOUT+3}], 0 offen sc1
buffer_store_dwordx4 v[{X+12}:{X+15}], v{DA+1}, s[{sTOUT}:{sTOUT+3}], 0 offen sc1''')
    def allq(r,t):
        a(f'''v_mov_b32 v{t}, v{r}
v_permlane16_swap_b32 v{t}, v{r}
v_add_f32 v{r}, v{r}, v{t}
v_mov_b32 v{t}, v{r}
v_permlane32_swap_b32 v{t}, v{r}
v_add_f32 v{r}, v{r}, v{t}''')
    def stats():
        for i in range(2): a(f'v_add_f32 v{X+i}, v{ACC+i}, v{ACC+2+i}')
        for i in range(2): a(f'v_mul_f32 v{X+4+i}, v{ACC+i}, v{ACC+i}')
        for i in range(2,16):
            if i>=4: a(f'v_add_f32 v{X+i%2}, v{X+i%2}, v{ACC+i}')
            a(f'v_fmac_f32 v{X+4+i%2}, v{ACC+i}, v{ACC+i}')
        a(f'''v_add_f32 v{X}, v{X}, v{X+1}
v_add_f32 v{X+4}, v{X+4}, v{X+5}
v_mul_f32 v{X+5}, v{S1}, v{S1}
v_permlane16_swap_b32 v{X}, v{X+4}
v_add_f32 v{X}, v{X}, v{X+4}
v_mov_b32 v{X+4}, v{X}
v_mov_b32 v{X+6}, {fb(1e-5):#x}
v_permlane32_swap_b32 v{X}, v{X+4}
v_add_f32 v{X}, v{X}, v{X+4}
v_mul_f32 v{X}, {fb(1/64):#x}, v{X}
v_mov_b32 v{X+4}, v{X}
s_lshl_b32 s{sA}, s{sK}, 3
v_add_u32 v{X+7}, s{sA}, v{STA}
v_permlane16_swap_b32 v{X}, v{X+4}
v_fma_f32 v{X+4}, -v{X}, v{X}, v{X+4}
v_max_f32 v{X+4}, 0, v{X+4}
v_fmac_f32 v{X+6}, v{X+5}, v{X+4}      ; var+eps
v_rsq_f32 v{X+5}, v{X+6}
v_mul_f32 v{X+3}, v{X}, v{S1}          ; mu
v_mul_f32 v{X+2}, v{X+6}, v{X+5}       ; sigma
v_mul_f32 v{X+4}, v{X+5}, v{S1}
v_mul_f32 v{X+5}, v{X+5}, v{X+3}
ds_write_b64 v{X+7}, v[{X+2}:{X+3}] offset:{L_ST}''')
        for t in range(4):
            for r in range(4): a(f'v_fma_f32 v{ACC+4*t+r}, v{X+4}, v{ACC+4*t+r}, -v{X+5}')
            a(f'''v_cvt_pk_bf16_f32 v{AOP+2*t}, v{ACC+4*t}, v{ACC+4*t+1}
v_cvt_pk_bf16_f32 v{AOP+2*t+1}, v{ACC+4*t+2}, v{ACC+4*t+3}
ds_write_b64 v{SWA}, v[{AOP+2*t}:{AOP+2*t+1}] offset:{2304+32*t}''')
        a(f'''s_lshl_b32 s{sA}, 0x01010101, s{sK}
s_mov_b32 exec_lo, s{sA}
s_mov_b32 exec_hi, s{sA}
s_waitcnt lgkmcnt(0)''')
        for p in range(7):
            for s in range(2): a(f'ds_read_b128 v[{T(p)+4*s}:{T(p)+4*s+3}], v{TRD} offset:{2304+288*p+64*s}')
        a(f'''s_mov_b64 exec, -1
s_waitcnt lgkmcnt(0)''')
    a(f'''s_mov_b32 s{sEV}, 0
s_mov_b32 s{sK}, 0
s_cmp_lg_u32 s{sW}, 15
s_cbranch_scc1 L_e0''')
    signal()
    a(f'''L_e0:
s_getreg_b32 s{sXC}, hwreg(HW_REG_XCC_ID, 0, 3)
s_lshl_b32 s{sXC}, s{sXC}, 7
s_add_u32 s{sXC}, s{sXC}, 16384
s_cmp_lg_u32 s{sW}, 14
s_cbranch_scc1 L_e1
; wave 14: timed memory-side round trips to copy 1 / copy 0, alternating; publish the best per die
s_setprio 3
s_waitcnt lgkmcnt(0)
s_mov_b32 s{sC}, 0
s_mov_b32 s{sPM}, 0
s_mov_b32 s{sPM2}, 0
L_pr:
s_mov_b32 s{sB}, 1
s_memtime s[{sP0}:{sP0+1}]
s_waitcnt lgkmcnt(0)
s_atomic_add s{sB}, s[90:91], s{sPA} glc
s_waitcnt lgkmcnt(0)
s_memtime s[{sP1}:{sP1+1}]
s_waitcnt lgkmcnt(0)
s_sub_u32 s{sB}, s{sP0}, s{sP1}
{('s_sub_u32 s80, 0, s%d'%sB+chr(10)+'s_lshl_b32 s%d, s%d, 3'%(sD,sC)+chr(10)+'s_add_u32 m0, s%d, 15'%sD+chr(10)+'s_nop 0'+chr(10)+'v_writelane_b32 v%d, s80, m0'%TS) if stamp else ''}
s_max_u32 s{sB}, s{sPM}, s{sB}
s_mov_b32 s{sPM}, s{sPM2}
s_mov_b32 s{sPM2}, s{sB}
s_xor_b32 s{sPA}, s{sPA}, 0x2000
s_add_u32 s{sC}, s{sC}, 1
s_cmp_lt_u32 s{sC}, {2*reps}
s_cbranch_scc1 L_pr
s_add_u32 s{sB}, s{sXC}, 4
s_atomic_umax s{sPM}, s[92:93], s{sXC} glc
s_atomic_umax s{sPM2}, s[92:93], s{sB} glc
s_setprio 0
L_e1:
ds_write_b128 v{SRA}, v[{X}:{X+3}]
ds_write_b128 v{SRA}, v[{X+4}:{X+7}] offset:1152
v_lshrrev_b32 v8, 3, v{LANE}
v_lshl_add_u32 v8, v8, 2, s{sRB}
ds_write2_b32 v8, v26, v27 offset0:{4608//4-1024} offset1:{4608//4-1024+8}
v_and_b32 v9, 15, v{LANE}
v_lshl_add_u32 v9, v9, 2, s{sRB}
s_waitcnt lgkmcnt(0)'''.replace('v_lshl_add_u32 v8, v8, 2, s%d'%sRB,'v_lshl_add_u32 v8, v8, 2, s%d\nv_add_u32 v8, 4096, v8'%sRB))
    for t in range(4): a(f'ds_read_b64 v[{X+2*t}:{X+2*t+1}], v{SWA} offset:{32*t}')
    a(f'''ds_read_b32 v{DIS}, v9 offset:4608
s_waitcnt lgkmcnt(0)''')
    for i in range(8):
        a(f'''v_lshlrev_b32 v{ACC+2*i}, 16, v{X+i}
v_and_b32 v{ACC+2*i+1}, 0xffff0000, v{X+i}''')
    stats()
    a(f'''v_mul_f32 v{S1}, 0.5, v{DIS}
s_cmp_lg_u32 s{sW}, 15
s_cbranch_scc1 L_e0w''')
    poll()
    for i in range(2):
        a(f'''buffer_store_dwordx4 v[{X+8+4*i}:{X+11+4*i}], v{SA+i}, s[{sTOUT}:{sTOUT+3}], 0 offen sc1
buffer_store_dwordx4 v[{X+8+4*i}:{X+11+4*i}], v{DA+i}, s[{sTOUT}:{sTOUT+3}], 0 offen sc1''')
    a(f'''L_e0w:
s_barrier''')
    st(4)
    a(f'''s_and_b32 s{sBK}, s2, 7
s_lshl_b32 s{sBK}, s{sBK}, 5
s_lshr_b32 s{sA}, s2, 3
s_add_u32 s{sBK}, s{sBK}, s{sA}
s_lshl_b32 s{sBK}, s{sBK}, 2
s_add_u32 s{sBK}, s{sBK}, {OFFS}
v_lshrrev_b32 v1, 2, v68               ; segment
v_lshlrev_b32 v2, 10, v1
buffer_load_dword v3, v2, s[{sWS}:{sWS+3}], s{sBK} offen sc1
s_mov_b32 s{sEV}, 1
v_mul_u32_u24 v1, {CHSTR}, v1
v_and_b32 v2, 3, v68
v_lshlrev_b32 v2, 2, v2                ; 4*sub
s_waitcnt vmcnt(0)
v_and_b32 v4, 0xffff, v3
v_lshrrev_b32 v3, 16, v3               ; count
v_add_u32 v4, v4, v2
v_lshl_add_u32 v4, v4, 2, v1
v_sub_u32 v3, v3, v2
buffer_load_dwordx4 v[8:11], v4, s[{sWS}:{sWS+3}], 0 offen sc1
v_cmp_lt_i32 vcc, 16, v3
v_mov_b32 v5, {OOB}
v_cndmask_b32 v5, v5, v4, vcc
buffer_load_dwordx4 v[12:15], v5, s[{sWS}:{sWS+3}], 0 offen offset:64 sc1
v_cmp_lt_i32 vcc, 32, v3
v_mov_b32 v6, 1
v_mov_b32 v7, {L_MISC}
s_cbranch_vccz L_p2b
ds_write_b32 v7, v6
L_p2b:''')
    for j in range(8):
        if j%4==0: a(f's_waitcnt vmcnt({1-j//4})')
        a(f'''v_bfe_u32 v0, v{8+j}, 17, 4            ; wave
v_bfe_u32 v1, v{8+j}, 12, 4            ; region
v_lshl_add_u32 v0, v0, 4, v1
v_lshlrev_b32 v0, 2, v0
v_add_u32 v{16+j}, {L_CNT2}, v0
v_cmpx_lt_i32 vcc, {j%4+16*(j//4)}, v3
ds_add_rtn_u32 v{X+j}, v{16+j}, v6''')
    a('s_mov_b64 exec, -1')
    a(f'''s_mov_b32 s{sM}, 0x11111111
s_mov_b32 s{sM+1}, 0x11111111
s_mov_b32 s{sM2}, 0x33333333
s_mov_b32 s{sM2+1}, 0x33333333
s_waitcnt lgkmcnt(0)
s_barrier''')
    st(5)
    a(f'''v_mov_b32 v2, {SYNC}
buffer_load_dwordx2 v[6:7], v2, s[{sWS}:{sWS+3}], s{sXC} offen sc1
s_cmp_lg_u32 s{sW}, 15
s_cbranch_scc1 L_p2a''')
    signal(0,1)
    a(f'''L_p2a:
v_mov_b32 v0, {L_MISC}
ds_read_b32 v1, v0''')
    scan(L_CNT2,58,True)
    a(f'''s_lshl_b32 s{sA}, s{sW}, 2
s_add_u32 s{sA}, s{sA}, 3
v_readlane_b32 s{sU}, v66, s{sA}
v_cmp_lt_u32 vcc, {CAP}, v66
v_readfirstlane_b32 s{sSLOW}, v1
s_or_b32 s{sA}, vcc_lo, vcc_hi
s_or_b32 s{sSLOW}, s{sSLOW}, s{sA}
{'s_mov_b32 s%d, 1'%sSLOW if force_slow else ''}
s_add_u32 s{sU}, s{sU}, 15
s_lshr_b32 s{sU}, s{sU}, 4
s_mov_b32 s{sNB}, {NBAR}
s_cmp_eq_u32 s{sSLOW}, 0
s_cbranch_scc1 L_p2c
s_mov_b32 s{sNB}, 0
s_mov_b32 s{sU}, 4
s_branch L_p2d
L_p2c:
s_waitcnt lgkmcnt(0)''')
    for j in range(8): a(f'v_cmpx_lt_i32 vcc, {j%4+16*(j//4)}, v3\nds_read_b32 v{24+j}, v{16+j} offset:1040')
    a('s_mov_b64 exec, -1')
    def conv(e,ad,col,t):
        a(f'''v_and_b32 v{t}, 0xffc0, v{e}
v_and_b32 v{ad}, 0xffff, v{e}
v_add_u32 v{t}, v{t}, v{ad}
v_and_b32 v{ad}, 0x2000, v{e}
v_lshl_add_u32 v{ad}, v{t}, 7, v{ad}
v_bfe_u32 v{col}, v{e}, 21, 3
v_bfe_u32 v{t}, v{e}, 16, 1
v_lshl_add_u32 v{col}, v{col}, 1, v{t}''')
    a(f's_movk_i32 s{sA}, {WSTR}')
    for j in range(8):
        conv(8+j,0,1,2)
        a(f'''v_bfe_u32 v2, v{8+j}, 17, 4
v_mul_u32_u24 v2, s{sA}, v2
{'s_waitcnt lgkmcnt(0)' if j==0 else ''}
v_add_u32 v4, v{24+j}, v{X+j}
v_add_u32 v5, v2, v4
v_lshl_add_u32 v4, v4, 2, v2
v_cmpx_lt_i32 vcc, {j%4+16*(j//4)}, v3
ds_write_b32 v4, v0 offset:{L_AL}
ds_write_b8 v5, v1 offset:{L_CL}''')
    a('s_mov_b64 exec, -1')
    a(f'''L_p2d:
s_waitcnt vmcnt(0)
v_cmp_gt_u32 s[{sM}:{sM+1}], v6, v7
v_mov_b32 v5, 0x2000
v_cndmask_b32 v5, 0, v5, s[{sM}:{sM+1}]
v_or_b32 v{LO}, v{LO}, v5
v_or_b32 v{LO+1}, v{LO+1}, v5
s_cmp_lg_u32 s{sW}, 15
s_cbranch_scc1 L_p2e''')
    poll()
    a(f'''L_p2e:
s_waitcnt lgkmcnt(0)
s_barrier''')
    st(6)
    a(f'''s_cmp_lg_u32 s2, 255
s_cbranch_scc1 L_hop
v_bfe_u32 v0, v{LANE}, 2, 2
v_and_b32 v1, 3, v{LANE}
v_lshl_add_u32 v0, v0, 3, v1           ; 8*(i>>2)+(i&3)
v_lshrrev_b32 v1, 4, v{LANE}           ; q
s_and_b32 s{sA}, s{sW}, 1
s_lshl_b32 s{sA}, s{sA}, 12            ; s*32 rows*128B
s_and_b32 s{sB}, s{sW}, 4
s_lshl_b32 s{sB}, s{sB}, 3
s_and_b32 s{sC}, s{sW}, 2
s_lshl_b32 s{sC}, s{sC}, 1
s_add_u32 s{sB}, s{sB}, s{sC}
v_lshlrev_b32 v2, 7, v0
v_lshl_add_u32 v2, v1, 4, v2           ; row*128 + q*16
s_cmp_ge_u32 s{sW}, 8
s_cbranch_scc1 L_jw''')
    srd(sT1,12,8192); srd(sT2,14,8192)
    a(f'''s_lshl_b32 s{sB}, s{sB}, 7
buffer_load_dwordx4 v[24:27], v2, s[{sT2}:{sT2+3}], s{sB} offen
buffer_load_dwordx4 v[28:31], v2, s[{sT2}:{sT2+3}], s{sB} offen offset:64
s_mov_b32 s{sC}, {fb(0.125*LOG2E):#x}
s_branch L_jm
L_jw:''')
    srd(sT1,16,8192); srd(sT2,18,8192)
    a(f'''s_lshl_b32 s{sB}, s{sB}, 1
v_lshlrev_b32 v3, 1, v0
v_lshl_add_u32 v3, v1, 10, v3          ; (8q)*128 + col*2
v_add_u32 v4, 4096, v3''')
    for s in range(2):
        for j in range(8):
            a(f'buffer_load_ushort v{X+8*s+j}, v{3+s}, s[{sT2}:{sT2+3}], s{sB} offen offset:{128*j}')
    a('s_waitcnt vmcnt(0)')
    for i in range(8): a(f'v_lshl_or_b32 v{24+i}, v{X+2*i+1}, 16, v{X+2*i}')
    a(f'''s_mov_b32 s{sC}, 1.0
L_jm:
buffer_load_dwordx4 v[8:11], v2, s[{sT1}:{sT1+3}], s{sA} offen
buffer_load_dwordx4 v[12:15], v2, s[{sT1}:{sT1+3}], s{sA} offen offset:64
buffer_load_dwordx4 v[16:19], v2, s[{sT1}:{sT1+3}], s{sA} offen offset:512
buffer_load_dwordx4 v[20:23], v2, s[{sT1}:{sT1+3}], s{sA} offen offset:576
s_lshl_b32 s{sD}, s{sW}, 10
s_add_u32 s{sD}, s{sD}, {WGT}
v_lshlrev_b32 v5, 4, v{LANE}
s_waitcnt vmcnt(0)
v_mfma_f32_16x16x32_bf16 v[{X}:{X+3}], v[8:11], v[24:27], 0
v_mfma_f32_16x16x32_bf16 v[{X+4}:{X+7}], v[16:19], v[24:27], 0
v_mfma_f32_16x16x32_bf16 v[{X}:{X+3}], v[12:15], v[28:31], v[{X}:{X+3}]
v_mfma_f32_16x16x32_bf16 v[{X+4}:{X+7}], v[20:23], v[28:31], v[{X+4}:{X+7}]''')
    for i in range(8): a(f'v_mul_f32 v{X+i}, s{sC}, v{X+i}')
    for i in range(4): a(f'v_cvt_pk_bf16_f32 v{12+i}, v{X+2*i}, v{X+2*i+1}')
    a(f'''buffer_store_dwordx4 v[12:15], v5, s[{sWS}:{sWS+3}], s{sD} offen sc1
s_cmp_ge_u32 s{sW}, 2
s_cbranch_scc1 L_jend''')
    srd(sT1,20,128)
    a(f'''v_lshlrev_b32 v2, 4, v1
s_lshl_b32 s{sA}, s{sW}, 6
buffer_load_dwordx4 v[8:11], v2, s[{sT1}:{sT1+3}], s{sA} offen
v_lshlrev_b32 v3, 1, v{LANE}
buffer_load_ushort v4, v3, s[{sT1}:{sT1+3}], 0 offen
s_mov_b32 s{sM}, 0x11111111
s_mov_b32 s{sM+1}, 0x11111111
s_mov_b32 s{sM2}, 0x22222222
s_mov_b32 s{sM2+1}, 0x22222222
v_mov_b32 v6, 0x3f803f80
v_cndmask_b32 v6, 0, v6, s[{sM}:{sM+1}]
s_add_u32 s{sD}, s{sD}, 16384
s_waitcnt vmcnt(0)''')
    for i in range(4): a(f'v_cndmask_b32 v{8+i}, v6, v{8+i}, s[{sM2}:{sM2+1}]')
    a(f'''buffer_store_dwordx4 v[8:11], v5, s[{sWS}:{sWS+3}], s{sD} offen sc1
v_lshlrev_b32 v4, 16, v4''')
    for m in ('quad_perm:[1,0,3,2]','quad_perm:[2,3,0,1]','row_half_mirror','row_mirror'):
        a(f'v_add_f32_dpp v4, v4, v4 {m} row_mask:0xf bank_mask:0xf')
    allq(4,6)
    a(f'''s_mov_b32 s{sA}, {WGT+18432}
v_lshlrev_b32 v3, 2, v{LANE}
buffer_store_dword v4, v3, s[{sWS}:{sWS+3}], s{sA} offen sc1
L_jend:
s_waitcnt vmcnt(0)''')
    a(f'''L_hop:
s_add_u32 s{sK}, s{sK}, 1
s_add_u32 s{sSI}, s{sSI}, 8
s_add_u32 s{sTOUT}, s{sTOUT}, {TSTR}
s_addc_u32 s{sTOUT+1}, s{sTOUT+1}, 0''')
    for i in range(16): a(f'v_mov_b32 v{ACC+i}, 0')
    a(f'''s_mov_b32 s{sSEG}, 0
s_mov_b32 s{sOFF}, 0
s_mov_b32 s{sCNT}, 0
''')
    st(0)
    a(f'''s_cmp_eq_u32 s{sSLOW}, 0
s_cbranch_scc1 L_gather
L_slow:
s_cmp_lt_u32 s{sOFF}, s{sCNT}
s_cbranch_scc1 L_slow2
s_cmp_ge_u32 s{sSEG}, 256
s_cbranch_scc1 L_gdone
s_lshl_b32 s{sA}, s{sSEG}, 10
v_mov_b32 v16, s{sA}
buffer_load_dword v17, v16, s[{sWS}:{sWS+3}], s{sBK} offen sc1
s_mul_i32 s{sSTART}, s{sSEG}, {CHSTR}
s_add_u32 s{sSEG}, s{sSEG}, 1
s_mov_b32 s{sOFF}, 0
s_waitcnt vmcnt(0)
v_readfirstlane_b32 s{sA}, v17
s_lshr_b32 s{sCNT}, s{sA}, 16
s_and_b32 s{sA}, s{sA}, 0xffff
s_lshl_b32 s{sA}, s{sA}, 2
s_add_u32 s{sSTART}, s{sSTART}, s{sA}
s_branch L_slow
L_slow2:
v_add_u32 v16, s{sOFF}, v{LANE}
v_lshl_add_u32 v17, v16, 2, s{sSTART}
buffer_load_dword v18, v17, s[{sWS}:{sWS+3}], 0 offen sc1
s_add_u32 s{sOFF}, s{sOFF}, 64
v_cmp_gt_u32 s[{sM}:{sM+1}], s{sCNT}, v16
s_waitcnt vmcnt(0)
v_bfe_u32 v19, v18, 17, 4
v_cmp_eq_u32 vcc, s{sW}, v19
s_and_b64 s[{sM}:{sM+1}], s[{sM}:{sM+1}], vcc''')
    conv(18,20,21,22)
    a(f'''v_mov_b32 v22, {OOB}
v_cndmask_b32 v20, v22, v20, s[{sM}:{sM+1}]
v_lshl_add_u32 v22, v{LANE}, 2, s{sRB}
v_add_u32 v23, s{sRB}, v{LANE}
ds_write_b32 v22, v20 offset:{L_AL}
ds_write_b8 v23, v21 offset:{L_CL}
s_waitcnt lgkmcnt(0)''')
    def issue(b,e):
        a(f'''v_xor_b32 v{DA}, v{e}, v{LO}
v_xor_b32 v{DA+1}, v{e+1}, v{LO+1}
s_add_u32 m0, s{sRB}, {2048*b}
buffer_load_dwordx4 v{DA}, s[{sTIN}:{sTIN+3}], 0 offen sc1 lds
s_add_u32 m0, s{sRB}, {2048*b+1024}
buffer_load_dwordx4 v{DA+1}, s[{sTIN}:{sTIN+3}], 0 offen sc1 lds''')
    a(f'''L_gather:
{'s_setprio 3' if prio else ''}
v_lshrrev_b32 v{AP}, 3, v{LANE}
v_lshl_add_u32 v{AP}, v{AP}, 3, s{sRB}
v_lshrrev_b32 v{CP}, 4, v{LANE}
v_lshl_add_u32 v{CP}, v{CP}, 2, s{sRB}''')
    for b in range(R): a(f'ds_read_b64 v[{X+2*b}:{X+2*b+1}], v{AP} offset:{L_AL+64*b}')
    a(f'''ds_read_b64 v[{EN}:{EN+1}], v{AP} offset:{L_AL+64*R}
s_mov_b32 s{sREM}, s{sU}
s_mov_b32 s{sBA}, {R*(NBAR+1)}
s_mov_b32 s{sBD}, 0
s_waitcnt lgkmcnt(0)''')
    for b in range(R):
        a(f'''s_cmp_le_u32 s{sU}, {b}
s_cbranch_scc1 L_gl''')
        issue(b,X+2*b)
    a('L_gl:')
    for b in range(R):
        a(f'''s_cmp_ge_u32 s{sREM}, {R}
s_cbranch_scc1 L_gw{b}
s_cmp_eq_u32 s{sREM}, 0
s_cbranch_scc1 L_gend''')
        for m in range(R-1,1,-1):
            a(f'''s_waitcnt vmcnt({2*(m-1)})
s_cmp_eq_u32 s{sREM}, {m}
s_cbranch_scc1 L_gw{b}''')
        a(f'''s_waitcnt vmcnt(0)
L_gw{b}:
s_waitcnt vmcnt({2*(R-1)})''')
        a(f'ds_read_b32 v{COLW}, v{CP} offset:{L_CL+16*b}')
        for t in range(4 if 'tr' not in skip else 0): a(f'ds_read_b64_tr_b16 v[{AOP+2*t}:{AOP+2*t+1}], v{TRA+t} offset:{2048*b}')
        a(f'''s_waitcnt lgkmcnt(4)
v_xad_u32 v{TMP}, v{COLW}, v{NOTN}, s{sK1}
v_and_b32 v{B1}, s{sK2}, v{TMP}
v_lshlrev_b32 v{TMP}, 8, v{TMP}
v_and_b32 v{B0}, s{sK2}, v{TMP}
s_cmp_le_u32 s{sREM}, {R}
s_waitcnt lgkmcnt(0)
s_cbranch_scc1 L_gn{b}''')
        issue(b,EN)
        a(f'''ds_read_b64 v[{EN}:{EN+1}], v{AP} offset:{L_AL+64*(R+1+b)}
s_add_u32 s{sBA}, s{sBA}, {NBAR+1}''')
        if prio:
            a(f'''s_lshl_b32 s{sA}, s{sBA}, 2
s_setprio 3
s_cmp_lt_u32 s{sA}, s{sU}
s_cbranch_scc1 L_gn{b}
s_setprio 2
s_sub_u32 s{sA}, s{sA}, s{sU}
s_cmp_lt_u32 s{sA}, s{sU}
s_cbranch_scc1 L_gn{b}
s_setprio 1
s_sub_u32 s{sA}, s{sA}, s{sU}
s_cmp_lt_u32 s{sA}, s{sU}
s_cbranch_scc1 L_gn{b}
s_setprio 0''')
        a(f'L_gn{b}:')
        for t in range(4 if 'mfma' not in skip else 0): a(f'v_mfma_f32_16x16x16_bf16 v[{ACC+4*t}:{ACC+4*t+3}], v[{AOP+2*t}:{AOP+2*t+1}], v[{B0}:{B1}], v[{ACC+4*t}:{ACC+4*t+3}]')
        a(f's_sub_u32 s{sREM}, s{sREM}, 1')
        if NBAR:
            a(f'''L_gb{b}:
s_cmp_lt_u32 s{sBA}, s{sU}
s_cbranch_scc1 L_gc{b}
s_cmp_ge_u32 s{sBD}, s{sNB}
s_cbranch_scc1 L_gc{b}
s_sub_u32 s{sBA}, s{sBA}, s{sU}
s_add_u32 s{sBD}, s{sBD}, 1
s_barrier
{'s_setprio 3' if prio else ''}
s_branch L_gb{b}
L_gc{b}:''')
    a(f'''v_add_u32 v{AP}, {64*R}, v{AP}
v_add_u32 v{CP}, {16*R}, v{CP}
s_branch L_gl
L_gend:
s_waitcnt lgkmcnt(0)
s_cmp_ge_u32 s{sBD}, s{sNB}
s_cbranch_scc1 L_gend2
s_add_u32 s{sBD}, s{sBD}, 1
s_barrier
s_branch L_gend
L_gend2:
s_cmp_lg_u32 s{sSLOW}, 0
s_cbranch_scc1 L_slow
L_gdone:
{'s_setprio 0' if prio else ''}''')
    st(1)
    a(f'''s_cmp_eq_u32 s{sK}, 7
s_cbranch_scc1 L_final''')
    if sfirst: a('s_setprio 1')
    gstore()
    if sfirst: a('s_setprio 0')
    st(2)
    a(f'''s_add_u32 s{sEV}, s{sEV}, 1
s_add_u32 s{sTIN}, s{sTIN}, {TSTR}
s_addc_u32 s{sTIN+1}, s{sTIN+1}, 0
s_cmp_lg_u32 s{sW}, 15
s_cbranch_scc1 L_hA''')
    stats()
    a('''s_waitcnt vmcnt(0)
s_barrier''')
    signal()
    st(4)
    poll()
    a(f'''s_branch L_job
L_hA:''')
    if sfirst: stats()
    a('s_waitcnt vmcnt(0)')
    st(3)
    a('s_barrier')
    if not sfirst: stats()
    st(4)
    a(f'''L_job:
s_cmp_lg_u32 s{sK}, 2
s_cbranch_scc1 L_jpf0
s_lshl_b32 s{sA}, s{sW}, 10
s_add_u32 m0, s{sA}, {L_W}
s_add_u32 s{sA}, s{sA}, {WGT}
v_lshlrev_b32 v3, 4, v{LANE}
buffer_load_dwordx4 v3, s[{sWS}:{sWS+3}], s{sA} offen sc1 lds
s_cmp_ge_u32 s{sW}, 3
s_cbranch_scc1 L_hB
s_add_u32 m0, m0, 16384
s_add_u32 s{sA}, s{sA}, 16384
buffer_load_dwordx4 v3, s[{sWS}:{sWS+3}], s{sA} offen sc1 lds
s_branch L_hB
L_jpf0:
s_cmp_lg_u32 s{sW}, 14
s_cbranch_scc1 L_hB
L_jpf:
s_cmp_lg_u32 s{sK}, {6 if not nopf else 99}
s_cbranch_scc1 L_hB
s_getpc_b64 s[94:95]
L_pc2:
v_lshlrev_b32 v3, 7, v{LANE}
v_min_u32 v4, L_end-L_pc2, v3
global_load_dword v4, v4, s[94:95]
v_add_u32 v3, 8192, v3
v_min_u32 v3, L_end-L_pc2, v3
global_load_dword v5, v3, s[94:95]
s_waitcnt vmcnt(0)''')
    a(f'''L_hB:
s_waitcnt lgkmcnt(0)''')
    st(5)
    a('''s_barrier
s_branch L_hop''')
    a('L_final:')
    stats()
    st(2)
    if stamp:
        a(f'''s_lshl_b32 s{sA}, s2, 4
s_add_u32 s{sA}, s{sA}, s{sW}
s_lshl_b32 s{sA}, s{sA}, 8
s_add_u32 s88, s{sA}, {STAMP}
v_lshlrev_b32 v16, 2, v{LANE}
buffer_store_dword v{TS}, v16, s[{sWS}:{sWS+3}], s88 offen
s_waitcnt vmcnt(0)''')
        if dbg:
            a(f'''s_cmp_lg_u32 s2, 100
s_cbranch_scc1 L_nodbg
s_cmp_lg_u32 s{sW}, 15
s_cbranch_scc1 L_nodbg
v_readlane_b32 s89, v{TS}, 0''')
            for i,l in enumerate((2,3,4,5,8,9,16,24,32,40,48,56,57)):
                a(f'''v_readlane_b32 s{sA}, v{TS}, {l}
s_sub_u32 s{sA}, s{sA}, s89
v_mov_b32 v16, s{sA}
v_mov_b32 v17, {4*(i+1)}
buffer_store_dword v16, v17, s[{sDB}:{sDB+3}], 0 offen''')
            a('L_nodbg:')
    def fst(i):
        if stamp: a(f'''s_memrealtime s[80:81]
s_waitcnt lgkmcnt(0)
s_mov_b32 s{82+i}, s80''')
    U=32; SAa=48; SBb=52; Y=56; P=62
    a(f'''v_lshlrev_b32 v{Y}, 4, v{LANE}
v_add_u32 v{Y}, {L_W}, v{Y}''')
    for f in range(8): a(f'ds_read_b128 v[{4*f}:{4*f+3}], v{Y} offset:{1024*f}')
    LN=TG+1; SG=TG
    a(f'''v_mov_b32 v{LN}, v{LANE}
v_lshrrev_b32 v{Y+1}, 5, v{LN}           ; q>>1
v_bfe_u32 v{Y+2}, v{LN}, 3, 1            ; b
v_xor_b32 v{Y+2}, v{Y+2}, v{Y+1}         ; invalid
v_and_b32 v{Y+3}, 7, v{LN}
v_lshl_add_u32 v{Y+3}, v{Y+1}, 3, v{Y+3}
v_lshlrev_b32 v{Y+3}, 3, v{Y+3}
v_lshl_add_u32 v{Y+3}, v{Y+2}, 7, v{Y+3}
v_add_u32 v{SG}, s{sRB}, v{Y+3}
s_waitcnt lgkmcnt(0)''')
    def scores(p,S):
        for s in range(2):
            for t in range(4):
                c='0' if s==0 else f'v[{U+4*t}:{U+4*t+3}]'
                a(f'v_mfma_f32_16x16x32_bf16 v[{U+4*t}:{U+4*t+3}], v[{8*t+4*s}:{8*t+4*s+3}], v[{T(p)+4*s}:{T(p)+4*s+3}], {c}')
        for i in range(8): a(f'v_cvt_pk_bf16_f32 v{U+i}, v{U+2*i}, v{U+2*i+1}')
        a(f'''v_mfma_f32_16x16x32_bf16 v[{S}:{S+3}], v[{T(p)}:{T(p)+3}], v[{U}:{U+3}], 0
v_mfma_f32_16x16x32_bf16 v[{S}:{S+3}], v[{T(p)+4}:{T(p)+7}], v[{U+4}:{U+7}], v[{S}:{S+3}]''')
    for g in range(4):
        if g==3:
            a(f'''s_cmp_ge_u32 s{sW}, 2
s_cbranch_scc1 L_f2''')
        a(f'ds_read_b32 v{Y+4}, v{SG} offset:{L_ST+256*g}')
        scores(2*g,SAa)
        if g<3:
            scores(2*g+1,SBb)
            for r in range(4):
                a(f'''v_mov_b32_dpp v{SAa+r}, v{SBb+r} row_ror:8 row_mask:0x3 bank_mask:0xc
v_mov_b32_dpp v{SAa+r}, v{SBb+r} row_ror:8 row_mask:0xc bank_mask:0x3''')
        S=SAa
        a(f'''v_max3_f32 v{Y}, v{S}, v{S+1}, v{S+2}
v_max_f32 v{Y}, v{Y}, v{S+3}
v_mov_b32 v{Y+1}, v{Y}
v_permlane16_swap_b32 v{Y+1}, v{Y}
v_max_f32 v{Y}, v{Y}, v{Y+1}''')
        for r in range(4): a(f'v_sub_f32 v{S+r}, v{S+r}, v{Y}')
        for r in range(4): a(f'v_exp_f32 v{S+r}, v{S+r}')
        a(f'''v_add_f32 v{Y}, v{S}, v{S+1}
v_add_f32 v{Y+1}, v{S+2}, v{S+3}
v_add_f32 v{Y}, v{Y}, v{Y+1}
v_mov_b32 v{Y+1}, v{Y}
v_permlane16_swap_b32 v{Y+1}, v{Y}
v_add_f32 v{Y}, v{Y}, v{Y+1}
s_waitcnt lgkmcnt(0)
v_mul_f32 v{Y}, v{Y}, v{Y+4}
v_rcp_f32 v{Y}, v{Y}''')
        for r in range(4): a(f'v_mul_f32 v{S+r}, v{S+r}, v{Y}')
        a(f'''v_cvt_pk_bf16_f32 v{P+2*g}, v{S}, v{S+1}
v_cvt_pk_bf16_f32 v{P+2*g+1}, v{S+2}, v{S+3}''')
    a('L_f2:')
    fst(0)
    OA=32; ZT=48; VM=56; OW=57; OT=58; GW=59; SAD=60; LN2=61
    LO_IMG=0; LG=4608; LS=LG+7*256; LWB=LS+7*128; LC=LWB+256
    assert LC+64<=L_ST
    a(f'''v_mov_b32 v{LN2}, v{LN}
v_lshlrev_b32 v{SAD}, 4, v{LN2}
v_add_u32 v{OA}, {L_W+8192}, v{SAD}
v_add_u32 v{SAD}, {L_SA}, v{SAD}''')
    for f in range(8): a(f'ds_read_b128 v[{4*f}:{4*f+3}], v{OA} offset:{1024*f}')
    a(f'''v_lshrrev_b32 v{OA+1}, 5, v{LN2}
v_bfe_u32 v{OA+2}, v{LN2}, 3, 1
v_xor_b32 v{OA+2}, v{OA+2}, v{OA+1}
v_add_u32 v{VM}, -1, v{OA+2}             ; valid ? ~0 : 0
v_and_b32 v{OA+1}, 15, v{LN2}            ; n
v_lshrrev_b32 v{OA+2}, 4, v{LN2}         ; q
v_mul_u32_u24 v{OA+3}, 144, v{OA+1}
v_lshl_add_u32 v{OA+3}, v{OA+2}, 4, v{OA+3}
v_add_u32 v{OW}, s{sRB}, v{OA+3}
v_lshrrev_b32 v{OA+3}, 2, v{LN2}         ; row 4q+r
v_mul_u32_u24 v{OA+3}, 144, v{OA+3}
v_and_b32 v{OA+4}, 3, v{LN2}
v_lshl_add_u32 v{OA+3}, v{OA+4}, 3, v{OA+3}
v_add_u32 v{OT}, s{sRB}, v{OA+3}
v_lshl_add_u32 v{GW}, v{OA+1}, 3, s{sRB}
v_add_u32 v{GW}, {LG}, v{GW}
v_lshlrev_b32 v{OA+2}, 2, v{OA+2}
v_sub_u32 v{OA+1}, v{OA+1}, v{OA+2}       ; m-4q
v_mov_b32 v{OA+3}, 0x3f80
v_mov_b32 v{OA+4}, 0x3f800000''')
    for h in range(2):
        a(f'''v_cmp_eq_u32 s[{sM}:{sM+1}], {2*h}, v{OA+1}
v_cmp_eq_u32 s[{sM2}:{sM2+1}], {2*h+1}, v{OA+1}
v_cndmask_b32 v{ZT+2+h}, 0, v{OA+3}, s[{sM}:{sM+1}]
v_cndmask_b32 v{ZT+2+h}, v{ZT+2+h}, v{OA+4}, s[{sM2}:{sM2+1}]
v_mov_b32 v{ZT+6+h}, v{ZT+2+h}''')
    a(f'''s_mov_b32 s{sM}, 0x00f0000f
s_mov_b32 s{sM+1}, 0xf0000f00
s_waitcnt lgkmcnt(0)''')
    def o2reg(p,t):
        g=p//2
        return (TG+16*g+4*t+2*(p&1)) if p<6 else (TG+48+2*t)
    for p in range(7):
        if p==6:
            a(f'''s_cmp_ge_u32 s{sW}, 2
s_cbranch_scc1 L_f3''')
        tp=T(p); pm=P+2*(p//2)
        for s in range(2):
            for t in range(4):
                c='0' if s==0 else f'v[{OA+4*t}:{OA+4*t+3}]'
                a(f'v_mfma_f32_16x16x32_bf16 v[{OA+4*t}:{OA+4*t+3}], v[{tp+4*s}:{tp+4*s+3}], v[{8*t+4*s}:{8*t+4*s+3}], {c}')
        for t in range(4):
            z=ZT+4*(t&1); b=tp-2+2*t
            if t==0:
                for h in range(2):
                    if p&1: a(f'v_and_b32_dpp v{b+h}, v{pm+h}, v{VM} row_ror:8 row_mask:0xf bank_mask:0xf')
                    else: a(f'v_and_b32 v{b+h}, v{pm+h}, v{VM}')
            else: a(f'v_mov_b64 v[{b}:{b+1}], v[{b-2}:{b-1}]')
            a(f'''v_cvt_pk_bf16_f32 v{z}, v{OA+4*t}, v{OA+4*t+1}
v_cvt_pk_bf16_f32 v{z+1}, v{OA+4*t+2}, v{OA+4*t+3}
v_mfma_f32_16x16x32_bf16 v[{OA+4*t}:{OA+4*t+3}], v[{z}:{z+3}], v[{b}:{b+3}], 0''')
        ob=tp-2
        for i in range(8): a(f'v_cvt_pk_bf16_f32 v{ob+i}, v{OA+2*i}, v{OA+2*i+1}')
        img=LO_IMG+2304*(p&1)
        a(f'''ds_read_b128 v[{OA}:{OA+3}], v{SAD}
ds_read_b128 v[{OA+4}:{OA+7}], v{SAD} offset:1024
ds_write_b128 v{OW}, v[{ob}:{ob+3}] offset:{img}
ds_write_b128 v{OW}, v[{ob+4}:{ob+7}] offset:{img+64}
v_mfma_f32_16x16x32_bf16 v[{OA+8}:{OA+11}], v[{ob}:{ob+3}], v[{ob}:{ob+3}], 0
v_mfma_f32_16x16x32_bf16 v[{OA+8}:{OA+11}], v[{ob+4}:{ob+7}], v[{ob+4}:{ob+7}], v[{OA+8}:{OA+11}]
s_waitcnt lgkmcnt(2)
v_mfma_f32_16x16x32_bf16 v[{OA+12}:{OA+15}], v[{OA}:{OA+3}], v[{ob}:{ob+3}], 0
v_mfma_f32_16x16x32_bf16 v[{OA+12}:{OA+15}], v[{OA+4}:{OA+7}], v[{ob+4}:{ob+7}], v[{OA+12}:{OA+15}]
s_mov_b64 exec, s[{sM}:{sM+1}]
ds_write2_b64 v{GW}, v[{OA+8}:{OA+9}], v[{OA+10}:{OA+11}] offset0:{(256*p)//8} offset1:{(256*p+128)//8}''')
        a(f'''ds_write_b64 v{GW}, v[{OA+12}:{OA+13}] offset:{7*256+128*p}
s_mov_b64 exec, -1''')
        if p&1 or p==6:
            a('s_waitcnt lgkmcnt(2)')
            for pp in ((p-1,p) if p<6 else (6,)):
                for t in range(4):
                    r=o2reg(pp,t)
                    a(f'ds_read_b64_tr_b16 v[{r}:{r+1}], v{OT} offset:{LO_IMG+2304*(pp&1)+32*t}')
        a('s_waitcnt lgkmcnt(0)')
    a('L_f3:')
    fst(1)
    F=0; K=16
    a(f'''v_lshl_add_u32 v{K}, v{LN2}, 3, s{sRB}          ; lane*8
v_lshrrev_b32 v{K+1}, 4, v{LN2}                 ; q
v_bfe_u32 v{K+2}, v{LN2}, 1, 1
v_add_u32 v{K+2}, v{K+2}, v{K+1}
v_lshl_add_u32 v{K+2}, v{K+2}, 7, v{K}
v_and_b32 v{K+3}, 1, v{LN2}
v_lshl_add_u32 v{K+2}, v{K+3}, 2, v{K+2}
v_mov_b32 v{K+3}, {L_SH+2048}
ds_read_b32 v{K+3}, v{K+3}''')
    Rr=lambda h:24+10*h
    for h in range(2):
        r=Rr(h)
        a(f'''ds_read_b32 v{r}, v{K+2} offset:{LG+1024*h}
ds_read_b64 v[{r+2}:{r+3}], v{K} offset:{LS+512*h}
ds_read_b64 v[{r+4}:{r+5}], v{K} offset:{L_ST+512*h}''')
    a(f'''v_lshl_add_u32 v{K+4}, v{LN2}, 1, s{sRB}        ; w write
v_lshrrev_b32 v{K+5}, 3, v{LN2}
v_lshl_add_u32 v{K+5}, v{K+5}, 2, s{sRB}        ; c write
v_lshl_add_u32 v{K+6}, v{K+1}, 3, s{sRB}        ; w read
v_and_b32 v{K+7}, 15, v{LN2}
v_lshl_add_u32 v{K+7}, v{K+7}, 2, s{sRB}        ; c read
s_waitcnt lgkmcnt(0)''')
    def both(txt):
        for ln in txt.strip().split('\n'):
            for h in range(2):
                r=Rr(h)
                a(ln.format(q=r,u=r+1,s=r+2,d=r+3,g=r+4,m=r+5,a=r+6,b=r+7,c=r+8,h=h,wo=LWB+128*h,co=LC+32*h))
    red=lambda op,x: '\n'.join(f'{op}_dpp v{{{x}}}, v{{{x}}}, v{{{x}}} {m} row_mask:0xf bank_mask:0xf' for m in('quad_perm:[1,0,3,2]','quad_perm:[2,3,0,1]','row_half_mirror'))
    both(f'''v_mul_f32 v{{s}}, {fb(1/64):#x}, v{{s}}
v_mul_f32 v{{q}}, {fb(1/64):#x}, v{{q}}
v_fma_f32 v{{q}}, -v{{s}}, v{{s}}, v{{q}}
v_max_f32 v{{q}}, 0, v{{q}}
v_mul_f32 v{{a}}, v{{g}}, v{{g}}
v_mov_b32 v{{b}}, {fb(1e-5):#x}
v_fmac_f32 v{{b}}, v{{a}}, v{{q}}
v_rsq_f32 v{{b}}, v{{b}}
v_fma_f32 v{{d}}, -v{{s}}, v{K+3}, v{{d}}
v_mul_f32 v{{a}}, {fb(LOG2E):#x}, v{{g}}
v_mul_f32 v{{d}}, v{{d}}, v{{a}}
v_mul_f32 v{{d}}, v{{d}}, v{{b}}
v_mov_b32 v{{a}}, v{{d}}
{red('v_max_f32','a')}
v_sub_f32 v{{d}}, v{{d}}, v{{a}}
v_exp_f32 v{{d}}, v{{d}}
v_mov_b32 v{{a}}, v{{d}}
v_mul_f32 v{{m}}, v{{m}}, v{{d}}
{red('v_add_f32','a')}
{red('v_add_f32','m')}
v_rcp_f32 v{{a}}, v{{a}}
v_mul_f32 v{{d}}, v{{d}}, v{{g}}
v_mul_f32 v{{d}}, v{{d}}, v{{a}}
v_mul_f32 v{{m}}, v{{m}}, v{{a}}
v_cvt_pk_bf16_f32 v{{d}}, v{{d}}, v{{d}}
ds_write_b16 v{K+4}, v{{d}} offset:{{wo}}
ds_write_b32 v{K+5}, v{{m}} offset:{{co}}''')
    WT=24; CI=40
    a('s_waitcnt lgkmcnt(0)')
    a(f'ds_read_b32 v{CI}, v{K+7} offset:{LC}')
    for p in range(7): a(f'ds_read_b64 v[{WT+2*p}:{WT+2*p+1}], v{K+6} offset:{LWB+32*p}')
    OAD=44
    srd(sT1,22,N*128)
    a(f'''v_and_b32 v{K}, 15, v{LN2}
v_mul_u32_u24 v{K}, 144, v{K}
v_add_u32 v{K}, v{K}, v{K+6}
v_lshrrev_b32 v{K+2}, 3, v{LN2}                 ; g
v_and_b32 v{K+3}, 7, v{LN2}
v_mul_u32_u24 v{K+1}, 144, v{K+2}
v_lshl_add_u32 v{K+1}, v{K+3}, 4, v{K+1}
v_add_u32 v{K+1}, s{sRB}, v{K+1}
v_lshrrev_b32 v{K+4}, 1, v{K+2}
v_lshlrev_b32 v{K+4}, 5, v{K+4}
v_and_b32 v{K+5}, 1, v{K+2}
s_lshl_b32 s{sB}, s{sW}, 1
v_add3_u32 v{K+4}, v{K+4}, v{K+5}, s{sB}         ; r
v_cmp_gt_u32 vcc, {NPW-128}, v{K+4}
s_mul_i32 s{sD}, s2, {NPW}
v_add_u32 v{K+4}, s{sD}, v{K+4}
v_lshlrev_b32 v{K+4}, 7, v{K+4}
v_lshl_add_u32 v{OAD}, v{K+3}, 4, v{K+4}
v_add_u32 v{OAD+1}, {128*128}, v{OAD}
v_mov_b32 v{K+4}, {OOB}
v_cndmask_b32 v{OAD+1}, v{K+4}, v{OAD+1}, vcc
s_waitcnt lgkmcnt(0)
v_mov_b32 v{CI+1}, v{CI}
v_mov_b32 v{CI+2}, v{CI}
v_mov_b32 v{CI+3}, v{CI}''')
    for g in range(4):
        if g==3:
            a(f'''s_cmp_ge_u32 s{sW}, 2
s_cbranch_scc1 L_f4''')
        for p in ((2*g,2*g+1) if g<3 else (6,)):
            m=sM if p%2==0 else sM2
            a(f'''s_mov_b32 s{m}, {0x00010001<<(2*p):#x}
s_mov_b32 s{m+1}, {0x00020002<<(2*p):#x}
v_cndmask_b32 v{WT+2*p}, 0, v{WT+2*p}, s[{m}:{m+1}]
v_cndmask_b32 v{WT+2*p+1}, 0, v{WT+2*p+1}, s[{m}:{m+1}]''')
        for t in range(4):
            c=f'v[{CI}:{CI+3}]' if g==0 else f'v[{F+4*t}:{F+4*t+3}]'
            r=o2reg(2*g,t)
            if g<3: a(f'v_mfma_f32_16x16x32_bf16 v[{F+4*t}:{F+4*t+3}], v[{r}:{r+3}], v[{WT+4*g}:{WT+4*g+3}], {c}')
            else: a(f'v_mfma_f32_16x16x16_bf16 v[{F+4*t}:{F+4*t+3}], v[{r}:{r+1}], v[{WT+12}:{WT+13}], {c}')
    a('L_f4:')
    for t in range(4):
        a(f'''v_cvt_pk_bf16_f32 v{48+2*t}, v{F+4*t}, v{F+4*t+1}
v_cvt_pk_bf16_f32 v{49+2*t}, v{F+4*t+2}, v{F+4*t+3}
ds_write_b64 v{K}, v[{48+2*t}:{49+2*t}] offset:{32*t}''')
    a(f'''s_waitcnt lgkmcnt(0)
ds_read_b128 v[24:27], v{K+1}
ds_read_b128 v[28:31], v{K+1} offset:1152
s_waitcnt lgkmcnt(1)
buffer_store_dwordx4 v[24:27], v{OAD}, s[{sT1}:{sT1+3}], 0 offen
s_waitcnt lgkmcnt(0)
buffer_store_dwordx4 v[28:31], v{OAD+1}, s[{sT1}:{sT1+3}], 0 offen''')
    if stamp:
        fst(2)
        a('s_waitcnt vmcnt(0)')
        fst(3)
        a(f'''v_mov_b32 v0, s82
v_mov_b32 v1, s83
v_mov_b32 v2, s84
v_mov_b32 v3, s85
v_mov_b32 v4, {59*4}
s_mov_b64 exec, 1
buffer_store_dwordx4 v[0:3], v4, s[{sWS}:{sWS+3}], s88 offen''')
        if dbg:
            a(f'''s_cmp_lg_u32 s2, 100
s_cbranch_scc1 L_end
s_cmp_lg_u32 s{sW}, 15
s_cbranch_scc1 L_end
s_sub_u32 s82, s82, s89
s_sub_u32 s85, s85, s89
v_mov_b32 v0, s82
v_mov_b32 v1, s85
v_mov_b32 v4, 56
buffer_store_dwordx2 v[0:1], v4, s[{sDB}:{sDB+3}], 0 offen''')
    if enc:
        a(f'''s_cmp_lg_u32 s2, 100
s_cbranch_scc1 L_end
s_cmp_lg_u32 s{sW}, 15
s_cbranch_scc1 L_end
s_waitcnt vmcnt(0)
s_memrealtime s[80:81]
s_waitcnt lgkmcnt(0)
{'s_mov_b32 s84, s80' if enc[1] is None else ''}
s_sub_u32 s82, s84, s82
s_mul_i32 s82, s82, {enc[2]}
s_min_u32 s82, s82, 100000
L_encs:
s_memrealtime s[84:85]
s_waitcnt lgkmcnt(0)
s_sub_u32 s84, s84, s80
s_cmp_lt_u32 s84, s82
s_cbranch_scc1 L_encs''')
    a('L_end:\ns_endpgm')
    body=a.pad(verbose=True)
    ref=open('standalone__hybrid_graph_tf_nagphormer__graph.s.ref').read().split('\n')
    head=[l for l in ref if l.startswith(';') and '@launch' not in l]
    out='\n'.join(head)+f'''
; @launch grid=(256,1,1) block=(1024,1,1) lds={LDS_BYTES}
.amdgcn_target "amdgcn-amd-amdhsa--gfx950"
.text
.globl {KNAME}
.p2align 8
.type {KNAME},@function
{KNAME}:
'''+body+f'''.section .rodata,"a"
.p2align 6
.amdhsa_kernel {KNAME}
  .amdhsa_next_free_vgpr 128
  .amdhsa_next_free_sgpr 100
  .amdhsa_accum_offset 128
  .amdhsa_group_segment_fixed_size 0
  .amdhsa_kernarg_size 96
  .amdhsa_user_sgpr_count 2
  .amdhsa_user_sgpr_kernarg_segment_ptr 1
  .amdhsa_system_sgpr_workgroup_id_x 1
  .amdhsa_float_denorm_mode_32 3
.end_amdhsa_kernel
'''
    return out
if __name__=='__main__':
    kw=eval('dict('+(sys.argv[2] if len(sys.argv)>2 else '')+')')
    open(sys.argv[1] if len(sys.argv)>1 else 'standalone__hybrid_graph_tf_nagphormer__graph.s','w').write(gen(**kw))
```

```python
import sys, struct
sys.path.insert(0,'gen')
from asmlib import Asm
N=50000; E=800000; NPW=196; CH=3125
KNAME='standalone__hybrid_graph_tf_nagphormer__graph_kernel'
TSTR=16<<20
MISC=112<<20
CHSTR=12544
OFFS=4<<20
SYNC=5<<20
STAMP=6<<20
WGT=(5<<20)+(512<<10)
PROBE=14<<20
WSTR=8960
L_RING=0; L_AL=6144; CAP=352; L_CL=L_AL+CAP*4; L_ST=7936
L_W=16*WSTR
L_CNT1=L_W+13312; L_BASE1=L_CNT1+1040
L_SH=L_W+16384
L_CNT2=L_SH; L_BASE2=L_SH+1040; L_SA=L_SH; L_MISC=L_SH+2304
LDS_BYTES=L_SH+4096
assert LDS_BYTES==163840 and L_CL+CAP<=L_ST and L_ST+1024<=WSTR
fb=lambda x: struct.unpack('<I',struct.pack('<f',x))[0]
LOG2E=1.4426950408889634
OOB=0x80000000

def gen(R=3, NBAR=6, stamp=False, force_slow=False, spinmax=1<<18, reps=2, sfirst=False, prio=0, skip='', dbg=False, enc=None, nopf=False, oaux='', encwg=100):
    a=Asm()
    ACC=0; AOP=16; B0=24; B1=25; COLW=26; TMP=27; EN=28; DA=30; TRA=32; LO=36; AP=38; CP=39; NOTN=40
    S1=41; DIS=42; SA=43; SWA=45; SRA=46; TRD=47; STA=48; LANE=49; X=50; TS=69
    TG=70; T0=72
    T=lambda p:T0+8*p
    sWG=2; sW=3; sTIN=28; sTOUT=32; sWS=36; sT1=40; sT2=44
    sU=48; sREM=49; sBA=50; sBD=51; sRB=52; sK=53; sSLOW=54; sNB=55; sA=56; sB=57; sC=58; sD=59
    sK1=60; sK2=61; sSPIN=62; sEV=63; sM=64
    sP0=66; sP1=68; sPM=70; sSEG=71; sOFF=72; sCNT=73; sSTART=74; sBK=75; sSI=76; sXC=77; sDB=96; sPA=86; sPM2=87; sM2=78
    nst=[0]
    def st(i):
        if enc:
            for j,pt in enumerate(enc[:2]):
                if pt is not None and pt>=0 and pt%8==i:
                    nst[0]+=1
                    a(f'''s_cmp_lg_u32 s{sSI}, {pt-i}
s_cbranch_scc1 L_enc{nst[0]}
s_memrealtime s[{82+2*j}:{83+2*j}]
s_waitcnt lgkmcnt(0)
L_enc{nst[0]}:''')
        if stamp:
            a(f'''s_memrealtime s[80:81]
s_waitcnt lgkmcnt(0)
s_add_u32 m0, s{sSI}, {i}
s_nop 0
v_writelane_b32 v{TS}, s80, m0''')
    def srd(d,lo,nbytes):
        a(f'''s_mov_b32 s{d}, s{lo}
s_mov_b32 s{d+1}, s{lo+1}
s_mov_b32 s{d+2}, {nbytes}
s_mov_b32 s{d+3}, 0x20000''')
    uid=[0]
    def L(x):
        uid[0]+=1; return f'L_{x}_{uid[0]}'
    def spin(lab):
        a(f'''s_sleep 1
s_add_u32 s{sSPIN}, s{sSPIN}, 1
s_cmp_lt_u32 s{sSPIN}, {spinmax}
s_cbranch_scc1 {lab}
s_endpgm''')
    if enc and enc[0]==-1: a('s_memrealtime s[82:83]')
    a(f'''s_cmp_ge_u32 s2, 256
s_cbranch_scc1 L_end
s_load_dwordx16 s[4:19], s[0:1], 0
s_load_dwordx8 s[20:27], s[0:1], 64
v_lshrrev_b32 v1, 6, v0
v_and_b32 v{LANE}, 63, v0
v_readfirstlane_b32 s{sW}, v1
v_lshlrev_b32 v2, 4, v0
s_mul_i32 s{sA}, s2, {CH*4}
s_mov_b32 s{sSI}, 0
s_mov_b32 s{sSPIN}, 0
v_mov_b32 v{TS}, 0
s_mul_i32 s{sRB}, s{sW}, {WSTR}
s_cmp_lg_u32 s{sW}, {13 if not nopf else 99}
s_cbranch_scc1 L_nopf
s_getpc_b64 s[94:95]
L_pc1:
v_lshlrev_b32 v3, 7, v{LANE}
global_load_dword v4, v3, s[94:95]
v_add_u32 v3, 8192, v3
v_min_u32 v3, L_final-L_pc1, v3
global_load_dword v5, v3, s[94:95]
L_nopf:
v_mov_b32 v16, 0
v_mov_b32 v17, 0
v_lshlrev_b32 v22, 2, v0
v_add_u32 v22, {L_CNT1}, v22
v_lshrrev_b32 v18, 3, v{LANE}          ; g
v_lshrrev_b32 v14, 1, v18
v_lshlrev_b32 v14, 5, v14
v_and_b32 v15, 1, v18
s_lshl_b32 s{sB}, s{sW}, 1
v_add3_u32 v14, v14, v15, s{sB}        ; r
v_cmp_gt_u32 vcc, {NPW-128}, v14
s_mul_i32 s{sD}, s2, {NPW}
v_add_u32 v14, s{sD}, v14
v_add_u32 v15, 128, v14
v_mov_b32 v19, 0x01000000
v_cndmask_b32 v15, v19, v15, vcc
v_and_b32 v19, 7, v{LANE}
v_lshlrev_b32 v19, 4, v19
v_lshl_add_u32 v20, v14, 7, v19
v_lshl_add_u32 v21, v15, 7, v19
v_lshlrev_b32 v24, 1, v14
v_lshlrev_b32 v25, 1, v15
s_waitcnt lgkmcnt(0)
s_add_u32 s26, s26, 0x1fffff
s_addc_u32 s27, s27, 0
s_and_b32 s26, s26, 0xffe00000
s_add_u32 s{sWS}, s26, {MISC}
s_addc_u32 s{sWS+1}, s27, 0
s_mov_b32 s{sWS+2}, {8<<20}
s_mov_b32 s{sWS+3}, 0x20000''')
    srd(sT1,6,E*4); srd(sT2,8,E*4); srd(sDB,24,256)
    a(f'''s_cmp_ge_u32 s{sW}, 13
s_cbranch_scc1 L_noedge
buffer_load_dwordx4 v[4:7], v2, s[{sT2}:{sT2+3}], s{sA} offen
buffer_load_dwordx4 v[8:11], v2, s[{sT1}:{sT1+3}], s{sA} offen
s_cmp_ge_u32 s{sW}, 4
s_cbranch_scc1 L_b1
ds_write_b32 v22, v16
ds_write_b32 v22, v16 offset:{L_CNT2-L_CNT1}
ds_write_b32 v22, v16 offset:{L_MISC-L_CNT1}
s_branch L_b1
L_noedge:
s_cmp_lg_u32 s{sW}, 15
s_cbranch_scc1 L_b1
buffer_load_dword v4, v16, s[{sDB}:{sDB+3}], 0 offen offset:128 sc1
s_cmp_ge_u32 s2, 8
s_cbranch_scc1 L_b1
v_lshlrev_b32 v3, 4, v{LANE}
v_mov_b32 v8, 0
v_mov_b32 v9, 0
v_mov_b32 v10, 0
v_mov_b32 v11, 0
s_lshl_b32 s{sA}, s2, 10
s_add_u32 s{sA}, s{sA}, {SYNC}
buffer_store_dwordx4 v[8:11], v3, s[{sWS}:{sWS+3}], s{sA} offen sc1
s_add_u32 s{sA}, s{sA}, 8192
buffer_store_dwordx4 v[8:11], v3, s[{sWS}:{sWS+3}], s{sA} offen sc1
s_add_u32 s{sA}, s{sA}, 8192
buffer_store_dwordx4 v[8:11], v3, s[{sWS}:{sWS+3}], s{sA} offen sc1
L_b1:''')
    st(0)
    srd(sT1,4,N*128); srd(sT2,10,N*2)
    a(f'''s_add_u32 s90, s26, {PROBE}
s_addc_u32 s91, s27, 0
s_add_u32 s92, s26, {MISC+SYNC}
s_addc_u32 s93, s27, 0
s_waitcnt lgkmcnt(0)
s_barrier
s_cmp_lg_u32 s{sW}, 15
s_cbranch_scc1 L_xl
s_cmp_lg_u32 s2, 0
s_cbranch_scc1 L_xl
s_waitcnt vmcnt(0)
v_mov_b32 v3, 1
s_mov_b64 exec, 1
buffer_store_dword v3, v16, s[{sDB}:{sDB+3}], 0 offen sc1
s_mov_b64 exec, -1
L_xl:
buffer_load_dwordx4 v[{X}:{X+3}], v20, s[{sT1}:{sT1+3}], 0 offen
buffer_load_dwordx4 v[{X+4}:{X+7}], v21, s[{sT1}:{sT1+3}], 0 offen
buffer_load_ushort v26, v24, s[{sT2}:{sT2+3}], 0 offen
buffer_load_ushort v27, v25, s[{sT2}:{sT2+3}], 0 offen''')
    st(1)
    srd(sTIN,26,TSTR); srd(sTOUT,26,TSTR)
    for i in range(2):
        a(f'''v_and_b32 v20, 0x0100ffc0, v{14+i}
v_and_b32 v21, 0xffff, v{14+i}
v_add_u32 v20, v20, v21
v_and_b32 v21, 0x2000, v{14+i}
v_lshl_add_u32 v20, v20, 7, v21
v_add_u32 v{SA+i}, v20, v19''')
    a(f'''v_and_b32 v12, 15, v{LANE}            ; n
v_lshrrev_b32 v13, 4, v{LANE}          ; q''')
    a(f'''v_mov_b32 v16, 0
v_mov_b32 v18, {OOB}
v_mov_b32 v19, {OOB}
v_mov_b32 v20, {OOB}
v_mov_b32 v21, {OOB}
v_lshl_add_u32 v23, v{LANE}, 4, s{sRB}
ds_write_b128 v23, v[18:21] offset:{L_AL}
ds_write_b128 v23, v[18:21] offset:{L_AL+CAP*4-1024}
v_lshl_add_u32 v23, v{LANE}, 2, s{sRB}
ds_write_b32 v23, v16 offset:{L_CL}
ds_write_b32 v23, v16 offset:{L_CL+CAP-256}''')
    a(f'''; tr-read addresses: lane=(q, r, c): g=2q+(r&1), i=r>>1, swz=((g>>1)&1)*2+i
v_bfe_u32 v16, v{LANE}, 2, 1           ; r&1
v_bfe_u32 v17, v{LANE}, 3, 1           ; i
v_lshl_add_u32 v16, v13, 1, v16        ; g
v_lshlrev_b32 v16, 7, v16
v_lshl_add_u32 v16, v17, 10, v16
v_and_b32 v18, 1, v13
v_lshl_add_u32 v18, v18, 1, v17        ; swz
v_lshl_add_u32 v16, v18, 5, v16
v_and_b32 v18, 3, v{LANE}
v_lshl_add_u32 v16, v18, 3, v16
v_add_u32 v{TRA}, s{sRB}, v16
v_xor_b32 v{TRA+1}, 32, v{TRA}
v_xor_b32 v{TRA+2}, 64, v{TRA}
v_xor_b32 v{TRA+3}, 96, v{TRA}
v_and_b32 v16, 7, v{LANE}
v_bfe_u32 v17, v{LANE}, 4, 1           ; (g>>1)&1, g=lane>>3
v_lshlrev_b32 v17, 2, v17
v_xor_b32 v17, v17, v16
v_lshlrev_b32 v{LO}, 4, v17
v_xor_b32 v{LO+1}, 32, v{LO}
; ~(n*0x01010101)
s_mov_b32 s{sA}, 0x01010101
v_mul_lo_u32 v{NOTN}, v12, s{sA}
v_not_b32 v{NOTN}, v{NOTN}
s_mov_b32 s{sK1}, 0x40404041
s_mov_b32 s{sK2}, 0x40004000
v_mul_u32_u24 v17, 144, v12
v_lshl_add_u32 v17, v13, 3, v17
v_add_u32 v{SWA}, s{sRB}, v17
v_lshrrev_b32 v18, 3, v{LANE}          ; g
v_mul_u32_u24 v17, 144, v18
v_lshl_add_u32 v17, v16, 4, v17
v_add_u32 v{SRA}, s{sRB}, v17
v_bfe_u32 v17, v{LANE}, 3, 1
v_mul_u32_u24 v17, 144, v17
v_lshl_add_u32 v17, v13, 4, v17
v_add_u32 v{TRD}, s{sRB}, v17
v_lshl_add_u32 v{STA}, v12, 6, s{sRB}   ; col*64 (+k*8)
v_mov_b32 v{S1}, 1.0
s_cmp_lg_u32 s{sW}, 14
s_cbranch_scc1 L_np0
s_lshr_b32 s{sPA}, s2, 6
s_lshl_b32 s{sPA}, s{sPA}, 14
s_and_b32 s{sB}, s2, 63
s_lshl_b32 s{sB}, s{sB}, 7
s_add_u32 s{sPA}, s{sPA}, s{sB}
s_add_u32 s{sB}, s{sPA}, 0x2000
s_mov_b32 s{sC}, 1
s_mov_b32 s{sD}, 1
s_atomic_add s{sC}, s[90:91], s{sPA} glc
s_atomic_add s{sD}, s[90:91], s{sB} glc
s_barrier
s_barrier
s_branch L_g0
L_np0:
s_cmp_ge_u32 s{sW}, 13
s_cbranch_scc1 L_p1_b2''')
    a(f'''s_mov_b32 s{sA}, 85599
v_lshlrev_b32 v2, 2, v0
v_mov_b32 v3, 1
s_waitcnt vmcnt(5)''')
    for j in range(4):
        a(f'''v_mul_u32_u24 v16, s{sA}, v{4+j}
v_lshrrev_b32 v16, 24, v16            ; owner
v_mul_u32_u24 v17, {NPW}, v16
v_sub_u32 v{4+j}, v{4+j}, v17          ; r
v_and_b32 v17, 7, v16
v_lshrrev_b32 v16, 3, v16
v_lshl_add_u32 v16, v17, 5, v16
v_lshlrev_b32 v16, 2, v16
v_add_u32 v{12+j}, {L_CNT1}, v16
{'v_cmpx_gt_u32 vcc, %d, v2'%(CH-j) if j<2 else ''}
ds_add_rtn_u32 v{20+j}, v{12+j}, v3''')
    a('s_mov_b64 exec, -1')
    a('s_waitcnt vmcnt(4)')
    st(7)
    for j in range(4): a(f'v_lshl_or_b32 v{8+j}, v{4+j}, 16, v{8+j}')
    a(f'''L_p1_b2:
s_waitcnt lgkmcnt(0)
s_barrier''')
    st(2)
    def scan(cnt, c, quad):
        a(f'''v_lshlrev_b32 v{c+9}, 4, v{LANE}
v_add_u32 v{c+9}, {cnt}, v{c+9}
ds_read_b128 v[{c}:{c+3}], v{c+9}
s_waitcnt lgkmcnt(0)
v_add_u32 v{c+6}, v{c}, v{c+1}
v_add_u32 v{c+7}, v{c+6}, v{c+2}
v_add_u32 v{c+4}, v{c+7}, v{c+3}
v_mov_b32 v{c+8}, v{c+4}''')
        if quad:
            a(f'''v_mov_b32 v{c+5}, 0
v_mov_b32_dpp v{c+5}, v{c+8} quad_perm:[0,0,1,2] row_mask:0xf bank_mask:0xf
v_cndmask_b32 v{c+5}, v{c+5}, 0, s[{sM}:{sM+1}]
v_add_u32 v{c+8}, v{c+8}, v{c+5}
v_mov_b32_dpp v{c+5}, v{c+8} quad_perm:[0,0,0,1] row_mask:0xf bank_mask:0xf
v_cndmask_b32 v{c+5}, v{c+5}, 0, s[{sM2}:{sM2+1}]
v_add_u32 v{c+8}, v{c+8}, v{c+5}''')
        else:
            for m in ('row_shr:1 row_mask:0xf','row_shr:2 row_mask:0xf','row_shr:4 row_mask:0xf','row_shr:8 row_mask:0xf','row_bcast:15 row_mask:0xa','row_bcast:31 row_mask:0xc'):
                a(f'v_add_u32_dpp v{c+8}, v{c+8}, v{c+8} {m} bank_mask:0xf')
        a(f'''v_sub_u32 v{c+4}, v{c+8}, v{c+4}
v_add_u32 v{c+5}, v{c+4}, v{c}
v_add_u32 v{c+6}, v{c+4}, v{c+6}
v_add_u32 v{c+7}, v{c+4}, v{c+7}
ds_write_b128 v{c+9}, v[{c+4}:{c+7}] offset:1040''')
    a(f'''s_cmp_ge_u32 s{sW}, 14
s_cbranch_scc1 L_p1_b3''')
    scan(L_CNT1,58,False)
    a(f'''s_cmp_lg_u32 s{sW}, 13
s_cbranch_scc1 L_p1_sc''')
    for j in range(4): a(f'v_lshl_or_b32 v{58+j}, v{58+j}, 16, v{62+j}')
    a(f'''s_lshl_b32 s{sA}, s2, 10
s_add_u32 s{sA}, s{sA}, {OFFS}
v_lshlrev_b32 v16, 4, v{LANE}
buffer_store_dwordx4 v[58:61], v16, s[{sWS}:{sWS+3}], s{sA} offen sc1
s_branch L_p1_b3
L_p1_sc:
s_waitcnt lgkmcnt(0)''')
    for j in range(4):
        if j<2: a(f'v_cmpx_gt_u32 vcc, {CH-j}, v2')
        a(f'ds_read_b32 v{16+j}, v{12+j} offset:1040')
    a('s_mov_b64 exec, -1')
    for j in range(4):
        a(f'''s_waitcnt lgkmcnt(3)
v_add_lshl_u32 v{16+j}, v{16+j}, v{20+j}, 2
v_add_u32 v{16+j}, {L_W}, v{16+j}
{'v_cmpx_gt_u32 vcc, %d, v2'%(CH-j) if j<2 else ''}
ds_write_b32 v{16+j}, v{8+j}''')
    a('s_mov_b64 exec, -1')
    a(f'''L_p1_b3:
s_waitcnt lgkmcnt(0)
s_barrier
s_cmp_lt_u32 s{sW}, 13
s_cbranch_scc1 L_p1_st
s_cmp_lg_u32 s{sW}, 15
s_cbranch_scc1 L_g0
v_mov_b32 v16, 0
L_w15p:
buffer_load_dword v17, v16, s[{sDB}:{sDB+3}], 0 offen sc1
s_waitcnt vmcnt(0)
v_readfirstlane_b32 s{sA}, v17
s_cmp_lg_u32 s{sA}, 0
s_cbranch_scc1 L_g0''')
    spin('L_w15p')
    a(f'''L_p1_st:
v_lshlrev_b32 v2, 4, v0
v_add_u32 v3, {L_W}, v2
ds_read_b128 v[4:7], v3
s_mul_i32 s{sA}, s2, {CHSTR}
v_cmp_gt_u32 vcc, {CHSTR}, v2
v_mov_b32 v3, {OOB}
v_cndmask_b32 v2, v3, v2, vcc
s_waitcnt lgkmcnt(0)
buffer_store_dwordx4 v[4:7], v2, s[{sWS}:{sWS+3}], s{sA} offen sc1
s_waitcnt vmcnt(1)
s_branch L_g0b
L_g0:
s_waitcnt vmcnt(0)
L_g0b:
v_mov_b32 v68, v0
v_xor_b32 v{DA}, 0x2000, v{SA}
v_xor_b32 v{DA+1}, 0x2000, v{SA+1}''')
    for i in range(2):
        a(f'v_lshlrev_b32 v{26+i}, 16, v{26+i}')
        for c in range(4):
            a(f'''v_lshlrev_b32 v8, 16, v{X+4*i+c}
v_and_b32 v9, 0xffff0000, v{X+4*i+c}
v_mul_f32 v8, v8, v{26+i}
v_mul_f32 v9, v9, v{26+i}
v_cvt_pk_bf16_f32 v{X+8+4*i+c}, v8, v9''')
        a(f'''s_cmp_eq_u32 s{sW}, 15
s_cbranch_scc1 L_g0s{i}
buffer_store_dwordx4 v[{X+8+4*i}:{X+11+4*i}], v{SA+i}, s[{sTOUT}:{sTOUT+3}], 0 offen sc1
buffer_store_dwordx4 v[{X+8+4*i}:{X+11+4*i}], v{DA+i}, s[{sTOUT}:{sTOUT+3}], 0 offen sc1
L_g0s{i}:''')
    a(f'''s_waitcnt vmcnt(4)
s_barrier''')
    st(3)
    def signal(t0=16,t1=17):
        l=L('ns')
        a(f'''s_lshl_b32 s{sA}, s{sEV}, 10
s_and_b32 s{sB}, s2, 7
s_lshl_b32 s{sB}, s{sB}, 7
s_add_u32 s{sA}, s{sA}, s{sB}
s_mov_b32 s{sB}, 1
s_waitcnt lgkmcnt(0)
s_atomic_add s{sB}, s[92:93], s{sA} glc
s_add_u32 s{sC}, s{sA}, {SYNC+8192}
v_mov_b32 v{t0}, 0
v_mov_b32 v{t1}, 1
s_waitcnt lgkmcnt(0)
s_cmp_lg_u32 s{sB}, 31
s_cbranch_scc1 {l}
s_mov_b64 exec, 1
buffer_store_dword v{t1}, v{t0}, s[{sWS}:{sWS+3}], s{sC} offen sc1
s_mov_b64 exec, -1
{l}:''')
    def poll():
        l=L('pl'); d=L('pd')
        a(f'''s_lshl_b32 s{sA}, s{sEV}, 10
s_add_u32 s{sA}, s{sA}, {SYNC+8192}
v_lshlrev_b32 v16, 7, v{LANE}
s_mov_b64 exec, 0xff
{l}:
buffer_load_dword v17, v16, s[{sWS}:{sWS+3}], s{sA} offen sc1
s_waitcnt vmcnt(0)
v_cmp_eq_u32 vcc, 0, v17
s_cbranch_vccz {d}''')
        spin(l)
        a(f'''{d}:
s_mov_b64 exec, -1''')
    def gstore():
        a(f'v_mul_f32 v{TMP}, v{S1}, v{DIS}')
        for t in range(4):
            for r in range(4): a(f'v_mul_f32 v{X+r}, v{TMP}, v{ACC+4*t+r}')
            a(f'''v_cvt_pk_bf16_f32 v{AOP+2*t}, v{X}, v{X+1}
v_cvt_pk_bf16_f32 v{AOP+2*t+1}, v{X+2}, v{X+3}
ds_write_b64 v{SWA}, v[{AOP+2*t}:{AOP+2*t+1}] offset:{32*t}''')
        a(f'''v_xor_b32 v{DA}, 0x2000, v{SA}
v_xor_b32 v{DA+1}, 0x2000, v{SA+1}
s_waitcnt lgkmcnt(0)
ds_read_b128 v[{X+8}:{X+11}], v{SRA}
ds_read_b128 v[{X+12}:{X+15}], v{SRA} offset:1152
s_waitcnt lgkmcnt(1)
buffer_store_dwordx4 v[{X+8}:{X+11}], v{SA}, s[{sTOUT}:{sTOUT+3}], 0 offen sc1
buffer_store_dwordx4 v[{X+8}:{X+11}], v{DA}, s[{sTOUT}:{sTOUT+3}], 0 offen sc1
s_waitcnt lgkmcnt(0)
buffer_store_dwordx4 v[{X+12}:{X+15}], v{SA+1}, s[{sTOUT}:{sTOUT+3}], 0 offen sc1
buffer_store_dwordx4 v[{X+12}:{X+15}], v{DA+1}, s[{sTOUT}:{sTOUT+3}], 0 offen sc1''')
    def allq(r,t):
        a(f'''v_mov_b32 v{t}, v{r}
v_permlane16_swap_b32 v{t}, v{r}
v_add_f32 v{r}, v{r}, v{t}
v_mov_b32 v{t}, v{r}
v_permlane32_swap_b32 v{t}, v{r}
v_add_f32 v{r}, v{r}, v{t}''')
    def stats():
        for i in range(2): a(f'v_add_f32 v{X+i}, v{ACC+i}, v{ACC+2+i}')
        for i in range(2): a(f'v_mul_f32 v{X+4+i}, v{ACC+i}, v{ACC+i}')
        for i in range(2,16):
            if i>=4: a(f'v_add_f32 v{X+i%2}, v{X+i%2}, v{ACC+i}')
            a(f'v_fmac_f32 v{X+4+i%2}, v{ACC+i}, v{ACC+i}')
        a(f'''v_add_f32 v{X}, v{X}, v{X+1}
v_add_f32 v{X+4}, v{X+4}, v{X+5}
v_mul_f32 v{X+5}, v{S1}, v{S1}
v_permlane16_swap_b32 v{X}, v{X+4}
v_add_f32 v{X}, v{X}, v{X+4}
v_mov_b32 v{X+4}, v{X}
v_mov_b32 v{X+6}, {fb(1e-5):#x}
v_permlane32_swap_b32 v{X}, v{X+4}
v_add_f32 v{X}, v{X}, v{X+4}
v_mul_f32 v{X}, {fb(1/64):#x}, v{X}
v_mov_b32 v{X+4}, v{X}
s_lshl_b32 s{sA}, s{sK}, 3
v_add_u32 v{X+7}, s{sA}, v{STA}
v_permlane16_swap_b32 v{X}, v{X+4}
v_fma_f32 v{X+4}, -v{X}, v{X}, v{X+4}
v_max_f32 v{X+4}, 0, v{X+4}
v_fmac_f32 v{X+6}, v{X+5}, v{X+4}      ; var+eps
v_rsq_f32 v{X+5}, v{X+6}
v_mul_f32 v{X+3}, v{X}, v{S1}          ; mu
v_mul_f32 v{X+2}, v{X+6}, v{X+5}       ; sigma
v_mul_f32 v{X+4}, v{X+5}, v{S1}
v_mul_f32 v{X+5}, v{X+5}, v{X+3}
ds_write_b64 v{X+7}, v[{X+2}:{X+3}] offset:{L_ST}''')
        for t in range(4):
            for r in range(4): a(f'v_fma_f32 v{ACC+4*t+r}, v{X+4}, v{ACC+4*t+r}, -v{X+5}')
            a(f'''v_cvt_pk_bf16_f32 v{AOP+2*t}, v{ACC+4*t}, v{ACC+4*t+1}
v_cvt_pk_bf16_f32 v{AOP+2*t+1}, v{ACC+4*t+2}, v{ACC+4*t+3}
ds_write_b64 v{SWA}, v[{AOP+2*t}:{AOP+2*t+1}] offset:{2304+32*t}''')
        a(f'''s_lshl_b32 s{sA}, 0x01010101, s{sK}
s_mov_b32 exec_lo, s{sA}
s_mov_b32 exec_hi, s{sA}
s_waitcnt lgkmcnt(0)''')
        for p in range(7):
            for s in range(2): a(f'ds_read_b128 v[{T(p)+4*s}:{T(p)+4*s+3}], v{TRD} offset:{2304+288*p+64*s}')
        a(f'''s_mov_b64 exec, -1
s_waitcnt lgkmcnt(0)''')
    a(f'''s_mov_b32 s{sEV}, 0
s_mov_b32 s{sK}, 0
s_cmp_lg_u32 s{sW}, 15
s_cbranch_scc1 L_e0''')
    signal()
    a(f'''L_e0:
s_getreg_b32 s{sXC}, hwreg(HW_REG_XCC_ID, 0, 3)
s_lshl_b32 s{sXC}, s{sXC}, 7
s_add_u32 s{sXC}, s{sXC}, 16384
s_cmp_lg_u32 s{sW}, 14
s_cbranch_scc1 L_e1
; wave 14: timed memory-side round trips to copy 1 / copy 0, alternating; publish the best per die
s_setprio 3
s_waitcnt lgkmcnt(0)
s_mov_b32 s{sC}, 0
s_mov_b32 s{sPM}, 0
s_mov_b32 s{sPM2}, 0
L_pr:
s_mov_b32 s{sB}, 1
s_memtime s[{sP0}:{sP0+1}]
s_waitcnt lgkmcnt(0)
s_atomic_add s{sB}, s[90:91], s{sPA} glc
s_waitcnt lgkmcnt(0)
s_memtime s[{sP1}:{sP1+1}]
s_waitcnt lgkmcnt(0)
s_sub_u32 s{sB}, s{sP0}, s{sP1}
{('s_sub_u32 s80, 0, s%d'%sB+chr(10)+'s_lshl_b32 s%d, s%d, 3'%(sD,sC)+chr(10)+'s_add_u32 m0, s%d, 15'%sD+chr(10)+'s_nop 0'+chr(10)+'v_writelane_b32 v%d, s80, m0'%TS) if stamp else ''}
s_max_u32 s{sB}, s{sPM}, s{sB}
s_mov_b32 s{sPM}, s{sPM2}
s_mov_b32 s{sPM2}, s{sB}
s_xor_b32 s{sPA}, s{sPA}, 0x2000
s_add_u32 s{sC}, s{sC}, 1
s_cmp_lt_u32 s{sC}, {2*reps}
s_cbranch_scc1 L_pr
s_add_u32 s{sB}, s{sXC}, 4
s_atomic_umax s{sPM}, s[92:93], s{sXC} glc
s_atomic_umax s{sPM2}, s[92:93], s{sB} glc
s_setprio 0
L_e1:
ds_write_b128 v{SRA}, v[{X}:{X+3}]
ds_write_b128 v{SRA}, v[{X+4}:{X+7}] offset:1152
v_lshrrev_b32 v8, 3, v{LANE}
v_lshl_add_u32 v8, v8, 2, s{sRB}
ds_write2_b32 v8, v26, v27 offset0:{4608//4-1024} offset1:{4608//4-1024+8}
v_and_b32 v9, 15, v{LANE}
v_lshl_add_u32 v9, v9, 2, s{sRB}
s_waitcnt lgkmcnt(0)'''.replace('v_lshl_add_u32 v8, v8, 2, s%d'%sRB,'v_lshl_add_u32 v8, v8, 2, s%d\nv_add_u32 v8, 4096, v8'%sRB))
    for t in range(4): a(f'ds_read_b64 v[{X+2*t}:{X+2*t+1}], v{SWA} offset:{32*t}')
    a(f'''ds_read_b32 v{DIS}, v9 offset:4608
s_waitcnt lgkmcnt(0)''')
    for i in range(8):
        a(f'''v_lshlrev_b32 v{ACC+2*i}, 16, v{X+i}
v_and_b32 v{ACC+2*i+1}, 0xffff0000, v{X+i}''')
    stats()
    a(f'''v_mul_f32 v{S1}, 0.5, v{DIS}
s_cmp_lg_u32 s{sW}, 15
s_cbranch_scc1 L_e0w''')
    poll()
    for i in range(2):
        a(f'''buffer_store_dwordx4 v[{X+8+4*i}:{X+11+4*i}], v{SA+i}, s[{sTOUT}:{sTOUT+3}], 0 offen sc1
buffer_store_dwordx4 v[{X+8+4*i}:{X+11+4*i}], v{DA+i}, s[{sTOUT}:{sTOUT+3}], 0 offen sc1''')
    a(f'''L_e0w:
s_barrier''')
    st(4)
    a(f'''s_and_b32 s{sBK}, s2, 7
s_lshl_b32 s{sBK}, s{sBK}, 5
s_lshr_b32 s{sA}, s2, 3
s_add_u32 s{sBK}, s{sBK}, s{sA}
s_lshl_b32 s{sBK}, s{sBK}, 2
s_add_u32 s{sBK}, s{sBK}, {OFFS}
v_lshrrev_b32 v1, 2, v68               ; segment
v_lshlrev_b32 v2, 10, v1
buffer_load_dword v3, v2, s[{sWS}:{sWS+3}], s{sBK} offen sc1
s_mov_b32 s{sEV}, 1
v_mul_u32_u24 v1, {CHSTR}, v1
v_and_b32 v2, 3, v68
v_lshlrev_b32 v2, 2, v2                ; 4*sub
s_waitcnt vmcnt(0)
v_and_b32 v4, 0xffff, v3
v_lshrrev_b32 v3, 16, v3               ; count
v_add_u32 v4, v4, v2
v_lshl_add_u32 v4, v4, 2, v1
v_sub_u32 v3, v3, v2
buffer_load_dwordx4 v[8:11], v4, s[{sWS}:{sWS+3}], 0 offen sc1
v_cmp_lt_i32 vcc, 16, v3
v_mov_b32 v5, {OOB}
v_cndmask_b32 v5, v5, v4, vcc
buffer_load_dwordx4 v[12:15], v5, s[{sWS}:{sWS+3}], 0 offen offset:64 sc1
v_cmp_lt_i32 vcc, 32, v3
v_mov_b32 v6, 1
v_mov_b32 v7, {L_MISC}
s_cbranch_vccz L_p2b
ds_write_b32 v7, v6
L_p2b:''')
    for j in range(8):
        if j%4==0: a(f's_waitcnt vmcnt({1-j//4})')
        a(f'''v_bfe_u32 v0, v{8+j}, 17, 4            ; wave
v_bfe_u32 v1, v{8+j}, 12, 4            ; region
v_lshl_add_u32 v0, v0, 4, v1
v_lshlrev_b32 v0, 2, v0
v_add_u32 v{16+j}, {L_CNT2}, v0
v_cmpx_lt_i32 vcc, {j%4+16*(j//4)}, v3
ds_add_rtn_u32 v{X+j}, v{16+j}, v6''')
    a('s_mov_b64 exec, -1')
    a(f'''s_mov_b32 s{sM}, 0x11111111
s_mov_b32 s{sM+1}, 0x11111111
s_mov_b32 s{sM2}, 0x33333333
s_mov_b32 s{sM2+1}, 0x33333333
s_waitcnt lgkmcnt(0)
s_barrier''')
    st(5)
    a(f'''v_mov_b32 v2, {SYNC}
buffer_load_dwordx2 v[6:7], v2, s[{sWS}:{sWS+3}], s{sXC} offen sc1
s_cmp_lg_u32 s{sW}, 15
s_cbranch_scc1 L_p2a''')
    signal(0,1)
    a(f'''L_p2a:
v_mov_b32 v0, {L_MISC}
ds_read_b32 v1, v0''')
    scan(L_CNT2,58,True)
    a(f'''s_lshl_b32 s{sA}, s{sW}, 2
s_add_u32 s{sA}, s{sA}, 3
v_readlane_b32 s{sU}, v66, s{sA}
v_cmp_lt_u32 vcc, {CAP}, v66
v_readfirstlane_b32 s{sSLOW}, v1
s_or_b32 s{sA}, vcc_lo, vcc_hi
s_or_b32 s{sSLOW}, s{sSLOW}, s{sA}
{'s_mov_b32 s%d, 1'%sSLOW if force_slow else ''}
s_add_u32 s{sU}, s{sU}, 15
s_lshr_b32 s{sU}, s{sU}, 4
s_mov_b32 s{sNB}, {NBAR}
s_cmp_eq_u32 s{sSLOW}, 0
s_cbranch_scc1 L_p2c
s_mov_b32 s{sNB}, 0
s_mov_b32 s{sU}, 4
s_branch L_p2d
L_p2c:
s_waitcnt lgkmcnt(0)''')
    for j in range(8): a(f'v_cmpx_lt_i32 vcc, {j%4+16*(j//4)}, v3\nds_read_b32 v{24+j}, v{16+j} offset:1040')
    a('s_mov_b64 exec, -1')
    def conv(e,ad,col,t):
        a(f'''v_and_b32 v{t}, 0xffc0, v{e}
v_and_b32 v{ad}, 0xffff, v{e}
v_add_u32 v{t}, v{t}, v{ad}
v_and_b32 v{ad}, 0x2000, v{e}
v_lshl_add_u32 v{ad}, v{t}, 7, v{ad}
v_bfe_u32 v{col}, v{e}, 21, 3
v_bfe_u32 v{t}, v{e}, 16, 1
v_lshl_add_u32 v{col}, v{col}, 1, v{t}''')
    a(f's_movk_i32 s{sA}, {WSTR}')
    for j in range(8):
        conv(8+j,0,1,2)
        a(f'''v_bfe_u32 v2, v{8+j}, 17, 4
v_mul_u32_u24 v2, s{sA}, v2
{'s_waitcnt lgkmcnt(0)' if j==0 else ''}
v_add_u32 v4, v{24+j}, v{X+j}
v_add_u32 v5, v2, v4
v_lshl_add_u32 v4, v4, 2, v2
v_cmpx_lt_i32 vcc, {j%4+16*(j//4)}, v3
ds_write_b32 v4, v0 offset:{L_AL}
ds_write_b8 v5, v1 offset:{L_CL}''')
    a('s_mov_b64 exec, -1')
    a(f'''L_p2d:
s_waitcnt vmcnt(0)
v_cmp_gt_u32 s[{sM}:{sM+1}], v6, v7
v_mov_b32 v5, 0x2000
v_cndmask_b32 v5, 0, v5, s[{sM}:{sM+1}]
v_or_b32 v{LO}, v{LO}, v5
v_or_b32 v{LO+1}, v{LO+1}, v5
s_cmp_lg_u32 s{sW}, 15
s_cbranch_scc1 L_p2e''')
    poll()
    a(f'''L_p2e:
s_waitcnt lgkmcnt(0)
s_barrier''')
    st(6)
    a(f'''s_cmp_lg_u32 s2, 255
s_cbranch_scc1 L_hop
v_bfe_u32 v0, v{LANE}, 2, 2
v_and_b32 v1, 3, v{LANE}
v_lshl_add_u32 v0, v0, 3, v1           ; 8*(i>>2)+(i&3)
v_lshrrev_b32 v1, 4, v{LANE}           ; q
s_and_b32 s{sA}, s{sW}, 1
s_lshl_b32 s{sA}, s{sA}, 12            ; s*32 rows*128B
s_and_b32 s{sB}, s{sW}, 4
s_lshl_b32 s{sB}, s{sB}, 3
s_and_b32 s{sC}, s{sW}, 2
s_lshl_b32 s{sC}, s{sC}, 1
s_add_u32 s{sB}, s{sB}, s{sC}
v_lshlrev_b32 v2, 7, v0
v_lshl_add_u32 v2, v1, 4, v2           ; row*128 + q*16
s_cmp_ge_u32 s{sW}, 8
s_cbranch_scc1 L_jw''')
    srd(sT1,12,8192); srd(sT2,14,8192)
    a(f'''s_lshl_b32 s{sB}, s{sB}, 7
buffer_load_dwordx4 v[24:27], v2, s[{sT2}:{sT2+3}], s{sB} offen
buffer_load_dwordx4 v[28:31], v2, s[{sT2}:{sT2+3}], s{sB} offen offset:64
s_mov_b32 s{sC}, {fb(0.125*LOG2E):#x}
s_branch L_jm
L_jw:''')
    srd(sT1,16,8192); srd(sT2,18,8192)
    a(f'''s_lshl_b32 s{sB}, s{sB}, 1
v_lshlrev_b32 v3, 1, v0
v_lshl_add_u32 v3, v1, 10, v3          ; (8q)*128 + col*2
v_add_u32 v4, 4096, v3''')
    for s in range(2):
        for j in range(8):
            a(f'buffer_load_ushort v{X+8*s+j}, v{3+s}, s[{sT2}:{sT2+3}], s{sB} offen offset:{128*j}')
    a('s_waitcnt vmcnt(0)')
    for i in range(8): a(f'v_lshl_or_b32 v{24+i}, v{X+2*i+1}, 16, v{X+2*i}')
    a(f'''s_mov_b32 s{sC}, 1.0
L_jm:
buffer_load_dwordx4 v[8:11], v2, s[{sT1}:{sT1+3}], s{sA} offen
buffer_load_dwordx4 v[12:15], v2, s[{sT1}:{sT1+3}], s{sA} offen offset:64
buffer_load_dwordx4 v[16:19], v2, s[{sT1}:{sT1+3}], s{sA} offen offset:512
buffer_load_dwordx4 v[20:23], v2, s[{sT1}:{sT1+3}], s{sA} offen offset:576
s_lshl_b32 s{sD}, s{sW}, 10
s_add_u32 s{sD}, s{sD}, {WGT}
v_lshlrev_b32 v5, 4, v{LANE}
s_waitcnt vmcnt(0)
v_mfma_f32_16x16x32_bf16 v[{X}:{X+3}], v[8:11], v[24:27], 0
v_mfma_f32_16x16x32_bf16 v[{X+4}:{X+7}], v[16:19], v[24:27], 0
v_mfma_f32_16x16x32_bf16 v[{X}:{X+3}], v[12:15], v[28:31], v[{X}:{X+3}]
v_mfma_f32_16x16x32_bf16 v[{X+4}:{X+7}], v[20:23], v[28:31], v[{X+4}:{X+7}]''')
    for i in range(8): a(f'v_mul_f32 v{X+i}, s{sC}, v{X+i}')
    for i in range(4): a(f'v_cvt_pk_bf16_f32 v{12+i}, v{X+2*i}, v{X+2*i+1}')
    a(f'''buffer_store_dwordx4 v[12:15], v5, s[{sWS}:{sWS+3}], s{sD} offen sc1
s_cmp_ge_u32 s{sW}, 2
s_cbranch_scc1 L_jend''')
    srd(sT1,20,128)
    a(f'''v_lshlrev_b32 v2, 4, v1
s_lshl_b32 s{sA}, s{sW}, 6
buffer_load_dwordx4 v[8:11], v2, s[{sT1}:{sT1+3}], s{sA} offen
v_lshlrev_b32 v3, 1, v{LANE}
buffer_load_ushort v4, v3, s[{sT1}:{sT1+3}], 0 offen
s_mov_b32 s{sM}, 0x11111111
s_mov_b32 s{sM+1}, 0x11111111
s_mov_b32 s{sM2}, 0x22222222
s_mov_b32 s{sM2+1}, 0x22222222
v_mov_b32 v6, 0x3f803f80
v_cndmask_b32 v6, 0, v6, s[{sM}:{sM+1}]
s_add_u32 s{sD}, s{sD}, 16384
s_waitcnt vmcnt(0)''')
    for i in range(4): a(f'v_cndmask_b32 v{8+i}, v6, v{8+i}, s[{sM2}:{sM2+1}]')
    a(f'''buffer_store_dwordx4 v[8:11], v5, s[{sWS}:{sWS+3}], s{sD} offen sc1
v_lshlrev_b32 v4, 16, v4''')
    for m in ('quad_perm:[1,0,3,2]','quad_perm:[2,3,0,1]','row_half_mirror','row_mirror'):
        a(f'v_add_f32_dpp v4, v4, v4 {m} row_mask:0xf bank_mask:0xf')
    allq(4,6)
    a(f'''s_mov_b32 s{sA}, {WGT+18432}
v_lshlrev_b32 v3, 2, v{LANE}
buffer_store_dword v4, v3, s[{sWS}:{sWS+3}], s{sA} offen sc1
L_jend:
s_waitcnt vmcnt(0)''')
    a(f'''L_hop:
s_add_u32 s{sK}, s{sK}, 1
s_add_u32 s{sSI}, s{sSI}, 8
s_add_u32 s{sTOUT}, s{sTOUT}, {TSTR}
s_addc_u32 s{sTOUT+1}, s{sTOUT+1}, 0''')
    for i in range(16): a(f'v_mov_b32 v{ACC+i}, 0')
    a(f'''s_mov_b32 s{sSEG}, 0
s_mov_b32 s{sOFF}, 0
s_mov_b32 s{sCNT}, 0
''')
    st(0)
    a(f'''s_cmp_eq_u32 s{sSLOW}, 0
s_cbranch_scc1 L_gather
L_slow:
s_cmp_lt_u32 s{sOFF}, s{sCNT}
s_cbranch_scc1 L_slow2
s_cmp_ge_u32 s{sSEG}, 256
s_cbranch_scc1 L_gdone
s_lshl_b32 s{sA}, s{sSEG}, 10
v_mov_b32 v16, s{sA}
buffer_load_dword v17, v16, s[{sWS}:{sWS+3}], s{sBK} offen sc1
s_mul_i32 s{sSTART}, s{sSEG}, {CHSTR}
s_add_u32 s{sSEG}, s{sSEG}, 1
s_mov_b32 s{sOFF}, 0
s_waitcnt vmcnt(0)
v_readfirstlane_b32 s{sA}, v17
s_lshr_b32 s{sCNT}, s{sA}, 16
s_and_b32 s{sA}, s{sA}, 0xffff
s_lshl_b32 s{sA}, s{sA}, 2
s_add_u32 s{sSTART}, s{sSTART}, s{sA}
s_branch L_slow
L_slow2:
v_add_u32 v16, s{sOFF}, v{LANE}
v_lshl_add_u32 v17, v16, 2, s{sSTART}
buffer_load_dword v18, v17, s[{sWS}:{sWS+3}], 0 offen sc1
s_add_u32 s{sOFF}, s{sOFF}, 64
v_cmp_gt_u32 s[{sM}:{sM+1}], s{sCNT}, v16
s_waitcnt vmcnt(0)
v_bfe_u32 v19, v18, 17, 4
v_cmp_eq_u32 vcc, s{sW}, v19
s_and_b64 s[{sM}:{sM+1}], s[{sM}:{sM+1}], vcc''')
    conv(18,20,21,22)
    a(f'''v_mov_b32 v22, {OOB}
v_cndmask_b32 v20, v22, v20, s[{sM}:{sM+1}]
v_lshl_add_u32 v22, v{LANE}, 2, s{sRB}
v_add_u32 v23, s{sRB}, v{LANE}
ds_write_b32 v22, v20 offset:{L_AL}
ds_write_b8 v23, v21 offset:{L_CL}
s_waitcnt lgkmcnt(0)''')
    def issue(b,e):
        a(f'''v_xor_b32 v{DA}, v{e}, v{LO}
v_xor_b32 v{DA+1}, v{e+1}, v{LO+1}
s_add_u32 m0, s{sRB}, {2048*b}
buffer_load_dwordx4 v{DA}, s[{sTIN}:{sTIN+3}], 0 offen sc1 lds
s_add_u32 m0, s{sRB}, {2048*b+1024}
buffer_load_dwordx4 v{DA+1}, s[{sTIN}:{sTIN+3}], 0 offen sc1 lds''')
    a(f'''L_gather:
{'s_setprio 3' if prio else ''}
v_lshrrev_b32 v{AP}, 3, v{LANE}
v_lshl_add_u32 v{AP}, v{AP}, 3, s{sRB}
v_lshrrev_b32 v{CP}, 4, v{LANE}
v_lshl_add_u32 v{CP}, v{CP}, 2, s{sRB}''')
    for b in range(R): a(f'ds_read_b64 v[{X+2*b}:{X+2*b+1}], v{AP} offset:{L_AL+64*b}')
    a(f'''ds_read_b64 v[{EN}:{EN+1}], v{AP} offset:{L_AL+64*R}
s_mov_b32 s{sREM}, s{sU}
s_mov_b32 s{sBA}, {R*(NBAR+1)}
s_mov_b32 s{sBD}, 0
s_waitcnt lgkmcnt(0)''')
    for b in range(R):
        a(f'''s_cmp_le_u32 s{sU}, {b}
s_cbranch_scc1 L_gl''')
        issue(b,X+2*b)
    a('L_gl:')
    for b in range(R):
        a(f'''s_cmp_ge_u32 s{sREM}, {R}
s_cbranch_scc1 L_gw{b}
s_cmp_eq_u32 s{sREM}, 0
s_cbranch_scc1 L_gend''')
        for m in range(R-1,1,-1):
            a(f'''s_waitcnt vmcnt({2*(m-1)})
s_cmp_eq_u32 s{sREM}, {m}
s_cbranch_scc1 L_gw{b}''')
        a(f'''s_waitcnt vmcnt(0)
L_gw{b}:
s_waitcnt vmcnt({2*(R-1)})''')
        a(f'ds_read_b32 v{COLW}, v{CP} offset:{L_CL+16*b}')
        for t in range(4 if 'tr' not in skip else 0): a(f'ds_read_b64_tr_b16 v[{AOP+2*t}:{AOP+2*t+1}], v{TRA+t} offset:{2048*b}')
        a(f'''s_waitcnt lgkmcnt(4)
v_xad_u32 v{TMP}, v{COLW}, v{NOTN}, s{sK1}
v_and_b32 v{B1}, s{sK2}, v{TMP}
v_lshlrev_b32 v{TMP}, 8, v{TMP}
v_and_b32 v{B0}, s{sK2}, v{TMP}
s_cmp_le_u32 s{sREM}, {R}
s_waitcnt lgkmcnt(0)
s_cbranch_scc1 L_gn{b}''')
        issue(b,EN)
        a(f'''ds_read_b64 v[{EN}:{EN+1}], v{AP} offset:{L_AL+64*(R+1+b)}
s_add_u32 s{sBA}, s{sBA}, {NBAR+1}''')
        if prio:
            a(f'''s_lshl_b32 s{sA}, s{sBA}, 2
s_setprio 3
s_cmp_lt_u32 s{sA}, s{sU}
s_cbranch_scc1 L_gn{b}
s_setprio 2
s_sub_u32 s{sA}, s{sA}, s{sU}
s_cmp_lt_u32 s{sA}, s{sU}
s_cbranch_scc1 L_gn{b}
s_setprio 1
s_sub_u32 s{sA}, s{sA}, s{sU}
s_cmp_lt_u32 s{sA}, s{sU}
s_cbranch_scc1 L_gn{b}
s_setprio 0''')
        a(f'L_gn{b}:')
        for t in range(4 if 'mfma' not in skip else 0): a(f'v_mfma_f32_16x16x16_bf16 v[{ACC+4*t}:{ACC+4*t+3}], v[{AOP+2*t}:{AOP+2*t+1}], v[{B0}:{B1}], v[{ACC+4*t}:{ACC+4*t+3}]')
        a(f's_sub_u32 s{sREM}, s{sREM}, 1')
        if NBAR:
            a(f'''L_gb{b}:
s_cmp_lt_u32 s{sBA}, s{sU}
s_cbranch_scc1 L_gc{b}
s_cmp_ge_u32 s{sBD}, s{sNB}
s_cbranch_scc1 L_gc{b}
s_sub_u32 s{sBA}, s{sBA}, s{sU}
s_add_u32 s{sBD}, s{sBD}, 1
s_barrier
{'s_setprio 3' if prio else ''}
s_branch L_gb{b}
L_gc{b}:''')
    a(f'''v_add_u32 v{AP}, {64*R}, v{AP}
v_add_u32 v{CP}, {16*R}, v{CP}
s_branch L_gl
L_gend:
s_waitcnt lgkmcnt(0)
s_cmp_ge_u32 s{sBD}, s{sNB}
s_cbranch_scc1 L_gend2
s_add_u32 s{sBD}, s{sBD}, 1
s_barrier
s_branch L_gend
L_gend2:
s_cmp_lg_u32 s{sSLOW}, 0
s_cbranch_scc1 L_slow
L_gdone:
{'s_setprio 0' if prio else ''}''')
    st(1)
    a(f'''s_cmp_eq_u32 s{sK}, 7
s_cbranch_scc1 L_final''')
    if sfirst: a('s_setprio 1')
    gstore()
    if sfirst: a('s_setprio 0')
    st(2)
    a(f'''s_add_u32 s{sEV}, s{sEV}, 1
s_add_u32 s{sTIN}, s{sTIN}, {TSTR}
s_addc_u32 s{sTIN+1}, s{sTIN+1}, 0
s_cmp_lg_u32 s{sW}, 15
s_cbranch_scc1 L_hA''')
    stats()
    a('''s_waitcnt vmcnt(0)
s_barrier''')
    signal()
    st(4)
    poll()
    a(f'''s_branch L_job
L_hA:''')
    if sfirst: stats()
    a('s_waitcnt vmcnt(0)')
    st(3)
    a('s_barrier')
    if not sfirst: stats()
    st(4)
    a(f'''L_job:
s_cmp_lg_u32 s{sK}, 2
s_cbranch_scc1 L_jpf0
s_lshl_b32 s{sA}, s{sW}, 10
s_add_u32 m0, s{sA}, {L_W}
s_add_u32 s{sA}, s{sA}, {WGT}
v_lshlrev_b32 v3, 4, v{LANE}
buffer_load_dwordx4 v3, s[{sWS}:{sWS+3}], s{sA} offen sc1 lds
s_cmp_ge_u32 s{sW}, 3
s_cbranch_scc1 L_hB
s_add_u32 m0, m0, 16384
s_add_u32 s{sA}, s{sA}, 16384
buffer_load_dwordx4 v3, s[{sWS}:{sWS+3}], s{sA} offen sc1 lds
s_branch L_hB
L_jpf0:
s_cmp_lg_u32 s{sW}, 14
s_cbranch_scc1 L_hB
L_jpf:
s_cmp_lg_u32 s{sK}, {6 if not nopf else 99}
s_cbranch_scc1 L_hB
s_getpc_b64 s[94:95]
L_pc2:
v_lshlrev_b32 v3, 7, v{LANE}
v_min_u32 v4, L_end-L_pc2, v3
global_load_dword v4, v4, s[94:95]
v_add_u32 v3, 8192, v3
v_min_u32 v3, L_end-L_pc2, v3
global_load_dword v5, v3, s[94:95]
s_waitcnt vmcnt(0)''')
    a(f'''L_hB:
s_waitcnt lgkmcnt(0)''')
    st(5)
    a('''s_barrier
s_branch L_hop''')
    a('L_final:')
    stats()
    st(2)
    if stamp:
        a(f'''s_lshl_b32 s{sA}, s2, 4
s_add_u32 s{sA}, s{sA}, s{sW}
s_lshl_b32 s{sA}, s{sA}, 8
s_add_u32 s88, s{sA}, {STAMP}
v_lshlrev_b32 v16, 2, v{LANE}
buffer_store_dword v{TS}, v16, s[{sWS}:{sWS+3}], s88 offen
s_waitcnt vmcnt(0)''')
        if dbg:
            a(f'''s_cmp_lg_u32 s2, 100
s_cbranch_scc1 L_nodbg
s_cmp_lg_u32 s{sW}, 15
s_cbranch_scc1 L_nodbg
v_readlane_b32 s89, v{TS}, 0''')
            for i,l in enumerate((2,3,4,5,8,9,16,24,32,40,48,56,57)):
                a(f'''v_readlane_b32 s{sA}, v{TS}, {l}
s_sub_u32 s{sA}, s{sA}, s89
v_mov_b32 v16, s{sA}
v_mov_b32 v17, {4*(i+1)}
buffer_store_dword v16, v17, s[{sDB}:{sDB+3}], 0 offen''')
            a('L_nodbg:')
    def fst(i):
        if stamp: a(f'''s_memrealtime s[80:81]
s_waitcnt lgkmcnt(0)
s_mov_b32 s{82+i}, s80''')
    U=32; SAa=48; SBb=52; Y=56; P=62
    a(f'''v_lshlrev_b32 v{Y}, 4, v{LANE}
v_add_u32 v{Y}, {L_W}, v{Y}''')
    for f in range(8): a(f'ds_read_b128 v[{4*f}:{4*f+3}], v{Y} offset:{1024*f}')
    LN=TG+1; SG=TG
    a(f'''v_mov_b32 v{LN}, v{LANE}
v_lshrrev_b32 v{Y+1}, 5, v{LN}           ; q>>1
v_bfe_u32 v{Y+2}, v{LN}, 3, 1            ; b
v_xor_b32 v{Y+2}, v{Y+2}, v{Y+1}         ; invalid
v_and_b32 v{Y+3}, 7, v{LN}
v_lshl_add_u32 v{Y+3}, v{Y+1}, 3, v{Y+3}
v_lshlrev_b32 v{Y+3}, 3, v{Y+3}
v_lshl_add_u32 v{Y+3}, v{Y+2}, 7, v{Y+3}
v_add_u32 v{SG}, s{sRB}, v{Y+3}
s_waitcnt lgkmcnt(0)''')
    def scores(p,S):
        for s in range(2):
            for t in range(4):
                c='0' if s==0 else f'v[{U+4*t}:{U+4*t+3}]'
                a(f'v_mfma_f32_16x16x32_bf16 v[{U+4*t}:{U+4*t+3}], v[{8*t+4*s}:{8*t+4*s+3}], v[{T(p)+4*s}:{T(p)+4*s+3}], {c}')
        for i in range(8): a(f'v_cvt_pk_bf16_f32 v{U+i}, v{U+2*i}, v{U+2*i+1}')
        a(f'''v_mfma_f32_16x16x32_bf16 v[{S}:{S+3}], v[{T(p)}:{T(p)+3}], v[{U}:{U+3}], 0
v_mfma_f32_16x16x32_bf16 v[{S}:{S+3}], v[{T(p)+4}:{T(p)+7}], v[{U+4}:{U+7}], v[{S}:{S+3}]''')
    for g in range(4):
        if g==3:
            a(f'''s_cmp_ge_u32 s{sW}, 2
s_cbranch_scc1 L_f2''')
        a(f'ds_read_b32 v{Y+4}, v{SG} offset:{L_ST+256*g}')
        scores(2*g,SAa)
        if g<3:
            scores(2*g+1,SBb)
            for r in range(4):
                a(f'''v_mov_b32_dpp v{SAa+r}, v{SBb+r} row_ror:8 row_mask:0x3 bank_mask:0xc
v_mov_b32_dpp v{SAa+r}, v{SBb+r} row_ror:8 row_mask:0xc bank_mask:0x3''')
        S=SAa
        a(f'''v_max3_f32 v{Y}, v{S}, v{S+1}, v{S+2}
v_max_f32 v{Y}, v{Y}, v{S+3}
v_mov_b32 v{Y+1}, v{Y}
v_permlane16_swap_b32 v{Y+1}, v{Y}
v_max_f32 v{Y}, v{Y}, v{Y+1}''')
        for r in range(4): a(f'v_sub_f32 v{S+r}, v{S+r}, v{Y}')
        for r in range(4): a(f'v_exp_f32 v{S+r}, v{S+r}')
        a(f'''v_add_f32 v{Y}, v{S}, v{S+1}
v_add_f32 v{Y+1}, v{S+2}, v{S+3}
v_add_f32 v{Y}, v{Y}, v{Y+1}
v_mov_b32 v{Y+1}, v{Y}
v_permlane16_swap_b32 v{Y+1}, v{Y}
v_add_f32 v{Y}, v{Y}, v{Y+1}
s_waitcnt lgkmcnt(0)
v_mul_f32 v{Y}, v{Y}, v{Y+4}
v_rcp_f32 v{Y}, v{Y}''')
        for r in range(4): a(f'v_mul_f32 v{S+r}, v{S+r}, v{Y}')
        a(f'''v_cvt_pk_bf16_f32 v{P+2*g}, v{S}, v{S+1}
v_cvt_pk_bf16_f32 v{P+2*g+1}, v{S+2}, v{S+3}''')
    a('L_f2:')
    fst(0)
    OA=32; ZT=48; VM=56; OW=57; OT=58; GW=59; SAD=60; LN2=61
    LO_IMG=0; LG=4608; LS=LG+7*256; LWB=LS+7*128; LC=LWB+256
    assert LC+64<=L_ST
    a(f'''v_mov_b32 v{LN2}, v{LN}
v_lshlrev_b32 v{SAD}, 4, v{LN2}
v_add_u32 v{OA}, {L_W+8192}, v{SAD}
v_add_u32 v{SAD}, {L_SA}, v{SAD}''')
    for f in range(8): a(f'ds_read_b128 v[{4*f}:{4*f+3}], v{OA} offset:{1024*f}')
    a(f'''v_lshrrev_b32 v{OA+1}, 5, v{LN2}
v_bfe_u32 v{OA+2}, v{LN2}, 3, 1
v_xor_b32 v{OA+2}, v{OA+2}, v{OA+1}
v_add_u32 v{VM}, -1, v{OA+2}             ; valid ? ~0 : 0
v_and_b32 v{OA+1}, 15, v{LN2}            ; n
v_lshrrev_b32 v{OA+2}, 4, v{LN2}         ; q
v_mul_u32_u24 v{OA+3}, 144, v{OA+1}
v_lshl_add_u32 v{OA+3}, v{OA+2}, 4, v{OA+3}
v_add_u32 v{OW}, s{sRB}, v{OA+3}
v_lshrrev_b32 v{OA+3}, 2, v{LN2}         ; row 4q+r
v_mul_u32_u24 v{OA+3}, 144, v{OA+3}
v_and_b32 v{OA+4}, 3, v{LN2}
v_lshl_add_u32 v{OA+3}, v{OA+4}, 3, v{OA+3}
v_add_u32 v{OT}, s{sRB}, v{OA+3}
v_lshl_add_u32 v{GW}, v{OA+1}, 3, s{sRB}
v_add_u32 v{GW}, {LG}, v{GW}
v_lshlrev_b32 v{OA+2}, 2, v{OA+2}
v_sub_u32 v{OA+1}, v{OA+1}, v{OA+2}       ; m-4q
v_mov_b32 v{OA+3}, 0x3f80
v_mov_b32 v{OA+4}, 0x3f800000''')
    for h in range(2):
        a(f'''v_cmp_eq_u32 s[{sM}:{sM+1}], {2*h}, v{OA+1}
v_cmp_eq_u32 s[{sM2}:{sM2+1}], {2*h+1}, v{OA+1}
v_cndmask_b32 v{ZT+2+h}, 0, v{OA+3}, s[{sM}:{sM+1}]
v_cndmask_b32 v{ZT+2+h}, v{ZT+2+h}, v{OA+4}, s[{sM2}:{sM2+1}]
v_mov_b32 v{ZT+6+h}, v{ZT+2+h}''')
    a(f'''s_mov_b32 s{sM}, 0x00f0000f
s_mov_b32 s{sM+1}, 0xf0000f00
s_waitcnt lgkmcnt(0)''')
    def o2reg(p,t):
        g=p//2
        return (TG+16*g+4*t+2*(p&1)) if p<6 else (TG+48+2*t)
    for p in range(7):
        if p==6:
            a(f'''s_cmp_ge_u32 s{sW}, 2
s_cbranch_scc1 L_f3''')
        tp=T(p); pm=P+2*(p//2)
        for s in range(2):
            for t in range(4):
                c='0' if s==0 else f'v[{OA+4*t}:{OA+4*t+3}]'
                a(f'v_mfma_f32_16x16x32_bf16 v[{OA+4*t}:{OA+4*t+3}], v[{tp+4*s}:{tp+4*s+3}], v[{8*t+4*s}:{8*t+4*s+3}], {c}')
        for t in range(4):
            z=ZT+4*(t&1); b=tp-2+2*t
            if t==0:
                for h in range(2):
                    if p&1: a(f'v_and_b32_dpp v{b+h}, v{pm+h}, v{VM} row_ror:8 row_mask:0xf bank_mask:0xf')
                    else: a(f'v_and_b32 v{b+h}, v{pm+h}, v{VM}')
            else: a(f'v_mov_b64 v[{b}:{b+1}], v[{b-2}:{b-1}]')
            a(f'''v_cvt_pk_bf16_f32 v{z}, v{OA+4*t}, v{OA+4*t+1}
v_cvt_pk_bf16_f32 v{z+1}, v{OA+4*t+2}, v{OA+4*t+3}
v_mfma_f32_16x16x32_bf16 v[{OA+4*t}:{OA+4*t+3}], v[{z}:{z+3}], v[{b}:{b+3}], 0''')
        ob=tp-2
        for i in range(8): a(f'v_cvt_pk_bf16_f32 v{ob+i}, v{OA+2*i}, v{OA+2*i+1}')
        img=LO_IMG+2304*(p&1)
        a(f'''ds_read_b128 v[{OA}:{OA+3}], v{SAD}
ds_read_b128 v[{OA+4}:{OA+7}], v{SAD} offset:1024
ds_write_b128 v{OW}, v[{ob}:{ob+3}] offset:{img}
ds_write_b128 v{OW}, v[{ob+4}:{ob+7}] offset:{img+64}
v_mfma_f32_16x16x32_bf16 v[{OA+8}:{OA+11}], v[{ob}:{ob+3}], v[{ob}:{ob+3}], 0
v_mfma_f32_16x16x32_bf16 v[{OA+8}:{OA+11}], v[{ob+4}:{ob+7}], v[{ob+4}:{ob+7}], v[{OA+8}:{OA+11}]
s_waitcnt lgkmcnt(2)
v_mfma_f32_16x16x32_bf16 v[{OA+12}:{OA+15}], v[{OA}:{OA+3}], v[{ob}:{ob+3}], 0
v_mfma_f32_16x16x32_bf16 v[{OA+12}:{OA+15}], v[{OA+4}:{OA+7}], v[{ob+4}:{ob+7}], v[{OA+12}:{OA+15}]
s_mov_b64 exec, s[{sM}:{sM+1}]
ds_write2_b64 v{GW}, v[{OA+8}:{OA+9}], v[{OA+10}:{OA+11}] offset0:{(256*p)//8} offset1:{(256*p+128)//8}''')
        a(f'''ds_write_b64 v{GW}, v[{OA+12}:{OA+13}] offset:{7*256+128*p}
s_mov_b64 exec, -1''')
        if p&1 or p==6:
            a('s_waitcnt lgkmcnt(2)')
            for pp in ((p-1,p) if p<6 else (6,)):
                for t in range(4):
                    r=o2reg(pp,t)
                    a(f'ds_read_b64_tr_b16 v[{r}:{r+1}], v{OT} offset:{LO_IMG+2304*(pp&1)+32*t}')
        a('s_waitcnt lgkmcnt(0)')
    a('L_f3:')
    fst(1)
    F=0; K=16
    a(f'''v_lshl_add_u32 v{K}, v{LN2}, 3, s{sRB}          ; lane*8
v_lshrrev_b32 v{K+1}, 4, v{LN2}                 ; q
v_bfe_u32 v{K+2}, v{LN2}, 1, 1
v_add_u32 v{K+2}, v{K+2}, v{K+1}
v_lshl_add_u32 v{K+2}, v{K+2}, 7, v{K}
v_and_b32 v{K+3}, 1, v{LN2}
v_lshl_add_u32 v{K+2}, v{K+3}, 2, v{K+2}
v_mov_b32 v{K+3}, {L_SH+2048}
ds_read_b32 v{K+3}, v{K+3}''')
    Rr=lambda h:24+10*h
    for h in range(2):
        r=Rr(h)
        a(f'''ds_read_b32 v{r}, v{K+2} offset:{LG+1024*h}
ds_read_b64 v[{r+2}:{r+3}], v{K} offset:{LS+512*h}
ds_read_b64 v[{r+4}:{r+5}], v{K} offset:{L_ST+512*h}''')
    a(f'''v_lshl_add_u32 v{K+4}, v{LN2}, 1, s{sRB}        ; w write
v_lshrrev_b32 v{K+5}, 3, v{LN2}
v_lshl_add_u32 v{K+5}, v{K+5}, 2, s{sRB}        ; c write
v_lshl_add_u32 v{K+6}, v{K+1}, 3, s{sRB}        ; w read
v_and_b32 v{K+7}, 15, v{LN2}
v_lshl_add_u32 v{K+7}, v{K+7}, 2, s{sRB}        ; c read
s_waitcnt lgkmcnt(0)''')
    def both(txt):
        for ln in txt.strip().split('\n'):
            for h in range(2):
                r=Rr(h)
                a(ln.format(q=r,u=r+1,s=r+2,d=r+3,g=r+4,m=r+5,a=r+6,b=r+7,c=r+8,h=h,wo=LWB+128*h,co=LC+32*h))
    red=lambda op,x: '\n'.join(f'{op}_dpp v{{{x}}}, v{{{x}}}, v{{{x}}} {m} row_mask:0xf bank_mask:0xf' for m in('quad_perm:[1,0,3,2]','quad_perm:[2,3,0,1]','row_half_mirror'))
    both(f'''v_mul_f32 v{{s}}, {fb(1/64):#x}, v{{s}}
v_mul_f32 v{{q}}, {fb(1/64):#x}, v{{q}}
v_fma_f32 v{{q}}, -v{{s}}, v{{s}}, v{{q}}
v_max_f32 v{{q}}, 0, v{{q}}
v_mul_f32 v{{a}}, v{{g}}, v{{g}}
v_mov_b32 v{{b}}, {fb(1e-5):#x}
v_fmac_f32 v{{b}}, v{{a}}, v{{q}}
v_rsq_f32 v{{b}}, v{{b}}
v_fma_f32 v{{d}}, -v{{s}}, v{K+3}, v{{d}}
v_mul_f32 v{{a}}, {fb(LOG2E):#x}, v{{g}}
v_mul_f32 v{{d}}, v{{d}}, v{{a}}
v_mul_f32 v{{d}}, v{{d}}, v{{b}}
v_mov_b32 v{{a}}, v{{d}}
{red('v_max_f32','a')}
v_sub_f32 v{{d}}, v{{d}}, v{{a}}
v_exp_f32 v{{d}}, v{{d}}
v_mov_b32 v{{a}}, v{{d}}
v_mul_f32 v{{m}}, v{{m}}, v{{d}}
{red('v_add_f32','a')}
{red('v_add_f32','m')}
v_rcp_f32 v{{a}}, v{{a}}
v_mul_f32 v{{d}}, v{{d}}, v{{g}}
v_mul_f32 v{{d}}, v{{d}}, v{{a}}
v_mul_f32 v{{m}}, v{{m}}, v{{a}}
v_cvt_pk_bf16_f32 v{{d}}, v{{d}}, v{{d}}
ds_write_b16 v{K+4}, v{{d}} offset:{{wo}}
ds_write_b32 v{K+5}, v{{m}} offset:{{co}}''')
    WT=24; CI=40
    a('s_waitcnt lgkmcnt(0)')
    a(f'ds_read_b32 v{CI}, v{K+7} offset:{LC}')
    for p in range(7): a(f'ds_read_b64 v[{WT+2*p}:{WT+2*p+1}], v{K+6} offset:{LWB+32*p}')
    OAD=44
    srd(sT1,22,N*128)
    a(f'''v_and_b32 v{K}, 15, v{LN2}
v_mul_u32_u24 v{K}, 144, v{K}
v_add_u32 v{K}, v{K}, v{K+6}
v_lshrrev_b32 v{K+2}, 3, v{LN2}                 ; g
v_and_b32 v{K+3}, 7, v{LN2}
v_mul_u32_u24 v{K+1}, 144, v{K+2}
v_lshl_add_u32 v{K+1}, v{K+3}, 4, v{K+1}
v_add_u32 v{K+1}, s{sRB}, v{K+1}
v_lshrrev_b32 v{K+4}, 1, v{K+2}
v_lshlrev_b32 v{K+4}, 5, v{K+4}
v_and_b32 v{K+5}, 1, v{K+2}
s_lshl_b32 s{sB}, s{sW}, 1
v_add3_u32 v{K+4}, v{K+4}, v{K+5}, s{sB}         ; r
v_cmp_gt_u32 vcc, {NPW-128}, v{K+4}
s_mul_i32 s{sD}, s2, {NPW}
v_add_u32 v{K+4}, s{sD}, v{K+4}
v_lshlrev_b32 v{K+4}, 7, v{K+4}
v_lshl_add_u32 v{OAD}, v{K+3}, 4, v{K+4}
v_add_u32 v{OAD+1}, {128*128}, v{OAD}
v_mov_b32 v{K+4}, {OOB}
v_cndmask_b32 v{OAD+1}, v{K+4}, v{OAD+1}, vcc
s_waitcnt lgkmcnt(0)
v_mov_b32 v{CI+1}, v{CI}
v_mov_b32 v{CI+2}, v{CI}
v_mov_b32 v{CI+3}, v{CI}''')
    for g in range(4):
        if g==3:
            a(f'''s_cmp_ge_u32 s{sW}, 2
s_cbranch_scc1 L_f4''')
        for p in ((2*g,2*g+1) if g<3 else (6,)):
            m=sM if p%2==0 else sM2
            a(f'''s_mov_b32 s{m}, {0x00010001<<(2*p):#x}
s_mov_b32 s{m+1}, {0x00020002<<(2*p):#x}
v_cndmask_b32 v{WT+2*p}, 0, v{WT+2*p}, s[{m}:{m+1}]
v_cndmask_b32 v{WT+2*p+1}, 0, v{WT+2*p+1}, s[{m}:{m+1}]''')
        for t in range(4):
            c=f'v[{CI}:{CI+3}]' if g==0 else f'v[{F+4*t}:{F+4*t+3}]'
            r=o2reg(2*g,t)
            if g<3: a(f'v_mfma_f32_16x16x32_bf16 v[{F+4*t}:{F+4*t+3}], v[{r}:{r+3}], v[{WT+4*g}:{WT+4*g+3}], {c}')
            else: a(f'v_mfma_f32_16x16x16_bf16 v[{F+4*t}:{F+4*t+3}], v[{r}:{r+1}], v[{WT+12}:{WT+13}], {c}')
    a('L_f4:')
    for t in range(4):
        a(f'''v_cvt_pk_bf16_f32 v{48+2*t}, v{F+4*t}, v{F+4*t+1}
v_cvt_pk_bf16_f32 v{49+2*t}, v{F+4*t+2}, v{F+4*t+3}
ds_write_b64 v{K}, v[{48+2*t}:{49+2*t}] offset:{32*t}''')
    a(f'''s_waitcnt lgkmcnt(0)
ds_read_b128 v[24:27], v{K+1}
ds_read_b128 v[28:31], v{K+1} offset:1152
s_waitcnt lgkmcnt(1)
buffer_store_dwordx4 v[24:27], v{OAD}, s[{sT1}:{sT1+3}], 0 offen {oaux}
s_waitcnt lgkmcnt(0)
buffer_store_dwordx4 v[28:31], v{OAD+1}, s[{sT1}:{sT1+3}], 0 offen {oaux}''')
    if stamp:
        fst(2)
        a('s_waitcnt vmcnt(0)')
        fst(3)
        a(f'''v_mov_b32 v0, s82
v_mov_b32 v1, s83
v_mov_b32 v2, s84
v_mov_b32 v3, s85
v_mov_b32 v4, {59*4}
s_mov_b64 exec, 1
buffer_store_dwordx4 v[0:3], v4, s[{sWS}:{sWS+3}], s88 offen''')
        if dbg:
            a(f'''s_cmp_lg_u32 s2, 100
s_cbranch_scc1 L_end
s_cmp_lg_u32 s{sW}, 15
s_cbranch_scc1 L_end
s_sub_u32 s82, s82, s89
s_sub_u32 s85, s85, s89
v_mov_b32 v0, s82
v_mov_b32 v1, s85
v_mov_b32 v4, 56
buffer_store_dwordx2 v[0:1], v4, s[{sDB}:{sDB+3}], 0 offen''')
    if enc:
        a(f'''s_cmp_lg_u32 s2, {encwg}
s_cbranch_scc1 L_end
s_cmp_lg_u32 s{sW}, 15
s_cbranch_scc1 L_end
s_waitcnt vmcnt(0)
s_memrealtime s[80:81]
s_waitcnt lgkmcnt(0)
{'s_mov_b32 s84, s80' if enc[1] is None else ''}
s_sub_u32 s82, s84, s82
s_mul_i32 s82, s82, {enc[2]}
s_min_u32 s82, s82, 100000
L_encs:
s_memrealtime s[84:85]
s_waitcnt lgkmcnt(0)
s_sub_u32 s84, s84, s80
s_cmp_lt_u32 s84, s82
s_cbranch_scc1 L_encs''')
    a('L_end:\ns_endpgm')
    body=a.pad(verbose=True)
    ref=open('standalone__hybrid_graph_tf_nagphormer__graph.s.ref').read().split('\n')
    head=[l for l in ref if l.startswith(';') and '@launch' not in l]
    out='\n'.join(head)+f'''
; @launch grid=(256,1,1) block=(1024,1,1) lds={LDS_BYTES}
.amdgcn_target "amdgcn-amd-amdhsa--gfx950"
.text
.globl {KNAME}
.p2align 8
.type {KNAME},@function
{KNAME}:
'''+body+f'''.section .rodata,"a"
.p2align 6
.amdhsa_kernel {KNAME}
  .amdhsa_next_free_vgpr 128
  .amdhsa_next_free_sgpr 100
  .amdhsa_accum_offset 128
  .amdhsa_group_segment_fixed_size 0
  .amdhsa_kernarg_size 96
  .amdhsa_user_sgpr_count 2
  .amdhsa_user_sgpr_kernarg_segment_ptr 1
  .amdhsa_system_sgpr_workgroup_id_x 1
  .amdhsa_float_denorm_mode_32 3
.end_amdhsa_kernel
'''
    return out
if __name__=='__main__':
    kw=eval('dict('+(sys.argv[2] if len(sys.argv)>2 else '')+')')
    open(sys.argv[1] if len(sys.argv)>1 else 'standalone__hybrid_graph_tf_nagphormer__graph.s','w').write(gen(**kw))
```

```python
from asmlib import Ins, need
TR=('v_exp','v_rcp','v_rsq','v_log','v_sqrt','v_permlane')
class Node:
    def __init__(s,texts):
        s.ins=[Ins(t) for t in texts]
        s.r=set(); s.w=set()
        for i in s.ins: s.r|=i.r; s.w|=i.w
        if len(texts)>1:
            s.r.discard(('s','exec')); s.w.discard(('s','exec'))
        s.nds=sum(i.kind=='ds' for i in s.ins)
        s.dsw=set()
        for i in s.ins:
            if i.kind=='ds': s.dsw|=i.w
        s.mfma=s.ins[0].kind=='mfma'
        s.vmem=any(i.kind=='vmem' for i in s.ins)
        s.cost=0
        for i in s.ins:
            if i.kind=='mfma': s.cost+=8 if 'x32' in i.mn else 4
            elif i.kind=='valu' and i.mn.startswith(TR): s.cost+=8
            else: s.cost+=4
        s.vc=s.ins[0].mn.startswith('v_cndmask') and ('s','vcc') in s.r
        s.pred=[]; s.succ=[]
def schedule(items, ldslat=96, window=10**9, verbose=False, hw=5):
    N=[Node([t] if isinstance(t,str) else t) for t in items]
    lastw={}; readers={}; lastds=None; lastvm=None
    def hz(p,n): return max(need(q,c) for q in p.ins for c in n.ins)
    for j,n in enumerate(N):
        deps={}
        def dep(i,lat,st):
            if i!=j:
                o=deps.get(i,(0,0)); deps[i]=(max(o[0],lat),max(o[1],st))
        for x in n.r|n.w:
            if x in lastw:
                i=lastw[x]; p=N[i]; h=hz(p,n)
                if x in p.dsw: lat=ldslat if (x in n.r or not n.nds) else 4
                else: lat=max(p.cost,4*(1+h))
                dep(i,lat,h)
        for x in n.w:
            for i in readers.get(x,[]):
                p=N[i]; h=hz(p,n); dep(i,max(p.cost,4*(1+h)),h)
        if n.nds:
            if lastds is not None: dep(lastds,4,0)
            lastds=j
        if n.vmem:
            if lastvm is not None: dep(lastvm,4,0)
            lastvm=j
        for x in n.r: readers.setdefault(x,[]).append(j)
        for x in n.w: lastw[x]=j; readers[x]=[]
        for i,l in deps.items(): n.pred.append((i,l)); N[i].succ.append((j,l))
    pr=[0]*len(N)
    for j in range(len(N)-1,-1,-1):
        pr[j]=N[j].cost+max([max(l[0],hw*l[1])+pr[k]-N[j].cost for k,l in N[j].succ],default=0)
    npred=[len(n.pred) for n in N]; est=[0]*len(N); ess=[0]*len(N)
    ready=[j for j in range(len(N)) if npred[j]==0]
    t=0; mfree=0; order=[]; idle=0; slot=0; nops=0
    while ready:
        lo=min(ready)
        pool=[j for j in ready if j<=lo+window]
        def start(j):
            s0=max(t,est[j], mfree if N[j].mfma else 0, t+4*(ess[j]-slot))
            if order and N[order[-1]].vc and N[j].vc: s0=max(s0,t+16)
            return s0
        best=min(start(j) for j in pool)
        cand=[j for j in pool if start(j)==best]
        j=max(cand,key=lambda j:(N[j].mfma, pr[j], -j))
        idle+=best-t; t=best
        if ess[j]>slot: nops+=ess[j]-slot; slot=ess[j]
        ready.remove(j); order.append(j)
        if N[j].mfma: mfree=t+16
        slot+=len(N[j].ins)
        for k,l in N[j].succ:
            est[k]=max(est[k],t+l[0]); ess[k]=max(ess[k],slot+l[1]); npred[k]-=1
            if npred[k]==0: ready.append(k)
        t+=N[j].cost
    if verbose: print('sched: nodes',len(N),'cycles',t,'idle',idle,'nops',nops,'critical',max(pr))
    out=[]; pend=[]
    for j in order:
        n=N[j]
        touch=n.r|n.w
        k=-1
        for idx,w in enumerate(pend):
            if w&touch: k=idx
        if n.nds and k>=0:
            k=-1
            for idx,w in enumerate(pend):
                if w&n.r: k=idx
        if k>=0:
            c=len(pend)-1-k
            out.append(f's_waitcnt lgkmcnt({min(c,15)})')
            pend=pend[len(pend)-min(c,15):] if c>0 else []
        for i in n.ins:
            out.append(i.text)
            if i.kind=='ds': pend.append(set(i.w))
    out.append('s_waitcnt lgkmcnt(0)')
    return out
```

```python
import sys, struct
sys.path.insert(0,'gen')
from asmlib import Asm
from sched import schedule
N=50000; E=800000; NPW=196; CH=3125
KNAME='standalone__hybrid_graph_tf_nagphormer__graph_kernel'
TSTR=16<<20
MISC=112<<20
CHSTR=12544
OFFS=4<<20
SYNC=5<<20
STAMP=6<<20
WGT=(5<<20)+(512<<10)
PROBE=14<<20
WSTR=8960
L_RING=0; L_AL=6144; CAP=352; L_CL=L_AL+CAP*4; L_ST=7936
L_W=16*WSTR
L_CNT1=L_W+13312; L_BASE1=L_CNT1+1040
L_SH=L_W+16384
L_CNT2=L_SH; L_BASE2=L_SH+1040; L_SA=L_SH; L_MISC=L_SH+2304
LDS_BYTES=L_SH+4096
assert LDS_BYTES==163840 and L_CL+CAP<=L_ST and L_ST+1024<=WSTR
fb=lambda x: struct.unpack('<I',struct.pack('<f',x))[0]
LOG2E=1.4426950408889634
OOB=0x80000000

def gen(R=3, NBAR=6, stamp=False, force_slow=False, spinmax=1<<18, reps=2, sfirst=False, prio=0, skip='', dbg=False, enc=None, nopf=False, oaux='sc1', encwg=100, ldslat=96, window=10**9, fprio=(), fskip='', sord='r', rep=1, cloc=0, psleep=1, pace=((16,32,48),)*4, pacel=((16,32,48),)*4):
    a=Asm()
    assert R==2
    ACC=0; AOP=16; B0=24; B1=25; COLW=26; TMP=27; EN=28; DA=30; TRA=32; LO=36; AP=38; CP=39; NOTN=40
    DIS=41; SA=42; X=44; TID=62; S1=63; TRD=64; STA=65; SWA=66; SRA=67; LANE=68; TS=69
    TG=70; T0=72
    T=lambda p:T0+8*p
    sWG=2; sW=3; sTIN=28; sTOUT=32; sWS=36; sT1=40; sT2=44
    sU=48; sREM=49; sBA=50; sBD=51; sRB=52; sK=53; sSLOW=54; sNB=55; sA=56; sB=57; sC=58; sD=59
    sK1=60; sK2=61; sSPIN=62; sEV=63; sM=64
    sP0=66; sP1=68; sPM=70; sSEG=71; sOFF=72; sCNT=73; sSTART=74; sBK=75; sSI=76; sXC=77; sDB=96; sPA=86; sPM2=87; sTN=6; sTLs=7; sI=8; sTH=9; sPOL=10; sTM=11; LT=4096; sM2=78
    nst=[0]
    def st(i):
        if enc:
            for j,pt in enumerate(enc[:2]):
                if pt is not None and pt>=0 and pt%8==i:
                    nst[0]+=1
                    a(f'''s_cmp_lg_u32 s{sSI}, {pt-i}
s_cbranch_scc1 L_enc{nst[0]}
s_memrealtime s[{82+2*j}:{83+2*j}]
s_waitcnt lgkmcnt(0)
L_enc{nst[0]}:''')
        if stamp:
            a(f'''s_memrealtime s[80:81]
s_waitcnt lgkmcnt(0)
s_add_u32 m0, s{sSI}, {i}
s_nop 0
v_writelane_b32 v{TS}, s80, m0''')
    def srd(d,lo,nbytes):
        a(f'''s_mov_b32 s{d}, s{lo}
s_mov_b32 s{d+1}, s{lo+1}
s_mov_b32 s{d+2}, {nbytes}
s_mov_b32 s{d+3}, 0x20000''')
    uid=[0]
    def L(x):
        uid[0]+=1; return f'L_{x}_{uid[0]}'
    def spin(lab):
        a(f'''{'s_sleep %d'%psleep if psleep else ''}
s_add_u32 s{sSPIN}, s{sSPIN}, 1
s_cmp_lt_u32 s{sSPIN}, {spinmax}
s_cbranch_scc1 {lab}
s_endpgm''')
    if enc and enc[0]==-1: a('s_memrealtime s[82:83]')
    a(f'''s_cmp_ge_u32 s2, 256
s_cbranch_scc1 L_end
s_load_dwordx16 s[4:19], s[0:1], 0
s_load_dwordx8 s[20:27], s[0:1], 64
v_lshrrev_b32 v1, 6, v0
v_and_b32 v{LANE}, 63, v0
v_readfirstlane_b32 s{sW}, v1
v_lshlrev_b32 v2, 4, v0
s_mul_i32 s{sA}, s2, {CH*4}
s_mov_b32 s{sSI}, 0
s_mov_b32 s{sSPIN}, 0
v_mov_b32 v{TS}, 0
s_mul_i32 s{sRB}, s{sW}, {WSTR}
s_cmp_lg_u32 s{sW}, {13 if not nopf else 99}
s_cbranch_scc1 L_nopf
s_getpc_b64 s[94:95]
L_pc1:
v_lshlrev_b32 v3, 7, v{LANE}
global_load_dword v4, v3, s[94:95]
v_add_u32 v3, 8192, v3
v_min_u32 v3, L_final-L_pc1, v3
global_load_dword v5, v3, s[94:95]
L_nopf:
v_mov_b32 v16, 0
v_mov_b32 v17, 0
v_lshlrev_b32 v22, 2, v0
v_add_u32 v22, {L_CNT1}, v22
v_lshrrev_b32 v18, 3, v{LANE}          ; g
v_lshrrev_b32 v14, 1, v18
v_lshlrev_b32 v14, 5, v14
v_and_b32 v15, 1, v18
s_lshl_b32 s{sB}, s{sW}, 1
v_add3_u32 v14, v14, v15, s{sB}        ; r
v_cmp_gt_u32 vcc, {NPW-128}, v14
s_mul_i32 s{sD}, s2, {NPW}
v_add_u32 v14, s{sD}, v14
v_add_u32 v15, 128, v14
v_mov_b32 v19, 0x01000000
v_cndmask_b32 v15, v19, v15, vcc
v_and_b32 v19, 7, v{LANE}
v_lshlrev_b32 v19, 4, v19
v_lshl_add_u32 v20, v14, 7, v19
v_lshl_add_u32 v21, v15, 7, v19
v_lshlrev_b32 v24, 1, v14
v_lshlrev_b32 v25, 1, v15
s_waitcnt lgkmcnt(0)
s_add_u32 s26, s26, 0x1fffff
s_addc_u32 s27, s27, 0
s_and_b32 s26, s26, 0xffe00000
s_add_u32 s{sWS}, s26, {MISC}
s_addc_u32 s{sWS+1}, s27, 0
s_mov_b32 s{sWS+2}, {8<<20}
s_mov_b32 s{sWS+3}, 0x20000''')
    srd(sT1,6,E*4); srd(sT2,8,E*4); srd(sDB,24,256)
    a(f'''s_cmp_ge_u32 s{sW}, 13
s_cbranch_scc1 L_noedge
buffer_load_dwordx4 v[4:7], v2, s[{sT2}:{sT2+3}], s{sA} offen
buffer_load_dwordx4 v[8:11], v2, s[{sT1}:{sT1+3}], s{sA} offen
s_cmp_ge_u32 s{sW}, 4
s_cbranch_scc1 L_b1
ds_write_b32 v22, v16
ds_write_b32 v22, v16 offset:{L_CNT2-L_CNT1}
ds_write_b32 v22, v16 offset:{L_MISC-L_CNT1}
s_branch L_b1
L_noedge:
s_cmp_lg_u32 s{sW}, 15
s_cbranch_scc1 L_b1
buffer_load_dword v4, v16, s[{sDB}:{sDB+3}], 0 offen offset:128 sc1
s_cmp_ge_u32 s2, 40
s_cbranch_scc1 L_b1
v_lshlrev_b32 v3, 4, v{LANE}
v_mov_b32 v8, 0
v_mov_b32 v9, 0
v_mov_b32 v10, 0
v_mov_b32 v11, 0
s_lshl_b32 s{sA}, s2, 10
s_cmp_lt_u32 s2, 8
s_cbranch_scc1 L_z8
s_add_u32 s{sA}, s{sA}, {SYNC+32768-8192}
buffer_store_dwordx4 v[8:11], v3, s[{sWS}:{sWS+3}], s{sA} offen sc1
s_branch L_b1
L_z8:
s_add_u32 s{sA}, s{sA}, {SYNC}
buffer_store_dwordx4 v[8:11], v3, s[{sWS}:{sWS+3}], s{sA} offen sc1
s_add_u32 s{sA}, s{sA}, 8192
buffer_store_dwordx4 v[8:11], v3, s[{sWS}:{sWS+3}], s{sA} offen sc1
s_add_u32 s{sA}, s{sA}, 8192
buffer_store_dwordx4 v[8:11], v3, s[{sWS}:{sWS+3}], s{sA} offen sc1
L_b1:''')
    st(0)
    srd(sT1,4,N*128); srd(sT2,10,N*2)
    a(f'''s_add_u32 s90, s26, {PROBE}
s_addc_u32 s91, s27, 0
s_add_u32 s92, s26, {MISC+SYNC}
s_addc_u32 s93, s27, 0
s_waitcnt lgkmcnt(0)
s_barrier
s_cmp_lg_u32 s{sW}, 15
s_cbranch_scc1 L_xl
s_cmp_lg_u32 s2, 0
s_cbranch_scc1 L_xl
s_waitcnt vmcnt(0)
v_mov_b32 v3, 1
s_mov_b64 exec, 1
buffer_store_dword v3, v16, s[{sDB}:{sDB+3}], 0 offen sc1
s_mov_b64 exec, -1
L_xl:
buffer_load_dwordx4 v[{X}:{X+3}], v20, s[{sT1}:{sT1+3}], 0 offen
buffer_load_dwordx4 v[{X+4}:{X+7}], v21, s[{sT1}:{sT1+3}], 0 offen
buffer_load_ushort v26, v24, s[{sT2}:{sT2+3}], 0 offen
buffer_load_ushort v27, v25, s[{sT2}:{sT2+3}], 0 offen''')
    st(1)
    srd(sTIN,26,TSTR); srd(sTOUT,26,TSTR)
    for i in range(2):
        a(f'''v_and_b32 v20, 0x0100ffc0, v{14+i}
v_and_b32 v21, 0xffff, v{14+i}
v_add_u32 v20, v20, v21
v_and_b32 v21, 0x2000, v{14+i}
v_lshl_add_u32 v20, v20, 7, v21
v_add_u32 v{SA+i}, v20, v19''')
    a(f'''v_and_b32 v12, 15, v{LANE}            ; n
v_lshrrev_b32 v13, 4, v{LANE}          ; q''')
    a(f'''v_mov_b32 v16, 0
v_mov_b32 v18, {OOB}
v_mov_b32 v19, {OOB}
v_mov_b32 v20, {OOB}
v_mov_b32 v21, {OOB}
v_lshl_add_u32 v23, v{LANE}, 4, s{sRB}
ds_write_b128 v23, v[18:21] offset:{L_AL}
ds_write_b128 v23, v[18:21] offset:{L_AL+CAP*4-1024}
v_lshl_add_u32 v23, v{LANE}, 2, s{sRB}
ds_write_b32 v23, v16 offset:{L_CL}
ds_write_b32 v23, v16 offset:{L_CL+CAP-256}''')
    a(f'''; tr-read addresses: lane=(q, r, c): g=2q+(r&1), i=r>>1, swz=((g>>1)&1)*2+i
v_bfe_u32 v16, v{LANE}, 2, 1           ; r&1
v_bfe_u32 v17, v{LANE}, 3, 1           ; i
v_lshl_add_u32 v16, v13, 1, v16        ; g
v_lshlrev_b32 v16, 7, v16
v_lshl_add_u32 v16, v17, 10, v16
v_and_b32 v18, 1, v13
v_lshl_add_u32 v18, v18, 1, v17        ; swz
v_lshl_add_u32 v16, v18, 5, v16
v_and_b32 v18, 3, v{LANE}
v_lshl_add_u32 v16, v18, 3, v16
v_add_u32 v{TRA}, s{sRB}, v16
v_xor_b32 v{TRA+1}, 32, v{TRA}
v_xor_b32 v{TRA+2}, 64, v{TRA}
v_xor_b32 v{TRA+3}, 96, v{TRA}
v_and_b32 v16, 7, v{LANE}
v_bfe_u32 v17, v{LANE}, 4, 1           ; (g>>1)&1, g=lane>>3
v_lshlrev_b32 v17, 2, v17
v_xor_b32 v17, v17, v16
v_lshlrev_b32 v{LO}, 4, v17
v_xor_b32 v{LO+1}, 32, v{LO}
; ~(n*0x01010101)
s_mov_b32 s{sA}, 0x01010101
v_mul_lo_u32 v{NOTN}, v12, s{sA}
v_not_b32 v{NOTN}, v{NOTN}
s_mov_b32 s{sK1}, 0x40404041
s_mov_b32 s{sK2}, 0x40004000
v_mul_u32_u24 v17, 144, v12
v_lshl_add_u32 v17, v13, 3, v17
v_add_u32 v{SWA}, s{sRB}, v17
v_cmp_gt_u32 vcc, 14, v12
v_mov_b32 v17, {OOB}
v_cndmask_b32 v{SWA}, v17, v{SWA}, vcc
v_lshrrev_b32 v18, 3, v{LANE}          ; g
v_mul_u32_u24 v17, 144, v18
v_lshl_add_u32 v17, v16, 4, v17
v_add_u32 v{SRA}, s{sRB}, v17
v_bfe_u32 v17, v{LANE}, 3, 1
v_mul_u32_u24 v17, 144, v17
v_lshl_add_u32 v17, v13, 4, v17
v_add_u32 v{TRD}, s{sRB}, v17
v_lshl_add_u32 v{STA}, v12, 6, s{sRB}   ; col*64 (+k*8)
v_mov_b32 v{S1}, 1.0
s_cmp_lg_u32 s{sW}, 14
s_cbranch_scc1 L_np0
s_lshr_b32 s{sPA}, s2, 6
s_lshl_b32 s{sPA}, s{sPA}, 14
s_and_b32 s{sB}, s2, 63
s_lshl_b32 s{sB}, s{sB}, 7
s_add_u32 s{sPA}, s{sPA}, s{sB}
s_add_u32 s{sB}, s{sPA}, 0x2000
s_mov_b32 s{sC}, 1
s_mov_b32 s{sD}, 1
s_atomic_add s{sC}, s[90:91], s{sPA} glc
s_atomic_add s{sD}, s[90:91], s{sB} glc
s_barrier
s_barrier
s_branch L_g0
L_np0:
s_cmp_ge_u32 s{sW}, 13
s_cbranch_scc1 L_p1_b2''')
    a(f'''s_mov_b32 s{sA}, 85599
v_lshlrev_b32 v2, 2, v0
v_mov_b32 v3, 1
s_waitcnt vmcnt(5)''')
    for j in range(4):
        a(f'''v_mul_u32_u24 v16, s{sA}, v{4+j}
v_lshrrev_b32 v16, 24, v16            ; owner
v_mul_u32_u24 v17, {NPW}, v16
v_sub_u32 v{4+j}, v{4+j}, v17          ; r
v_and_b32 v17, 7, v16
v_lshrrev_b32 v16, 3, v16
v_lshl_add_u32 v16, v17, 5, v16
v_lshlrev_b32 v16, 2, v16
v_add_u32 v{12+j}, {L_CNT1}, v16
{'v_cmpx_gt_u32 vcc, %d, v2'%(CH-j) if j<2 else ''}
ds_add_rtn_u32 v{20+j}, v{12+j}, v3''')
    a('s_mov_b64 exec, -1')
    a('s_waitcnt vmcnt(4)')
    st(7)
    for j in range(4): a(f'v_lshl_or_b32 v{8+j}, v{4+j}, 16, v{8+j}')
    a(f'''L_p1_b2:
s_waitcnt lgkmcnt(0)
s_barrier''')
    st(2)
    def scan(cnt, c, quad):
        a(f'''v_lshlrev_b32 v{c+9}, 4, v{LANE}
v_add_u32 v{c+9}, {cnt}, v{c+9}
ds_read_b128 v[{c}:{c+3}], v{c+9}
s_waitcnt lgkmcnt(0)
v_add_u32 v{c+6}, v{c}, v{c+1}
v_add_u32 v{c+7}, v{c+6}, v{c+2}
v_add_u32 v{c+4}, v{c+7}, v{c+3}
v_mov_b32 v{c+8}, v{c+4}''')
        if quad:
            a(f'''v_mov_b32 v{c+5}, 0
v_mov_b32_dpp v{c+5}, v{c+8} quad_perm:[0,0,1,2] row_mask:0xf bank_mask:0xf
v_cndmask_b32 v{c+5}, v{c+5}, 0, s[{sM}:{sM+1}]
v_add_u32 v{c+8}, v{c+8}, v{c+5}
v_mov_b32_dpp v{c+5}, v{c+8} quad_perm:[0,0,0,1] row_mask:0xf bank_mask:0xf
v_cndmask_b32 v{c+5}, v{c+5}, 0, s[{sM2}:{sM2+1}]
v_add_u32 v{c+8}, v{c+8}, v{c+5}''')
        else:
            for m in ('row_shr:1 row_mask:0xf','row_shr:2 row_mask:0xf','row_shr:4 row_mask:0xf','row_shr:8 row_mask:0xf','row_bcast:15 row_mask:0xa','row_bcast:31 row_mask:0xc'):
                a(f'v_add_u32_dpp v{c+8}, v{c+8}, v{c+8} {m} bank_mask:0xf')
        a(f'''v_sub_u32 v{c+4}, v{c+8}, v{c+4}
v_add_u32 v{c+5}, v{c+4}, v{c}
v_add_u32 v{c+6}, v{c+4}, v{c+6}
v_add_u32 v{c+7}, v{c+4}, v{c+7}
ds_write_b128 v{c+9}, v[{c+4}:{c+7}] offset:1040''')
    a(f'''s_cmp_ge_u32 s{sW}, 14
s_cbranch_scc1 L_p1_b3''')
    scan(L_CNT1,X+8,False)
    a(f'''s_cmp_lg_u32 s{sW}, 13
s_cbranch_scc1 L_p1_sc''')
    for j in range(4): a(f'v_lshl_or_b32 v{X+8+j}, v{X+8+j}, 16, v{X+12+j}')
    a(f'''s_lshl_b32 s{sA}, s2, 10
s_add_u32 s{sA}, s{sA}, {OFFS}
v_lshlrev_b32 v16, 4, v{LANE}
buffer_store_dwordx4 v[{X+8}:{X+11}], v16, s[{sWS}:{sWS+3}], s{sA} offen sc1
s_branch L_p1_b3
L_p1_sc:
s_waitcnt lgkmcnt(0)''')
    for j in range(4):
        if j<2: a(f'v_cmpx_gt_u32 vcc, {CH-j}, v2')
        a(f'ds_read_b32 v{16+j}, v{12+j} offset:1040')
    a('s_mov_b64 exec, -1')
    for j in range(4):
        a(f'''s_waitcnt lgkmcnt(3)
v_add_lshl_u32 v{16+j}, v{16+j}, v{20+j}, 2
v_add_u32 v{16+j}, {L_W}, v{16+j}
{'v_cmpx_gt_u32 vcc, %d, v2'%(CH-j) if j<2 else ''}
ds_write_b32 v{16+j}, v{8+j}''')
    a('s_mov_b64 exec, -1')
    a(f'''L_p1_b3:
s_waitcnt lgkmcnt(0)
s_barrier
s_cmp_lt_u32 s{sW}, 13
s_cbranch_scc1 L_p1_st
s_cmp_lg_u32 s{sW}, 15
s_cbranch_scc1 L_g0
v_mov_b32 v16, 0
L_w15p:
buffer_load_dword v17, v16, s[{sDB}:{sDB+3}], 0 offen sc1
s_waitcnt vmcnt(0)
v_readfirstlane_b32 s{sA}, v17
s_cmp_lg_u32 s{sA}, 0
s_cbranch_scc1 L_g0''')
    spin('L_w15p')
    a(f'''L_p1_st:
v_lshlrev_b32 v2, 4, v0
v_add_u32 v3, {L_W}, v2
ds_read_b128 v[4:7], v3
s_mul_i32 s{sA}, s2, {CHSTR}
v_cmp_gt_u32 vcc, {CHSTR}, v2
v_mov_b32 v3, {OOB}
v_cndmask_b32 v2, v3, v2, vcc
s_waitcnt lgkmcnt(0)
buffer_store_dwordx4 v[4:7], v2, s[{sWS}:{sWS+3}], s{sA} offen sc1
s_waitcnt vmcnt(1)
s_branch L_g0b
L_g0:
s_waitcnt vmcnt(0)
L_g0b:
v_mov_b32 v{TID}, v0
v_xor_b32 v{DA}, 0x2000, v{SA}
v_xor_b32 v{DA+1}, 0x2000, v{SA+1}''')
    for i in range(2):
        a(f'v_lshlrev_b32 v{26+i}, 16, v{26+i}')
        for c in range(4):
            a(f'''v_lshlrev_b32 v8, 16, v{X+4*i+c}
v_and_b32 v9, 0xffff0000, v{X+4*i+c}
v_mul_f32 v8, v8, v{26+i}
v_mul_f32 v9, v9, v{26+i}
v_cvt_pk_bf16_f32 v{X+8+4*i+c}, v8, v9''')
        a(f'''s_cmp_eq_u32 s{sW}, 15
s_cbranch_scc1 L_g0s{i}
buffer_store_dwordx4 v[{X+8+4*i}:{X+11+4*i}], v{SA+i}, s[{sTOUT}:{sTOUT+3}], 0 offen sc1
buffer_store_dwordx4 v[{X+8+4*i}:{X+11+4*i}], v{DA+i}, s[{sTOUT}:{sTOUT+3}], 0 offen sc1
L_g0s{i}:''')
    a(f'''s_waitcnt vmcnt(4)
s_barrier''')
    st(3)
    def signal(t0=16,t1=17):
        l=L('ns')
        a(f'''s_lshl_b32 s{sA}, s{sEV}, 10
s_and_b32 s{sB}, s2, 7
s_lshl_b32 s{sB}, s{sB}, 7
s_add_u32 s{sA}, s{sA}, s{sB}
s_mov_b32 s{sB}, 1
s_waitcnt lgkmcnt(0)
s_atomic_add s{sB}, s[92:93], s{sA} glc
s_add_u32 s{sC}, s{sA}, {SYNC+8192}
v_mov_b32 v{t0}, 0
v_mov_b32 v{t1}, 1
s_waitcnt lgkmcnt(0)
s_cmp_lg_u32 s{sB}, 31
s_cbranch_scc1 {l}
s_mov_b64 exec, 1
buffer_store_dword v{t1}, v{t0}, s[{sWS}:{sWS+3}], s{sC} offen sc1
s_mov_b64 exec, -1
{l}:''')
    def poll():
        l=L('pl'); d=L('pd')
        a(f'''s_lshl_b32 s{sA}, s{sEV}, 10
s_add_u32 s{sA}, s{sA}, {SYNC+8192}
v_lshlrev_b32 v16, 7, v{LANE}
s_mov_b64 exec, 0xff
{l}:
buffer_load_dword v17, v16, s[{sWS}:{sWS+3}], s{sA} offen sc1
s_waitcnt vmcnt(0)
v_cmp_eq_u32 vcc, 0, v17
s_cbranch_vccz {d}''')
        spin(l)
        a(f'''{d}:
s_mov_b64 exec, -1''')
    def signal2():
        l=L('ns')
        a(f'''s_lshl_b32 s{sA}, s{sEV}, 10
s_and_b32 s{sC}, s2, 7
s_lshl_b32 s{sC}, s{sC}, 7
s_add_u32 s{sA}, s{sA}, s{sC}
{'s_add_u32 s%d, s%d, 49152'%(sA,sA) if cloc else ''}
{'s_xor_b32 s%d, s%d, s%d'%(sA,sA,sPOL) if cloc else ''}
s_mov_b32 s{sB}, 1
s_waitcnt lgkmcnt(0)
s_atomic_add s{sB}, s[92:93], s{sA} glc
s_add_u32 s{sC}, s{sC}, {SYNC+32768}
v_lshlrev_b32 v16, {10 if rep==2 else 13}, v{LANE}
v_mov_b32 v17, s{sEV}
s_waitcnt lgkmcnt(0)
s_cmp_lg_u32 s{sB}, 31
s_cbranch_scc1 {l}
s_mov_b64 exec, {0xffff if rep==2 else 3}
buffer_store_dword v17, v16, s[{sWS}:{sWS+3}], s{sC} offen sc1
s_mov_b64 exec, -1
{l}:''')
    def poll2():
        l=L('pl'); d=L('pd')
        a(f'''s_sub_u32 s{sA}, s{sXC}, 16384
s_lshl_b32 s{sA}, s{sA}, 3
{'' if rep==2 else 's_mov_b32 s%d, 0'%sA}
s_add_u32 s{sA}, s{sA}, s{sPOL}
s_add_u32 s{sA}, s{sA}, {SYNC+32768}
v_lshlrev_b32 v16, 7, v{LANE}
s_mov_b64 exec, 0xff
{l}:
buffer_load_dword v17, v16, s[{sWS}:{sWS+3}], s{sA} offen sc1
s_waitcnt vmcnt(0)
v_cmp_gt_u32 vcc, s{sEV}, v17
s_cbranch_vccz {d}''')
        spin(l)
        a(f'''{d}:
s_mov_b64 exec, -1''')
    def gstore():
        a(f'v_mul_f32 v{TMP}, v{S1}, v{DIS}')
        for t in range(4):
            for r in range(4): a(f'v_mul_f32 v{X+r}, v{TMP}, v{ACC+4*t+r}')
            a(f'''v_cvt_pk_bf16_f32 v{AOP+2*t}, v{X}, v{X+1}
v_cvt_pk_bf16_f32 v{AOP+2*t+1}, v{X+2}, v{X+3}
ds_write_b64 v{SWA}, v[{AOP+2*t}:{AOP+2*t+1}] offset:{32*t}''')
        a(f'''ds_read_b128 v[{X+8}:{X+11}], v{SRA}
ds_read_b128 v[{X+12}:{X+15}], v{SRA} offset:1152
v_xor_b32 v{DA}, 0x2000, v{SA}
v_xor_b32 v{DA+1}, 0x2000, v{SA+1}''')
        seq={'':((0,SA),(0,DA),(1,SA),(1,DA)),'r':((0,DA),(1,DA),(0,SA),(1,SA)),'l':((0,SA),(1,SA),(0,DA),(1,DA))}[sord]
        seen=set()
        for i,r in seq:
            if i not in seen: a(f's_waitcnt lgkmcnt({1-i})'); seen.add(i)
            a(f'buffer_store_dwordx4 v[{X+8+4*i}:{X+11+4*i}], v{r+i}, s[{sTOUT}:{sTOUT+3}], 0 offen sc1')
    def allq(r,t):
        a(f'''v_mov_b32 v{t}, v{r}
v_permlane16_swap_b32 v{t}, v{r}
v_add_f32 v{r}, v{r}, v{t}
v_mov_b32 v{t}, v{r}
v_permlane32_swap_b32 v{t}, v{r}
v_add_f32 v{r}, v{r}, v{t}''')
    def stats(a=a, NP=7, k=None):
        for i in range(2): a(f'v_add_f32 v{X+i}, v{ACC+i}, v{ACC+2+i}')
        for i in range(2): a(f'v_mul_f32 v{X+4+i}, v{ACC+i}, v{ACC+i}')
        for i in range(2,16):
            if i>=4: a(f'v_add_f32 v{X+i%2}, v{X+i%2}, v{ACC+i}')
            a(f'v_fmac_f32 v{X+4+i%2}, v{ACC+i}, v{ACC+i}')
        a(f'''v_add_f32 v{X}, v{X}, v{X+1}
v_add_f32 v{X+4}, v{X+4}, v{X+5}
v_mul_f32 v{X+5}, v{S1}, v{S1}
v_permlane16_swap_b32 v{X}, v{X+4}
v_add_f32 v{X}, v{X}, v{X+4}
v_mov_b32 v{X+4}, v{X}
v_mov_b32 v{X+6}, {fb(1e-5):#x}
v_permlane32_swap_b32 v{X}, v{X+4}
v_add_f32 v{X}, v{X}, v{X+4}
v_mul_f32 v{X}, {fb(1/64):#x}, v{X}
v_mov_b32 v{X+4}, v{X}
{'' if k is not None else 's_lshl_b32 s%d, s%d, 3'%(sA,sK)}
{'' if k is not None else 'v_add_u32 v%d, s%d, v%d'%(X+7,sA,STA)}
v_permlane16_swap_b32 v{X}, v{X+4}
v_fma_f32 v{X+4}, -v{X}, v{X}, v{X+4}
v_max_f32 v{X+4}, 0, v{X+4}
v_fmac_f32 v{X+6}, v{X+5}, v{X+4}      ; var+eps
v_rsq_f32 v{X+5}, v{X+6}
v_mul_f32 v{X+3}, v{X}, v{S1}          ; mu
v_mul_f32 v{X+2}, v{X+6}, v{X+5}       ; sigma
v_mul_f32 v{X+4}, v{X+5}, v{S1}
v_mul_f32 v{X+5}, v{X+5}, v{X+3}
ds_write_b64 v{X+7 if k is None else STA}, v[{X+2}:{X+3}] offset:{L_ST+(0 if k is None else 8*k)}''')
        for t in range(4):
            for r in range(4): a(f'v_fma_f32 v{ACC+4*t+r}, v{X+4}, v{ACC+4*t+r}, -v{X+5}')
            a(f'''v_cvt_pk_bf16_f32 v{AOP+2*t}, v{ACC+4*t}, v{ACC+4*t+1}
v_cvt_pk_bf16_f32 v{AOP+2*t+1}, v{ACC+4*t+2}, v{ACC+4*t+3}
ds_write_b64 v{SWA}, v[{AOP+2*t}:{AOP+2*t+1}] offset:{LT+32*t}''')
        if k is not None:
            for p in range(NP):
                a([f's_mov_b64 exec, s[{sM2}:{sM2+1}]']+[f'ds_read_b128 v[{T(p)+4*s}:{T(p)+4*s+3}], v{TRD} offset:{LT+288*p+64*s}' for s in range(2)]+['s_mov_b64 exec, -1'])
            return
        a(f's_lshl_b32 s{sTM}, 0x01010101, s{sK}')
    def scatter():
        l=L('sc')
        a(f'''s_cmp_eq_u32 s{sTM}, 0
s_cbranch_scc1 {l}
s_mov_b32 exec_lo, s{sTM}
s_mov_b32 exec_hi, s{sTM}''')
        for p in range(7):
            if p==6: a(f's_cmp_ge_u32 s{sW}, 2\ns_cbranch_scc1 {l}b')
            for s in range(2): a(f'ds_read_b128 v[{T(p)+4*s}:{T(p)+4*s+3}], v{TRD} offset:{LT+288*p+64*s}')
        a(f'''{l}b:
s_mov_b64 exec, -1
s_mov_b32 s{sTM}, 0
{l}:''')
    a(f'''s_mov_b32 s{sEV}, 0
s_mov_b32 s{sK}, 0
s_cmp_lg_u32 s{sW}, 15
s_cbranch_scc1 L_e0''')
    signal()
    a(f'''L_e0:
s_getreg_b32 s{sXC}, hwreg(HW_REG_XCC_ID, 0, 3)
s_lshl_b32 s{sXC}, s{sXC}, 7
s_add_u32 s{sXC}, s{sXC}, 16384
s_cmp_lg_u32 s{sW}, 14
s_cbranch_scc1 L_e1
; wave 14: timed memory-side round trips to copy 1 / copy 0, alternating; publish the best per die
s_setprio 3
s_waitcnt lgkmcnt(0)
s_mov_b32 s{sC}, 0
s_mov_b32 s{sPM}, 0
s_mov_b32 s{sPM2}, 0
L_pr:
s_mov_b32 s{sB}, 1
s_memtime s[{sP0}:{sP0+1}]
s_waitcnt lgkmcnt(0)
s_atomic_add s{sB}, s[90:91], s{sPA} glc
s_waitcnt lgkmcnt(0)
s_memtime s[{sP1}:{sP1+1}]
s_waitcnt lgkmcnt(0)
s_sub_u32 s{sB}, s{sP0}, s{sP1}
{('s_sub_u32 s80, 0, s%d'%sB+chr(10)+'s_lshl_b32 s%d, s%d, 3'%(sD,sC)+chr(10)+'s_add_u32 m0, s%d, 15'%sD+chr(10)+'s_nop 0'+chr(10)+'v_writelane_b32 v%d, s80, m0'%TS) if stamp else ''}
s_max_u32 s{sB}, s{sPM}, s{sB}
s_mov_b32 s{sPM}, s{sPM2}
s_mov_b32 s{sPM2}, s{sB}
s_xor_b32 s{sPA}, s{sPA}, 0x2000
s_add_u32 s{sC}, s{sC}, 1
s_cmp_lt_u32 s{sC}, {2*reps}
s_cbranch_scc1 L_pr
s_add_u32 s{sB}, s{sXC}, 4
s_atomic_umax s{sPM}, s[92:93], s{sXC} glc
s_atomic_umax s{sPM2}, s[92:93], s{sB} glc
s_setprio 0
L_e1:
ds_write_b128 v{SRA}, v[{X}:{X+3}]
ds_write_b128 v{SRA}, v[{X+4}:{X+7}] offset:1152
v_lshrrev_b32 v8, 3, v{LANE}
v_lshl_add_u32 v8, v8, 2, s{sRB}
ds_write2_b32 v8, v26, v27 offset0:0 offset1:8
v_and_b32 v9, 15, v{LANE}
v_lshl_add_u32 v9, v9, 2, s{sRB}
s_waitcnt lgkmcnt(0)'''.replace('v_lshl_add_u32 v8, v8, 2, s%d'%sRB,'v_lshl_add_u32 v8, v8, 2, s%d\nv_add_u32 v8, 2304, v8'%sRB))
    for t in range(4): a(f'ds_read_b64 v[{X+2*t}:{X+2*t+1}], v{SWA} offset:{32*t}')
    a(f'''ds_read_b32 v{DIS}, v9 offset:2304
s_waitcnt lgkmcnt(0)''')
    for i in range(8):
        a(f'''v_lshlrev_b32 v{ACC+2*i}, 16, v{X+i}
v_and_b32 v{ACC+2*i+1}, 0xffff0000, v{X+i}''')
    stats()
    a(f'''v_mul_f32 v{S1}, 0.5, v{DIS}
s_cmp_lg_u32 s{sW}, 15
s_cbranch_scc1 L_e0w''')
    poll()
    for i in range(2):
        a(f'''buffer_store_dwordx4 v[{X+8+4*i}:{X+11+4*i}], v{SA+i}, s[{sTOUT}:{sTOUT+3}], 0 offen sc1
buffer_store_dwordx4 v[{X+8+4*i}:{X+11+4*i}], v{DA+i}, s[{sTOUT}:{sTOUT+3}], 0 offen sc1''')
    a(f'''L_e0w:
s_barrier''')
    st(4)
    a(f'''s_and_b32 s{sBK}, s2, 7
s_lshl_b32 s{sBK}, s{sBK}, 5
s_lshr_b32 s{sA}, s2, 3
s_add_u32 s{sBK}, s{sBK}, s{sA}
s_lshl_b32 s{sBK}, s{sBK}, 2
s_add_u32 s{sBK}, s{sBK}, {OFFS}
v_lshrrev_b32 v1, 2, v{TID}               ; segment
v_lshlrev_b32 v2, 10, v1
buffer_load_dword v3, v2, s[{sWS}:{sWS+3}], s{sBK} offen sc1
s_mov_b32 s{sEV}, 1
v_mul_u32_u24 v1, {CHSTR}, v1
v_and_b32 v2, 3, v{TID}
v_lshlrev_b32 v2, 2, v2                ; 4*sub
s_waitcnt vmcnt(0)
v_and_b32 v4, 0xffff, v3
v_lshrrev_b32 v3, 16, v3               ; count
v_add_u32 v4, v4, v2
v_lshl_add_u32 v4, v4, 2, v1
v_sub_u32 v3, v3, v2
buffer_load_dwordx4 v[8:11], v4, s[{sWS}:{sWS+3}], 0 offen sc1
v_cmp_lt_i32 vcc, 16, v3
v_mov_b32 v5, {OOB}
v_cndmask_b32 v5, v5, v4, vcc
buffer_load_dwordx4 v[12:15], v5, s[{sWS}:{sWS+3}], 0 offen offset:64 sc1
v_cmp_lt_i32 vcc, 32, v3
v_mov_b32 v6, 1
v_mov_b32 v7, {L_MISC}
s_cbranch_vccz L_p2b
ds_write_b32 v7, v6
L_p2b:''')
    for j in range(8):
        if j%4==0: a(f's_waitcnt vmcnt({1-j//4})')
        a(f'''v_bfe_u32 v0, v{8+j}, 17, 4            ; wave
v_bfe_u32 v1, v{8+j}, 12, 4            ; region
v_lshl_add_u32 v0, v0, 4, v1
v_lshlrev_b32 v0, 2, v0
v_add_u32 v{16+j}, {L_CNT2}, v0
v_cmpx_lt_i32 vcc, {j%4+16*(j//4)}, v3
ds_add_rtn_u32 v{X+j}, v{16+j}, v6''')
    a('s_mov_b64 exec, -1')
    a(f'''s_mov_b32 s{sM}, 0x11111111
s_mov_b32 s{sM+1}, 0x11111111
s_mov_b32 s{sM2}, 0x33333333
s_mov_b32 s{sM2+1}, 0x33333333
s_waitcnt lgkmcnt(0)
s_barrier''')
    st(5)
    a(f'''v_mov_b32 v2, {SYNC}
buffer_load_dwordx2 v[6:7], v2, s[{sWS}:{sWS+3}], s{sXC} offen sc1
s_cmp_lg_u32 s{sW}, 15
s_cbranch_scc1 L_p2a''')
    signal(0,1)
    a(f'''L_p2a:
v_mov_b32 v0, {L_MISC}
ds_read_b32 v1, v0''')
    scan(L_CNT2,X+8,True)
    a(f'''s_lshl_b32 s{sA}, s{sW}, 2
s_add_u32 s{sA}, s{sA}, 3
v_readlane_b32 s{sU}, v{X+16}, s{sA}
v_cmp_lt_u32 vcc, {CAP}, v{X+16}
v_readfirstlane_b32 s{sSLOW}, v1
s_or_b32 s{sA}, vcc_lo, vcc_hi
s_or_b32 s{sSLOW}, s{sSLOW}, s{sA}
{'s_mov_b32 s%d, 1'%sSLOW if force_slow else ''}
s_add_u32 s{sU}, s{sU}, 15
s_lshr_b32 s{sU}, s{sU}, 4
s_lshr_b32 s{sA}, s{sW}, 2
s_lshl_b32 s{sA}, s{sA}, 3''')
    for dst,tab in ((sTN,pace),(sTLs,pacel)):
        a(f's_lshl_b32 s{dst}, s{sU}, 24')
        for j in range(3):
            w=sum(tab[g][j]<<(8*g) for g in range(4))
            a(f'''s_lshr_b32 s{sB}, {w:#x}, s{sA}
s_and_b32 s{sB}, s{sB}, 0xff
s_mul_i32 s{sB}, s{sB}, s{sU}
s_add_u32 s{sB}, s{sB}, 32
s_lshr_b32 s{sB}, s{sB}, 6
s_lshl_b32 s{sB}, s{sB}, {8*j}
s_or_b32 s{dst}, s{dst}, s{sB}''')
    a(f'''s_mov_b32 s{sNB}, 3
s_cmp_eq_u32 s{sSLOW}, 0
s_cbranch_scc1 L_p2c
s_mov_b32 s{sNB}, 0
s_mov_b32 s{sU}, 4
s_branch L_p2d
L_p2c:
s_waitcnt lgkmcnt(0)''')
    for j in range(8): a(f'v_cmpx_lt_i32 vcc, {j%4+16*(j//4)}, v3\nds_read_b32 v{24+j}, v{16+j} offset:1040')
    a('s_mov_b64 exec, -1')
    def conv(e,ad,col,t):
        a(f'''v_and_b32 v{t}, 0xffc0, v{e}
v_and_b32 v{ad}, 0xffff, v{e}
v_add_u32 v{t}, v{t}, v{ad}
v_and_b32 v{ad}, 0x2000, v{e}
v_lshl_add_u32 v{ad}, v{t}, 7, v{ad}
v_bfe_u32 v{col}, v{e}, 21, 3
v_bfe_u32 v{t}, v{e}, 16, 1
v_lshl_add_u32 v{col}, v{col}, 1, v{t}''')
    a(f's_movk_i32 s{sA}, {WSTR}')
    for j in range(8):
        conv(8+j,0,1,2)
        a(f'''v_bfe_u32 v2, v{8+j}, 17, 4
v_mul_u32_u24 v2, s{sA}, v2
{'s_waitcnt lgkmcnt(0)' if j==0 else ''}
v_add_u32 v4, v{24+j}, v{X+j}
v_add_u32 v5, v2, v4
v_lshl_add_u32 v4, v4, 2, v2
v_cmpx_lt_i32 vcc, {j%4+16*(j//4)}, v3
ds_write_b32 v4, v0 offset:{L_AL}
ds_write_b8 v5, v1 offset:{L_CL}''')
    a('s_mov_b64 exec, -1')
    a(f'''L_p2d:
s_waitcnt vmcnt(0)
v_cmp_gt_u32 s[{sM}:{sM+1}], v6, v7
v_mov_b32 v5, 0x2000
v_cndmask_b32 v5, 0, v5, s[{sM}:{sM+1}]
v_or_b32 v{LO}, v{LO}, v5
v_or_b32 v{LO+1}, v{LO+1}, v5
v_xor_b32 v{SA}, v{SA}, v5
v_xor_b32 v{SA+1}, v{SA+1}, v5
v_readfirstlane_b32 s{sPOL}, v5
{'s_xor_b32 s%d, s%d, 0x2000'%(sPOL,sPOL) if ((MISC+SYNC)>>21)&1 ^ (rep<0) else ''}
s_cmp_lg_u32 s{sW}, 15
s_cbranch_scc1 L_p2e''')
    poll()
    a(f'''L_p2e:
s_waitcnt lgkmcnt(0)
s_barrier''')
    st(6)
    a(f'''s_cmp_lg_u32 s2, 255
s_cbranch_scc1 L_hop0
v_bfe_u32 v0, v{LANE}, 2, 2
v_and_b32 v1, 3, v{LANE}
v_lshl_add_u32 v0, v0, 3, v1           ; 8*(i>>2)+(i&3)
v_lshrrev_b32 v1, 4, v{LANE}           ; q
s_and_b32 s{sA}, s{sW}, 1
s_lshl_b32 s{sA}, s{sA}, 12            ; s*32 rows*128B
s_and_b32 s{sB}, s{sW}, 4
s_lshl_b32 s{sB}, s{sB}, 3
s_and_b32 s{sC}, s{sW}, 2
s_lshl_b32 s{sC}, s{sC}, 1
s_add_u32 s{sB}, s{sB}, s{sC}
v_lshlrev_b32 v2, 7, v0
v_lshl_add_u32 v2, v1, 4, v2           ; row*128 + q*16
s_cmp_ge_u32 s{sW}, 8
s_cbranch_scc1 L_jw''')
    srd(sT1,12,8192); srd(sT2,14,8192)
    a(f'''s_lshl_b32 s{sB}, s{sB}, 7
buffer_load_dwordx4 v[24:27], v2, s[{sT2}:{sT2+3}], s{sB} offen
buffer_load_dwordx4 v[28:31], v2, s[{sT2}:{sT2+3}], s{sB} offen offset:64
s_mov_b32 s{sC}, {fb(0.125*LOG2E):#x}
s_branch L_jm
L_jw:''')
    srd(sT1,16,8192); srd(sT2,18,8192)
    a(f'''s_lshl_b32 s{sB}, s{sB}, 1
v_lshlrev_b32 v3, 1, v0
v_lshl_add_u32 v3, v1, 10, v3          ; (8q)*128 + col*2
v_add_u32 v4, 4096, v3''')
    for s in range(2):
        for j in range(8):
            a(f'buffer_load_ushort v{X+8*s+j}, v{3+s}, s[{sT2}:{sT2+3}], s{sB} offen offset:{128*j}')
    a('s_waitcnt vmcnt(0)')
    for i in range(8): a(f'v_lshl_or_b32 v{24+i}, v{X+2*i+1}, 16, v{X+2*i}')
    a(f'''s_mov_b32 s{sC}, 1.0
L_jm:
buffer_load_dwordx4 v[8:11], v2, s[{sT1}:{sT1+3}], s{sA} offen
buffer_load_dwordx4 v[12:15], v2, s[{sT1}:{sT1+3}], s{sA} offen offset:64
buffer_load_dwordx4 v[16:19], v2, s[{sT1}:{sT1+3}], s{sA} offen offset:512
buffer_load_dwordx4 v[20:23], v2, s[{sT1}:{sT1+3}], s{sA} offen offset:576
s_lshl_b32 s{sD}, s{sW}, 10
s_add_u32 s{sD}, s{sD}, {WGT}
v_lshlrev_b32 v5, 4, v{LANE}
s_waitcnt vmcnt(0)
v_mfma_f32_16x16x32_bf16 v[{X}:{X+3}], v[8:11], v[24:27], 0
v_mfma_f32_16x16x32_bf16 v[{X+4}:{X+7}], v[16:19], v[24:27], 0
v_mfma_f32_16x16x32_bf16 v[{X}:{X+3}], v[12:15], v[28:31], v[{X}:{X+3}]
v_mfma_f32_16x16x32_bf16 v[{X+4}:{X+7}], v[20:23], v[28:31], v[{X+4}:{X+7}]''')
    for i in range(8): a(f'v_mul_f32 v{X+i}, s{sC}, v{X+i}')
    for i in range(4): a(f'v_cvt_pk_bf16_f32 v{12+i}, v{X+2*i}, v{X+2*i+1}')
    a(f'''buffer_store_dwordx4 v[12:15], v5, s[{sWS}:{sWS+3}], s{sD} offen sc1
s_cmp_ge_u32 s{sW}, 2
s_cbranch_scc1 L_jend''')
    srd(sT1,20,128)
    a(f'''v_lshlrev_b32 v2, 4, v1
s_lshl_b32 s{sA}, s{sW}, 6
buffer_load_dwordx4 v[8:11], v2, s[{sT1}:{sT1+3}], s{sA} offen
v_lshlrev_b32 v3, 1, v{LANE}
buffer_load_ushort v4, v3, s[{sT1}:{sT1+3}], 0 offen
s_mov_b32 s{sM}, 0x11111111
s_mov_b32 s{sM+1}, 0x11111111
s_mov_b32 s{sM2}, 0x22222222
s_mov_b32 s{sM2+1}, 0x22222222
v_mov_b32 v6, 0x3c803c80
v_cndmask_b32 v6, 0, v6, s[{sM}:{sM+1}]
s_add_u32 s{sD}, s{sD}, 16384
s_waitcnt vmcnt(0)''')
    for i in range(4): a(f'v_cndmask_b32 v{8+i}, v6, v{8+i}, s[{sM2}:{sM2+1}]')
    a(f'''buffer_store_dwordx4 v[8:11], v5, s[{sWS}:{sWS+3}], s{sD} offen sc1
v_lshlrev_b32 v4, 16, v4''')
    for m in ('quad_perm:[1,0,3,2]','quad_perm:[2,3,0,1]','row_half_mirror','row_mirror'):
        a(f'v_add_f32_dpp v4, v4, v4 {m} row_mask:0xf bank_mask:0xf')
    allq(4,6)
    a(f'''s_mov_b32 s{sA}, {WGT+18432}
v_lshlrev_b32 v3, 2, v{LANE}
buffer_store_dword v4, v3, s[{sWS}:{sWS+3}], s{sA} offen sc1
L_jend:
s_waitcnt vmcnt(0)''')
    def prep():
        a(f'''v_lshrrev_b32 v{AP}, 3, v{LANE}
v_lshl_add_u32 v{AP}, v{AP}, 3, s{sRB}
v_lshrrev_b32 v{CP}, 4, v{LANE}
v_lshl_add_u32 v{CP}, v{CP}, 2, s{sRB}''')
        for b in range(R): a(f'ds_read_b64 v[{X+2*b}:{X+2*b+1}], v{AP} offset:{L_AL+64*b}')
        a(f'''ds_read_b64 v[{EN}:{EN+1}], v{AP} offset:{L_AL+64*R}
s_mov_b32 s{sREM}, s{sU}
s_mov_b32 s{sBD}, s{sNB}
s_mov_b32 s{sI}, 0
s_waitcnt lgkmcnt(0)''')
        for b in range(2*R): a(f'v_xor_b32 v{X+b}, v{X+b}, v{LO+(b&1)}')
    def hopinit():
        a(f'''s_add_u32 s{sK}, s{sK}, 1
s_add_u32 s{sTOUT}, s{sTOUT}, {TSTR}
s_addc_u32 s{sTOUT+1}, s{sTOUT+1}, 0
s_cmp_eq_u32 s{sK}, 7
s_cselect_b32 s{sBA}, s{sTLs}, s{sTN}
s_and_b32 s{sTH}, s{sBA}, 0xff
s_mov_b32 s{sSEG}, 0
s_mov_b32 s{sOFF}, 0
s_mov_b32 s{sCNT}, 0''')
        for i in range(16): a(f'v_mov_b32 v{ACC+i}, 0')
        prep()
    a('L_hop0:')
    hopinit()
    a(f'''L_hop:
s_add_u32 s{sSI}, s{sSI}, 8
s_setprio 3''')
    st(0)
    a(f'''s_cmp_eq_u32 s{sSLOW}, 0
s_cbranch_scc1 L_gather
L_slow:
s_cmp_lt_u32 s{sOFF}, s{sCNT}
s_cbranch_scc1 L_slow2
s_cmp_ge_u32 s{sSEG}, 256
s_cbranch_scc1 L_gdone
s_lshl_b32 s{sA}, s{sSEG}, 10
v_mov_b32 v16, s{sA}
buffer_load_dword v17, v16, s[{sWS}:{sWS+3}], s{sBK} offen sc1
s_mul_i32 s{sSTART}, s{sSEG}, {CHSTR}
s_add_u32 s{sSEG}, s{sSEG}, 1
s_mov_b32 s{sOFF}, 0
s_waitcnt vmcnt(0)
v_readfirstlane_b32 s{sA}, v17
s_lshr_b32 s{sCNT}, s{sA}, 16
s_and_b32 s{sA}, s{sA}, 0xffff
s_lshl_b32 s{sA}, s{sA}, 2
s_add_u32 s{sSTART}, s{sSTART}, s{sA}
s_branch L_slow
L_slow2:
v_add_u32 v16, s{sOFF}, v{LANE}
v_lshl_add_u32 v17, v16, 2, s{sSTART}
buffer_load_dword v18, v17, s[{sWS}:{sWS+3}], 0 offen sc1
s_add_u32 s{sOFF}, s{sOFF}, 64
v_cmp_gt_u32 s[{sM}:{sM+1}], s{sCNT}, v16
s_waitcnt vmcnt(0)
v_bfe_u32 v19, v18, 17, 4
v_cmp_eq_u32 vcc, s{sW}, v19
s_and_b64 s[{sM}:{sM+1}], s[{sM}:{sM+1}], vcc''')
    conv(18,20,21,22)
    a(f'''v_mov_b32 v22, {OOB}
v_cndmask_b32 v20, v22, v20, s[{sM}:{sM+1}]
v_lshl_add_u32 v22, v{LANE}, 2, s{sRB}
v_add_u32 v23, s{sRB}, v{LANE}
ds_write_b32 v22, v20 offset:{L_AL}
ds_write_b8 v23, v21 offset:{L_CL}''')
    prep()
    def pacer(tag):
        a(f'''L_pa{tag}:
s_cmp_lt_u32 s{sI}, s{sTH}
s_cbranch_scc1 L_pb{tag}
s_cmp_eq_u32 s{sBD}, 0
s_cbranch_scc1 L_pb{tag}
s_sub_u32 s{sBD}, s{sBD}, 1
s_lshr_b32 s{sBA}, s{sBA}, 8
s_and_b32 s{sTH}, s{sBA}, 0xff
s_barrier
s_branch L_pa{tag}
L_pb{tag}:''')
    def issue(b,e0,e1):
        a(f'''s_add_u32 m0, s{sRB}, {2048*b}
s_add_u32 s{sI}, s{sI}, 1
buffer_load_dwordx4 v{e0}, s[{sTIN}:{sTIN+3}], 0 offen sc1 lds
s_add_u32 m0, s{sRB}, {2048*b+1024}
buffer_load_dwordx4 v{e1}, s[{sTIN}:{sTIN+3}], 0 offen sc1 lds''')
    a('L_gather:')
    for b in range(R):
        pacer(f'p{b}')
        a(f'''s_cmp_le_u32 s{sU}, {b}
s_cbranch_scc1 L_gl0''')
        issue(b,X+2*b,X+2*b+1)
    a('L_gl0:')
    scatter()
    a('L_gl:')
    for b in range(R):
        pacer(b)
        if prio:
            a(f'''s_sub_i32 s{sA}, s{sTH}, s{sI}
s_setprio 0
s_cmp_le_i32 s{sA}, {prio-1}
s_cbranch_scc1 L_pc{b}_
s_setprio 1
s_cmp_le_i32 s{sA}, {prio}
s_cbranch_scc1 L_pc{b}_
s_setprio 2
s_cmp_le_i32 s{sA}, {prio+1}
s_cbranch_scc1 L_pc{b}_
s_setprio 3
L_pc{b}_:''')
        a(f'''ds_read_b32 v{COLW}, v{CP} offset:{L_CL+16*b}
s_cmp_ge_u32 s{sREM}, {R}
s_cbranch_scc1 L_gw{b}
s_cmp_eq_u32 s{sREM}, 0
s_cbranch_scc1 L_gend
s_setprio 3''')
        for m in range(R-1,1,-1):
            a(f'''s_waitcnt vmcnt({2*(m-1)})
s_cmp_eq_u32 s{sREM}, {m}
s_cbranch_scc1 L_gw{b}''')
        a(f'''s_waitcnt vmcnt(0)
L_gw{b}:
s_waitcnt lgkmcnt(0)
v_xad_u32 v{TMP}, v{COLW}, v{NOTN}, s{sK1}
v_xor_b32 v{DA}, v{EN}, v{LO}
v_xor_b32 v{DA+1}, v{EN+1}, v{LO+1}
s_waitcnt vmcnt({2*(R-1)})''')
        for t in range(4): a(f'ds_read_b64_tr_b16 v[{AOP+2*t}:{AOP+2*t+1}], v{TRA+t} offset:{2048*b}')
        a(f'''ds_read_b64 v[{EN}:{EN+1}], v{AP} offset:{L_AL+64*(R+1+b)}
v_and_b32 v{B1}, s{sK2}, v{TMP}
v_lshlrev_b32 v{TMP}, 8, v{TMP}
v_and_b32 v{B0}, s{sK2}, v{TMP}
s_cmp_le_u32 s{sREM}, {R}
s_waitcnt lgkmcnt(1)
s_cbranch_scc1 L_gn{b}''')
        issue(b,DA,DA+1)
        a(f'L_gn{b}:')
        for t in range(4): a(f'v_mfma_f32_16x16x16_bf16 v[{ACC+4*t}:{ACC+4*t+3}], v[{AOP+2*t}:{AOP+2*t+1}], v[{B0}:{B1}], v[{ACC+4*t}:{ACC+4*t+3}]')
        a(f's_sub_u32 s{sREM}, s{sREM}, 1')
    a(f'''v_add_u32 v{AP}, {64*R}, v{AP}
v_add_u32 v{CP}, {16*R}, v{CP}
s_branch L_gl
L_gend:
s_waitcnt lgkmcnt(0)
s_cmp_lg_u32 s{sSLOW}, 0
s_cbranch_scc1 L_slow
L_gdone:''')
    scatter()
    st(1)
    a(f'''s_cmp_eq_u32 s{sK}, 7
s_cbranch_scc1 L_final''')
    a('s_setprio 3')
    gstore()
    a('s_setprio 0')
    st(2)
    a(f'''s_add_u32 s{sEV}, s{sEV}, 1
s_add_u32 s{sTIN}, s{sTIN}, {TSTR}
s_addc_u32 s{sTIN+1}, s{sTIN+1}, 0
s_cmp_lg_u32 s{sW}, 15
s_cbranch_scc1 L_hA''')
    stats()
    a('''s_waitcnt vmcnt(0)
s_barrier''')
    signal2() if rep else signal()
    st(4)
    a(f'''s_branch L_job
L_hA:''')
    if sfirst: stats()
    a('s_waitcnt vmcnt(0)')
    st(3)
    a('s_barrier')
    if not sfirst: stats()
    st(4)
    a(f'''L_job:
s_cmp_lg_u32 s{sK}, 2
s_cbranch_scc1 L_jpf0
s_lshl_b32 s{sA}, s{sW}, 10
s_add_u32 m0, s{sA}, {L_W}
s_add_u32 s{sA}, s{sA}, {WGT}
v_lshlrev_b32 v3, 4, v{LANE}
buffer_load_dwordx4 v3, s[{sWS}:{sWS+3}], s{sA} offen sc1 lds
s_cmp_ge_u32 s{sW}, 3
s_cbranch_scc1 L_hB
s_add_u32 m0, m0, 16384
s_add_u32 s{sA}, s{sA}, 16384
buffer_load_dwordx4 v3, s[{sWS}:{sWS+3}], s{sA} offen sc1 lds
s_branch L_hB
L_jpf0:
s_cmp_lg_u32 s{sW}, 14
s_cbranch_scc1 L_hB
L_jpf:
s_cmp_lg_u32 s{sK}, {6 if not nopf else 99}
s_cbranch_scc1 L_hB
s_getpc_b64 s[94:95]
L_pc2:
v_lshlrev_b32 v3, 7, v{LANE}
v_min_u32 v4, L_end-L_pc2, v3
global_load_dword v4, v4, s[94:95]
v_add_u32 v3, 8192, v3
v_min_u32 v3, L_end-L_pc2, v3
global_load_dword v5, v3, s[94:95]
s_waitcnt vmcnt(0)''')
    a('L_hB:')
    st(5)
    hopinit()
    a(f'''s_cmp_lg_u32 s{sW}, 15
s_cbranch_scc1 L_hC''')
    poll2() if rep else poll()
    a('''L_hC:
s_barrier
s_branch L_hop''')
    a('L_final:\ns_setprio 0')
    if stamp:
        a(f'''s_lshl_b32 s{sA}, s2, 4
s_add_u32 s{sA}, s{sA}, s{sW}
s_lshl_b32 s{sA}, s{sA}, 8
s_add_u32 s88, s{sA}, {STAMP}
v_lshlrev_b32 v16, 2, v{LANE}
buffer_store_dword v{TS}, v16, s[{sWS}:{sWS+3}], s88 offen''')
    def fst(i):
        if stamp: a(f'''s_memrealtime s[80:81]
s_waitcnt lgkmcnt(0)
s_mov_b32 s{82+i}, s80''')
    if stamp:
        fst(0)
        a('s_memtime s[86:87]\ns_waitcnt lgkmcnt(0)')
    srd(sT1,22,N*128)
    a(f'''s_mov_b32 s{sM2}, 0x80808080
s_mov_b32 s{sM2+1}, 0x80808080
s_mov_b32 vcc_lo, 0x00ff00ff
s_mov_b32 vcc_hi, 0xff00ff00
s_mov_b32 s{sM}, 0x00f0000f
s_mov_b32 s{sM+1}, 0xf0000f00
s_lshl_b32 s{sB}, s{sW}, 1
s_mul_i32 s{sD}, s2, {NPW}
s_add_u32 s{sD}, s{sD}, s{sB}
s_lshl_b32 s{sD}, s{sD}, 7''')
    for p in range(7):
        a(f'''s_mov_b32 s{4+2*p}, {0x00010001<<(2*p):#x}
s_mov_b32 s{5+2*p}, {0x00020002<<(2*p):#x}''')
    a(f'''s_mov_b32 s18, 0x00300003
s_mov_b32 s19, 0x30000300
s_mov_b32 s20, 0x00c0000c
s_mov_b32 s21, 0xc0000c00
s_cmp_ge_u32 s{sW}, 2
s_cbranch_scc1 L_fin6''')
    def final(NP):
        it=[]
        def e(x):
            if isinstance(x,list): it.append(x); return
            for ln in x.split('\n'):
                ln=ln.split(';')[0].strip()
                if ln: it.append(ln)
        WA=69; SG=TG; SI=TG+1; PW=62
        LX=4608; LWB=LX+3*768+520+8
        assert LWB+256<=L_ST
        tup=lambda r,n=4: f'v[{r}:{r+n-1}]'
        e(f'''v_lshlrev_b32 v{WA}, 4, v{LANE}
v_add_u32 v{WA}, {L_W}, v{WA}
v_lshl_add_u32 v{PW}, v{LANE}, 3, s{sRB}
v_lshrrev_b32 v60, 2, v{LANE}
v_and_b32 v61, 7, v{LANE}
v_and_or_b32 v60, v60, 8, v61
v_add_u32 v61, 16, v60
v_cndmask_b32 v60, v61, v60, vcc
v_lshl_add_u32 v{SG}, v60, 3, s{sRB}''')
        for f in (6,7): e(f'ds_read_b128 {tup(4*f)}, v{WA} offset:{1024*f}')
        stats(e,NP,7)
        for f in range(6): e(f'ds_read_b128 {tup(4*f)}, v{WA} offset:{1024*f}')
        UA=[32,36,40]; UB=44; SAa=52; SBb=56; Y=60
        cnt=[0]
        def scores(p,S):
            for t in (3,0,1,2):
                u=UA[cnt[0]%3]; cnt[0]+=1
                e(f'''v_mfma_f32_16x16x32_bf16 {tup(u)}, {tup(8*t)}, {tup(T(p))}, 0
v_mfma_f32_16x16x32_bf16 {tup(u)}, {tup(8*t+4)}, {tup(T(p)+4)}, {tup(u)}
v_cvt_pk_bf16_f32 v{UB+2*t}, v{u}, v{u+1}
v_cvt_pk_bf16_f32 v{UB+2*t+1}, v{u+2}, v{u+3}''')
            e(f'''v_mfma_f32_16x16x32_bf16 {tup(S)}, {tup(T(p))}, {tup(UB)}, 0
v_mfma_f32_16x16x32_bf16 {tup(S)}, {tup(T(p)+4)}, {tup(UB+4)}, {tup(S)}''')
        for g in range((NP+1)//2):
            two=2*g+1<NP
            if two: scores(2*g+1,SBb)
            scores(2*g,SAa)
            e(f'ds_read_b32 v{SI}, v{SG} offset:{L_ST+256*g}')
            S=SAa
            if two:
                for r in range(4): e(f'v_cndmask_b32_dpp v{S+r}, v{SBb+r}, v{S+r}, vcc row_ror:8 row_mask:0xf bank_mask:0xf')
            e(f'''v_max3_f32 v{Y}, v{S}, v{S+1}, v{S+2}
v_max_f32 v{Y}, v{Y}, v{S+3}
v_mov_b32 v{Y+1}, v{Y}
v_permlane16_swap_b32 v{Y+1}, v{Y}
v_max_f32 v{Y}, v{Y}, v{Y+1}''')
            for r in range(4): e(f'v_sub_f32 v{S+r}, v{S+r}, v{Y}')
            for r in range(4): e(f'v_exp_f32 v{S+r}, v{S+r}')
            e(f'''v_add_f32 v{Y}, v{S}, v{S+1}
v_add_f32 v{Y+1}, v{S+2}, v{S+3}
v_add_f32 v{Y}, v{Y}, v{Y+1}
v_mov_b32 v{Y+1}, v{Y}
v_permlane16_swap_b32 v{Y+1}, v{Y}
v_add_f32 v{Y}, v{Y}, v{Y+1}
v_mul_f32 v{Y}, v{Y}, v{SI}
v_rcp_f32 v{Y}, v{Y}''')
            for r in range(4): e(f'v_mul_f32 v{S+r}, v{S+r}, v{Y}')
            e(f'''v_cvt_pk_bf16_f32 v{Y}, v{S}, v{S+1}
v_cvt_pk_bf16_f32 v{Y+1}, v{S+2}, v{S+3}''')
            if g==(NP+1)//2-1:
                for t in (3,0,1,2):
                    for s in range(2): e(f'ds_read_b128 {tup(8*t+4*s)}, v{WA} offset:{8192+1024*(2*t+s)}')
            e(f'ds_write_b64 v{PW}, v[{Y}:{Y+1}] offset:{LX+768*g}')
        POOL=[32,36,40,44,48]; ZT=52; OW=60; OT=61; GW=63; PRA=64; PRB=68
        e(f'''v_mov_b32 v{GW}, {OOB}
v_cndmask_b32 v{PRA}, v{GW}, v{PW}, vcc
v_and_b32 v{ZT}, 15, v{LANE}
v_lshl_add_u32 v{ZT+1}, v{ZT}, 3, s{sRB}
v_add_u32 v{ZT+1}, {LX}, v{ZT+1}
v_cndmask_b32 v{GW}, v{GW}, v{ZT+1}, s[{sM}:{sM+1}]
v_lshrrev_b32 v{ZT+1}, 4, v{LANE}
v_mul_u32_u24 v{OW}, 144, v{ZT}
v_lshl_add_u32 v{OW}, v{ZT+1}, 4, v{OW}
v_add_u32 v{OW}, s{sRB}, v{OW}
v_lshrrev_b32 v{ZT+4}, 2, v{LANE}
v_mul_u32_u24 v{ZT+4}, 112, v{ZT+4}
v_add_u32 v{OT}, v{ZT+4}, v{PW}
v_and_b32 v{ZT}, 1, v{LANE}
v_lshlrev_b32 v{ZT}, 4, v{ZT}
v_mov_b32 v{ZT+1}, 0x3f80
v_lshlrev_b32 v{ZT}, v{ZT}, v{ZT+1}
v_cndmask_b32 v{ZT+2}, 0, v{ZT}, s[18:19]
v_cndmask_b32 v{ZT+3}, 0, v{ZT}, s[20:21]
v_mov_b64 v[{ZT+6}:{ZT+7}], v[{ZT+2}:{ZT+3}]
v_xor_b32 v{PRB}, 64, v{PRA}''')
        def o2reg(p,t):
            return (TG+16*(p//2)+4*t+2*(p&1)) if p<6 else (TG+48+2*t)
        pc=[0]
        def pool():
            r=POOL[pc[0]%len(POOL)]; pc[0]+=1; return r
        e(f'ds_read_b64 v[{T(0)-2}:{T(0)-1}], v{PRA} offset:{LX}')
        for p in range(NP):
            tp=T(p); ob=tp-2
            z=[]
            for t in range(4):
                u=pool(); z.append(u)
                e(f'''v_mfma_f32_16x16x32_bf16 {tup(u)}, {tup(tp)}, {tup(8*t)}, 0
v_mfma_f32_16x16x32_bf16 {tup(u)}, {tup(tp+4)}, {tup(8*t+4)}, {tup(u)}''')
            for t in range(4):
                zt=ZT+4*(t&1); b=tp-2+2*t; u=z[t]
                if t: e(f'v_mov_b64 v[{b}:{b+1}], v[{b-2}:{b-1}]')
                e(f'''v_cvt_pk_bf16_f32 v{zt}, v{u}, v{u+1}
v_cvt_pk_bf16_f32 v{zt+1}, v{u+2}, v{u+3}
v_mfma_f32_16x16x32_bf16 {tup(u)}, {tup(zt)}, {tup(b)}, 0''')
            if p+1<NP: e(f'ds_read_b64 v[{tp+6}:{tp+7}], v{PRB if (p+1)&1 else PRA} offset:{LX+768*((p+1)//2)}')
            for t in range(4):
                e(f'''v_cvt_pk_bf16_f32 v{ob+2*t}, v{z[t]}, v{z[t]+1}
v_cvt_pk_bf16_f32 v{ob+2*t+1}, v{z[t]+2}, v{z[t]+3}''')
            img=2304*(p&1)
            a0=pool(); a1=pool(); g_=pool()
            e(f'''ds_read_b128 {tup(a0)}, v{WA} offset:16384
ds_read_b128 {tup(a1)}, v{WA} offset:17408
ds_write_b128 v{OW}, {tup(ob)} offset:{img}
ds_write_b128 v{OW}, {tup(ob+4)} offset:{img+64}
v_mfma_f32_16x16x32_bf16 {tup(g_)}, {tup(ob)}, {tup(ob)}, 0
v_mfma_f32_16x16x32_bf16 {tup(g_)}, {tup(ob+4)}, {tup(ob+4)}, {tup(g_)}
v_mfma_f32_16x16x32_bf16 {tup(a0)}, {tup(a0)}, {tup(ob)}, 0
v_mfma_f32_16x16x32_bf16 {tup(a0)}, {tup(a1)}, {tup(ob+4)}, {tup(a0)}''')
            if p&1 or p==NP-1:
                for pp in ((p-1,p) if p&1 else (p,)):
                    for t in range(4):
                        r=o2reg(pp,t)
                        e(f'ds_read_b64_tr_b16 v[{r}:{r+1}], v{OT} offset:{2304*(pp&1)+32*t}')
            e(f'''ds_write_b64 v{GW}, v[{g_}:{g_+1}] offset:{384*p}
ds_write_b64 v{GW}, v[{g_+2}:{g_+3}] offset:{384*p+128}
ds_write_b64 v{GW}, v[{a0}:{a0+1}] offset:{384*p+256}''')
        F=0; K=16; EPS=K+7; OAD=K+8
        e(f'''v_subrev_u32 v{K}, s{sRB}, v{PW}               ; lane*8
v_and_b32 v{K+1}, 0x180, v{K}                   ; q*128
v_lshl_add_u32 v{K+2}, v{K+1}, 1, v{PW}         ; q*384 + n*8
v_and_b32 v{K+3}, 16, v{K}
v_lshl_add_u32 v{K+3}, v{K+3}, 3, v{K+2}
v_bfe_u32 v{K+4}, v{K}, 3, 1
v_lshl_add_u32 v{K+3}, v{K+4}, 2, v{K+3}
v_lshrrev_b32 v{K+4}, 2, v{K}
v_add_u32 v{K+4}, s{sRB}, v{K+4}                ; w write
v_lshrrev_b32 v{K+5}, 4, v{K+1}
v_add_u32 v{K+5}, s{sRB}, v{K+5}                ; w read
v_mov_b32 v{K+6}, {L_SH+2048}
v_mov_b32 v{EPS}, {fb(1e-5):#x}
ds_read_b32 v{K+6}, v{K+6}
v_and_b32 v{OAD}, 0x78, v{K}
v_lshlrev_b32 v{OAD}, 1, v{OAD}
v_lshl_add_u32 v{OAD}, v{K+1}, 5, v{OAD}
v_add_u32 v{OAD}, s{sD}, v{OAD}
v_add_u32 v{OAD+1}, {128*128}, v{OAD}
v_mov_b32 v{OAD+2}, {OOB}
v_mov_b32_dpp v{OAD+1}, v{OAD+2} quad_perm:[0,1,2,3] row_mask:{0x8 if NP==7 else 0xc} bank_mask:0xf''')
        Rr=lambda h:(0,8)[h]
        red=lambda op,x,y: '\n'.join(f'{op}_dpp v{{{x}}}, v{{{y if i==0 else x}}}, v{{{y if i==0 else x}}} {m} row_mask:0xf bank_mask:0xf' for i,m in enumerate(('quad_perm:[1,0,3,2]','quad_perm:[2,3,0,1]','row_half_mirror')))
        for h in range(2):
            r=Rr(h)
            e(f'''ds_read_b32 v{r}, v{K+3} offset:{LX+1536*h}
ds_read_b64 v[{r+2}:{r+3}], v{K+2} offset:{LX+256+1536*h}
ds_read_b64 v[{r+4}:{r+5}], v{PW} offset:{L_ST+512*h}''')
        for h in range(2):
            r=Rr(h)
            e(f'''v_mul_f32 v{{q}}, {fb(1/64):#x}, v{{q}}
v_fma_f32 v{{q}}, -v{{s}}, v{{s}}, v{{q}}
v_max_f32 v{{q}}, 0, v{{q}}
v_mul_f32 v{{a}}, v{{g}}, v{{g}}
v_fma_f32 v{{q}}, v{{a}}, v{{q}}, v{EPS}
v_rsq_f32 v{{q}}, v{{q}}
v_fma_f32 v{{d}}, -v{{s}}, v{K+6}, v{{d}}
v_mul_f32 v{{a}}, {fb(LOG2E):#x}, v{{g}}
v_mul_f32 v{{d}}, v{{d}}, v{{a}}
v_mul_f32 v{{d}}, v{{d}}, v{{q}}
{red('v_max_f32','a','d')}
v_sub_f32 v{{d}}, v{{d}}, v{{a}}
v_exp_f32 v{{d}}, v{{d}}
v_mul_f32 v{{m}}, v{{m}}, v{{d}}
{red('v_add_f32','a','d')}
{red('v_add_f32','m','m')}
v_rcp_f32 v{{a}}, v{{a}}
v_mul_f32 v{{d}}, v{{d}}, v{{g}}
v_mul_f32 v{{d}}, v{{d}}, v{{a}}
v_mul_f32 v{{m}}, v{{m}}, v{{a}}
v_cvt_pk_bf16_f32 v{{d}}, v{{d}}, v{{d}}'''.format(q=r,a=r+1,s=r+2,d=r+3,g=r+4,m=r+5))
        for h in range(2):
            r=Rr(h)
            e(f'''ds_write_b16 v{K+4}, v{r+3} offset:{LWB+128*h}
ds_write_b32 v{PW}, v{r+5} offset:{L_ST+512*h}''')
        WT=32; CI=28
        e(f'ds_read_b32 v{CI}, v{STA} offset:{L_ST}')
        for p in range(NP): e(f'ds_read_b64 v[{WT+2*p}:{WT+2*p+1}], v{K+5} offset:{LWB+32*p}')
        e(f'''v_mov_b32 v{CI+1}, v{CI}
v_mov_b64 v[{CI+2}:{CI+3}], v[{CI}:{CI+1}]''')
        for g in range((NP+1)//2):
            two=2*g+1<NP
            for p in ((2*g,2*g+1) if two else (2*g,)):
                e(f'''v_cndmask_b32 v{WT+2*p}, 0, v{WT+2*p}, s[{4+2*p}:{5+2*p}]
v_cndmask_b32 v{WT+2*p+1}, 0, v{WT+2*p+1}, s[{4+2*p}:{5+2*p}]''')
            for t in range(4):
                c=tup(CI) if g==0 else tup(F+4*t)
                r=o2reg(2*g,t)
                if two: e(f'v_mfma_f32_16x16x32_bf16 {tup(F+4*t)}, {tup(r)}, {tup(WT+4*g)}, {c}')
                else: e(f'v_mfma_f32_16x16x16_bf16 {tup(F+4*t)}, {tup(r,2)}, {tup(WT+4*g,2)}, {c}')
        for t in range(4):
            e(f'''v_cvt_pk_bf16_f32 v{48+2*t}, v{F+4*t}, v{F+4*t+1}
v_cvt_pk_bf16_f32 v{49+2*t}, v{F+4*t+2}, v{F+4*t+3}
ds_write_b64 v{SWA}, v[{48+2*t}:{49+2*t}] offset:{32*t}''')
        e(f'''ds_read_b128 v[32:35], v{SRA}
ds_read_b128 v[36:39], v{SRA} offset:1152
buffer_store_dwordx4 v[32:35], v{OAD}, s[{sT1}:{sT1+3}], 0 offen {oaux}
buffer_store_dwordx4 v[36:39], v{OAD+1}, s[{sT1}:{sT1+3}], 0 offen {oaux}''')
        if fskip:
            import re
            k0=next(i for i,x in enumerate(it) if isinstance(x,str) and x.startswith('v_mfma'))
            k1=next(i for i,x in enumerate(it) if isinstance(x,str) and x.startswith('v_subrev_u32'))
            it=it[:k0]+[x for x in it[k0:k1] if not re.match(fskip,x)]+it[k1:]
        out=schedule(it,ldslat=ldslat,window=window,verbose=True)
        n=len(out); nxt=0
        for i,ln in enumerate(out):
            if nxt<len(fprio) and i>=n*nxt//len(fprio):
                a(f's_setprio {fprio[nxt]}'); nxt+=1
            a(ln)
    final(7)
    a('s_branch L_fend\nL_fin6:')
    final(6)
    a('L_fend:')
    if stamp:
        fst(2)
        a('s_memtime s[80:81]\ns_waitcnt lgkmcnt(0)\ns_sub_u32 s86, s80, s86')
        a('s_waitcnt vmcnt(0)')
        fst(3)
        a(f'''v_mov_b32 v0, s82
v_mov_b32 v1, s84
v_mov_b32 v2, s85
v_mov_b32 v3, s86
v_mov_b32 v4, {60*4}
s_mov_b64 exec, 1
buffer_store_dwordx4 v[0:3], v4, s[{sWS}:{sWS+3}], s88 offen''')
    if enc:
        a(f'''s_cmp_lg_u32 s2, {encwg}
s_cbranch_scc1 L_end
s_cmp_lg_u32 s{sW}, 15
s_cbranch_scc1 L_end
s_waitcnt vmcnt(0)
s_memrealtime s[80:81]
s_waitcnt lgkmcnt(0)
{'s_mov_b32 s84, s80' if enc[1] is None else ''}
s_sub_u32 s82, s84, s82
s_mul_i32 s82, s82, {enc[2]}
s_min_u32 s82, s82, 100000
L_encs:
s_memrealtime s[84:85]
s_waitcnt lgkmcnt(0)
s_sub_u32 s84, s84, s80
s_cmp_lt_u32 s84, s82
s_cbranch_scc1 L_encs''')
    a('L_end:\ns_endpgm')
    body=a.pad(verbose=True)
    ref=open('standalone__hybrid_graph_tf_nagphormer__graph.s.ref').read().split('\n')
    head=[l for l in ref if l.startswith(';') and '@launch' not in l]
    out='\n'.join(head)+f'''
; @launch grid=(256,1,1) block=(1024,1,1) lds={LDS_BYTES}
.amdgcn_target "amdgcn-amd-amdhsa--gfx950"
.text
.globl {KNAME}
.p2align 8
.type {KNAME},@function
{KNAME}:
'''+body+f'''.section .rodata,"a"
.p2align 6
.amdhsa_kernel {KNAME}
  .amdhsa_next_free_vgpr 128
  .amdhsa_next_free_sgpr 100
  .amdhsa_accum_offset 128
  .amdhsa_group_segment_fixed_size 0
  .amdhsa_kernarg_size 96
  .amdhsa_user_sgpr_count 2
  .amdhsa_user_sgpr_kernarg_segment_ptr 1
  .amdhsa_system_sgpr_workgroup_id_x 1
  .amdhsa_float_denorm_mode_32 3
.end_amdhsa_kernel
'''
    return out
if __name__=='__main__':
    kw=eval('dict('+(sys.argv[2] if len(sys.argv)>2 else '')+')')
    open(sys.argv[1] if len(sys.argv)>1 else 'standalone__hybrid_graph_tf_nagphormer__graph.s','w').write(gen(**kw))
```

```python
import sys, struct
sys.path.insert(0,'gen')
from asmlib import Asm
from sched import schedule
N=50000; E=800000; NPW=196; CH=3125
KNAME='standalone__hybrid_graph_tf_nagphormer__graph_kernel'
TSTR=16<<20
MISC=112<<20
CHSTR=12544
OFFS=4<<20
SYNC=5<<20
STAMP=6<<20
WGT=(5<<20)+(512<<10)
PROBE=14<<20
WSTR=8960
L_RING=0; L_AL=6144; CAP=352; L_CL=L_AL+CAP*4; L_ST=7936
L_W=16*WSTR
L_CNT1=L_W+13312
L_SH=L_W+16384
L_CNT2=L_SH; L_SA=L_SH; L_MISC=L_SH+3072
LDS_BYTES=L_SH+4096
assert LDS_BYTES==163840 and L_CL+CAP<=L_ST and L_ST+1024<=WSTR
fb=lambda x: struct.unpack('<I',struct.pack('<f',x))[0]
LOG2E=1.4426950408889634
OOB=0x80000000
TREC=13<<20
PADE=0x00ffff80

def gen(R=3, NBAR=6, stamp=False, force_slow=False, spinmax=1<<18, reps=1, sfirst=False, prio=0, skip='', dbg=False, enc=None, nopf=False, oaux='sc1', encwg=100, ldslat=96, window=10**9, fprio=(), fskip='', sord='r', rep=1, cloc=0, psleep=1, g0p=(2,2,2,2), ev1=1):
    a=Asm()
    assert R==2
    ACC=0; AOP=16; B0=24; B1=25; COLW=26; TMP=27; EN=28; DA=30; TRA=32; LO=36; AP=38; CP=39; NOTN=40
    DIS=41; SA=42; X=44; TID=62; S1=63; TRD=64; STA=65; SWA=66; SRA=67; LANE=68; TS=69
    TG=70; T0=72
    T=lambda p:T0+8*p
    sWG=2; sW=3; sTIN=28; sTOUT=32; sWS=36; sT1=40; sT2=44
    sU=48; sREM=49; sBA=50; sBD=51; sRB=52; sK=53; sSLOW=54; sNB=55; sA=56; sB=57; sC=58; sD=59
    sK1=60; sK2=61; sSPIN=62; sEV=63; sM=64
    sP0=66; sP1=68; sPM=70; sSEG=71; sOFF=72; sCNT=73; sSTART=74; sBK=75; sSI=76; sXC=77; sDB=96; sPA=86; sPM2=87; sTN=6; sK3=7; sJ=89; sI=8; sTH=9; sPOL=10; sTM=11; LT=4096; sM2=78
    nst=[0]
    def st(i):
        if enc:
            for j,pt in enumerate(enc[:2]):
                if pt is not None and pt>=0 and i<8 and pt%8==i:
                    nst[0]+=1
                    a(f'''s_cmp_lg_u32 s{sSI}, {pt-i}
s_cbranch_scc1 L_enc{nst[0]}
s_memrealtime s[{82+2*j}:{83+2*j}]
s_waitcnt lgkmcnt(0)
L_enc{nst[0]}:''')
        if stamp and (stamp!='lite' or i==0):
            a(f'''s_memrealtime s[80:81]
s_waitcnt lgkmcnt(0)
s_add_u32 m0, s{sSI}, {i}
s_nop 0
v_writelane_b32 v{TS}, s80, m0''')
    def sx(i): st(8*i+6)
    def srd(d,lo,nbytes):
        a(f'''s_mov_b32 s{d}, s{lo}
s_mov_b32 s{d+1}, s{lo+1}
s_mov_b32 s{d+2}, {nbytes}
s_mov_b32 s{d+3}, 0x20000''')
    uid=[0]
    def L(x):
        uid[0]+=1; return f'L_{x}_{uid[0]}'
    def spin(lab):
        a(f'''{'s_sleep %d'%psleep if psleep else ''}
s_add_u32 s{sSPIN}, s{sSPIN}, 1
s_cmp_lt_u32 s{sSPIN}, {spinmax}
s_cbranch_scc1 {lab}
s_endpgm''')
    G0=T0; PE=T0+8; PB=PE+8; PK=PB+8; PQ=PK+8; PC=PQ+16
    if enc and enc[0]==-1: a('s_memrealtime s[82:83]')
    a(f'''s_cmp_ge_u32 s2, 256
s_cbranch_scc1 L_end
s_load_dwordx16 s[4:19], s[0:1], 0
s_load_dwordx8 s[20:27], s[0:1], 64
v_lshrrev_b32 v1, 6, v0
v_and_b32 v{LANE}, 63, v0
v_readfirstlane_b32 s{sW}, v1
v_lshlrev_b32 v2, 4, v0
s_mul_i32 s{sA}, s2, {CH*4}
s_and_b32 s{sJ}, s2, 7
s_lshl_b32 s{sJ}, s{sJ}, 5
s_lshr_b32 s{sB}, s2, 3
s_add_u32 s{sJ}, s{sJ}, s{sB}
s_mov_b32 s{sSI}, 0
s_mov_b32 s{sSPIN}, 0
v_mov_b32 v{TS}, 0
s_mul_i32 s{sRB}, s{sW}, {WSTR}
s_cmp_lg_u32 s{sW}, {13 if not nopf else 99}
s_cbranch_scc1 L_nopf
s_getpc_b64 s[94:95]
L_pc1:
v_lshlrev_b32 v3, 7, v{LANE}
global_load_dword v4, v3, s[94:95]
v_add_u32 v3, 8192, v3
v_min_u32 v3, L_final-L_pc1, v3
global_load_dword v5, v3, s[94:95]
L_nopf:
v_mov_b32 v16, 0
v_lshlrev_b32 v3, 2, v0
v_add_u32 v22, {L_CNT1}, v3
v_lshrrev_b32 v28, 4, v{LANE}
v_bfe_u32 v29, v{LANE}, 3, 1
v_lshl_add_u32 v28, v28, 5, v29
s_lshl_b32 s{sB}, s{sW}, 1
s_sub_u32 s{sC}, {NPW-128}, s{sB}
v_cmp_gt_u32 vcc, s{sC}, v28
s_mul_i32 s{sD}, s{sJ}, {NPW}
s_add_u32 s{sB}, s{sB}, s{sD}
v_add_u32 v28, s{sB}, v28
v_add_u32 v29, 128, v28
v_mov_b32 v19, 0x01000000
v_cndmask_b32 v29, v19, v29, vcc
v_and_b32 v19, 0x70, v2
v_lshl_add_u32 v20, v28, 7, v19
v_lshl_add_u32 v21, v29, 7, v19
v_lshlrev_b32 v24, 1, v28
v_lshlrev_b32 v25, 1, v29
s_waitcnt lgkmcnt(0)''')
    srd(sT1,6,E*4); srd(sT2,8,E*4)
    a(f'''s_cmp_ge_u32 s{sW}, 13
s_cbranch_scc1 L_noedge
buffer_load_dwordx4 v[4:7], v2, s[{sT2}:{sT2+3}], s{sA} offen
buffer_load_dwordx4 v[8:11], v2, s[{sT1}:{sT1+3}], s{sA} offen
s_cmp_ge_u32 s{sW}, 4
s_cbranch_scc1 L_noedge
ds_write_b32 v22, v16
ds_write_b32 v22, v16 offset:{L_CNT2-L_CNT1}
ds_write_b32 v22, v16 offset:{L_MISC-L_CNT1}
L_noedge:
s_add_u32 s26, s26, 0x1fffff
s_addc_u32 s27, s27, 0
s_and_b32 s26, s26, 0xffe00000
s_add_u32 s{sWS}, s26, {MISC}
s_addc_u32 s{sWS+1}, s27, 0
s_mov_b32 s{sWS+2}, {8<<20}
s_mov_b32 s{sWS+3}, 0x20000''')
    srd(sDB,24,256); srd(sT1,4,N*128); srd(sT2,10,N*2)
    a(f'''s_cmp_lg_u32 s{sW}, 15
s_cbranch_scc1 L_b1
buffer_load_dword v4, v16, s[{sDB}:{sDB+3}], 0 offen offset:128 sc1
s_cmp_ge_u32 s2, 24
s_cbranch_scc1 L_b1
v_lshlrev_b32 v6, 4, v{LANE}
v_mov_b32 v8, 0
v_mov_b32 v9, 0
v_mov_b32 v10, 0
v_mov_b32 v11, 0
s_lshl_b32 s{sA}, s2, 10
s_cmp_lt_u32 s2, 8
s_cbranch_scc1 L_z8
s_add_u32 s{sA}, s{sA}, {SYNC+32768-8192}
buffer_store_dwordx4 v[8:11], v6, s[{sWS}:{sWS+3}], s{sA} offen sc1
s_branch L_b1
L_z8:
s_add_u32 s{sA}, s{sA}, {SYNC}
buffer_store_dwordx4 v[8:11], v6, s[{sWS}:{sWS+3}], s{sA} offen sc1
s_add_u32 s{sA}, s{sA}, 8192
buffer_store_dwordx4 v[8:11], v6, s[{sWS}:{sWS+3}], s{sA} offen sc1
s_add_u32 s{sA}, s{sA}, 8192
buffer_store_dwordx4 v[8:11], v6, s[{sWS}:{sWS+3}], s{sA} offen sc1
L_b1:''')
    st(0)
    a(f'''s_waitcnt lgkmcnt(0)
s_barrier
s_cmp_lg_u32 s{sW}, 15
s_cbranch_scc1 L_xl
s_cmp_lg_u32 s2, 0
s_cbranch_scc1 L_xl
s_waitcnt vmcnt(0)
v_mov_b32 v6, 1
s_mov_b64 exec, 1
buffer_store_dword v6, v16, s[{sDB}:{sDB+3}], 0 offen sc1
s_mov_b64 exec, -1
L_xl:
buffer_load_dwordx4 v[{X}:{X+3}], v20, s[{sT1}:{sT1+3}], 0 offen
buffer_load_dwordx4 v[{X+4}:{X+7}], v21, s[{sT1}:{sT1+3}], 0 offen
buffer_load_ushort v26, v24, s[{sT2}:{sT2+3}], 0 offen
buffer_load_ushort v27, v25, s[{sT2}:{sT2+3}], 0 offen
v_mov_b32 v{TID}, v0
s_add_u32 s90, s26, {PROBE}
s_addc_u32 s91, s27, 0
s_add_u32 s92, s26, {MISC+SYNC}
s_addc_u32 s93, s27, 0
s_mov_b32 s{sEV}, 0
s_mov_b32 s{sK}, 0
s_getreg_b32 s{sXC}, hwreg(HW_REG_XCC_ID, 0, 3)
s_lshl_b32 s{sXC}, s{sXC}, 7
s_add_u32 s{sXC}, s{sXC}, 16384''')
    srd(sTIN,26,TREC); srd(sTOUT,26,TREC)
    def g0(wait):
        a(f'''v_and_b32 v19, 7, v{LANE}
v_lshlrev_b32 v19, 4, v19''')
        for i in range(2):
            a(f'''v_and_b32 v24, 0xffc0, v{28+i}
v_add_lshl_u32 v24, v24, v{28+i}, 7
v_and_b32 v25, 0x2000, v{28+i}
v_or3_b32 v{SA+i}, v24, v25, v19
v_xor_b32 v{DA+i}, 0x2000, v{SA+i}''')
        a(f's_waitcnt vmcnt({wait})')
        for i in range(2):
            a(f'v_lshlrev_b32 v{26+i}, 16, v{26+i}')
            for c in range(4):
                a(f'''v_lshlrev_b32 v24, 16, v{X+4*i+c}
v_and_b32 v25, 0xffff0000, v{X+4*i+c}
v_mul_f32 v24, v24, v{26+i}
v_mul_f32 v25, v25, v{26+i}
v_cvt_pk_bf16_f32 v{G0+4*i+c}, v24, v25''')
    def g0s(pts):
        n=0
        for k,(i,r) in enumerate(((0,SA),(0,DA),(1,SA),(1,DA))):
            if g0p[k] in pts:
                a(f'buffer_store_dwordx4 v[{G0+4*i}:{G0+3+4*i}], v{r+i}, s[{sTOUT}:{sTOUT+3}], 0 offen sc1'); n+=1
        return n
    def consts():
        a(f'''v_and_b32 v12, 15, v{LANE}            ; n
v_lshrrev_b32 v13, 4, v{LANE}          ; q
v_mov_b32 v20, {PADE:#x}
v_mov_b32 v21, {PADE:#x}
v_mov_b32 v22, {PADE:#x}
v_mov_b32 v23, {PADE:#x}
v_lshl_add_u32 v17, v{LANE}, 4, s{sRB}
ds_write_b128 v17, v[20:23] offset:{L_AL}
ds_write_b128 v17, v[20:23] offset:{L_AL+CAP*4-1024}
v_bfe_u32 v16, v{LANE}, 2, 1           ; r&1
v_bfe_u32 v14, v{LANE}, 3, 1           ; i
v_lshl_add_u32 v16, v13, 1, v16        ; g
v_lshl_add_u32 v16, v16, 7, s{sRB}
v_lshl_add_u32 v16, v14, 10, v16
v_and_b32 v18, 1, v13
v_lshl_add_u32 v17, v18, 1, v14        ; swz
v_lshl_add_u32 v16, v17, 5, v16
v_and_b32 v17, 3, v{LANE}
v_lshl_add_u32 v{TRA}, v17, 3, v16
v_xor_b32 v{TRA+1}, 32, v{TRA}
v_xor_b32 v{TRA+2}, 64, v{TRA}
v_xor_b32 v{TRA+3}, 96, v{TRA}
v_and_b32 v16, 7, v{LANE}
v_lshlrev_b32 v18, 2, v18
v_xor_b32 v17, v18, v16
v_lshlrev_b32 v{LO}, 4, v17
v_xor_b32 v{LO+1}, 32, v{LO}
s_mov_b32 s{sA}, 0x01010101
v_mul_lo_u32 v{NOTN}, v12, s{sA}
v_not_b32 v{NOTN}, v{NOTN}
s_mov_b32 s{sK1}, 0x40404041
s_mov_b32 s{sK2}, 0x40004000
s_mov_b32 s{sK3}, {PADE:#x}
s_movk_i32 s{sA}, 144
v_lshl_add_u32 v17, v13, 3, s{sRB}
v_mad_u32_u24 v{SWA}, v12, s{sA}, v17
v_cmp_gt_u32 vcc, 14, v12
v_mov_b32 v17, {OOB}
v_lshrrev_b32 v18, 3, v{LANE}          ; g
v_cndmask_b32 v{SWA}, v17, v{SWA}, vcc
v_lshl_add_u32 v17, v16, 4, s{sRB}
v_mad_u32_u24 v{SRA}, v18, s{sA}, v17
v_lshl_add_u32 v17, v13, 4, s{sRB}
v_mad_u32_u24 v{TRD}, v14, s{sA}, v17
v_lshl_add_u32 v{STA}, v12, 6, s{sRB}   ; col*64 (+k*8)
v_mov_b32 v{S1}, 1.0''')
    def tok0():
        a(f'''ds_write_b128 v{SRA}, v[{X}:{X+3}]
ds_write_b128 v{SRA}, v[{X+4}:{X+7}] offset:1152
v_lshrrev_b32 v16, 3, v{LANE}
v_lshl_add_u32 v16, v16, 2, s{sRB}
ds_write_b32 v16, v26 offset:2304
ds_write_b32 v16, v27 offset:2336
v_and_b32 v17, 15, v{LANE}
v_lshl_add_u32 v17, v17, 2, s{sRB}''')
        for t in range(4): a(f'ds_read_b64 v[{X+2*t}:{X+2*t+1}], v{SWA} offset:{32*t}')
        a(f'''ds_read_b32 v{DIS}, v17 offset:2304
s_waitcnt lgkmcnt(0)''')
        for i in range(8):
            a(f'''v_lshlrev_b32 v{ACC+2*i}, 16, v{X+i}
v_and_b32 v{ACC+2*i+1}, 0xffff0000, v{X+i}''')
    def scan(cnt, c, quad):
        a(f'''v_lshlrev_b32 v{c+9}, 4, v{LANE}
v_add_u32 v{c+9}, {cnt}, v{c+9}
ds_read_b128 v[{c}:{c+3}], v{c+9}
s_waitcnt lgkmcnt(0)
v_add_u32 v{c+6}, v{c}, v{c+1}
v_add_u32 v{c+7}, v{c+6}, v{c+2}
v_add_u32 v{c+4}, v{c+7}, v{c+3}''')
        if quad:
            a(f'''v_mov_b32_dpp v{c+5}, v{c+4} quad_perm:[0,0,1,2] row_mask:0xf bank_mask:0xf
v_cndmask_b32 v{c+5}, v{c+5}, 0, s[{sM}:{sM+1}]
v_add_u32 v{c+8}, v{c+4}, v{c+5}
v_mov_b32_dpp v{c+5}, v{c+8} quad_perm:[0,0,0,1] row_mask:0xf bank_mask:0xf
v_cndmask_b32 v{c+5}, v{c+5}, 0, s[{sM2}:{sM2+1}]
v_add_u32 v{c+8}, v{c+8}, v{c+5}''')
        else:
            a(f'v_mov_b32 v{c+8}, v{c+4}')
            for m in ('row_shr:1 row_mask:0xf','row_shr:2 row_mask:0xf','row_shr:4 row_mask:0xf','row_shr:8 row_mask:0xf','row_bcast:15 row_mask:0xa','row_bcast:31 row_mask:0xc'):
                a(f'v_add_u32_dpp v{c+8}, v{c+8}, v{c+8} {m} bank_mask:0xf')
        a(f'''v_sub_u32 v{c+4}, v{c+8}, v{c+4}
v_add_u32 v{c+4}, {'v24' if quad else L_W//4}, v{c+4}
v_add_u32 v{c+5}, v{c+4}, v{c}
v_add_u32 v{c+6}, v{c+4}, v{c+6}
v_add_u32 v{c+7}, v{c+4}, v{c+7}
ds_write_b128 v{c+9}, v[{c+4}:{c+7}] offset:1024''')
    def signal(t0=16,t1=17):
        l=L('ns')
        a(f'''s_lshl_b32 s{sA}, s{sEV}, 10
s_and_b32 s{sB}, s2, 7
s_lshl_b32 s{sB}, s{sB}, 7
s_add_u32 s{sA}, s{sA}, s{sB}
s_mov_b32 s{sB}, 1
s_waitcnt lgkmcnt(0)
s_atomic_add s{sB}, s[92:93], s{sA} glc
s_add_u32 s{sC}, s{sA}, {SYNC+8192}
v_mov_b32 v{t0}, 0
v_mov_b32 v{t1}, 1
s_waitcnt lgkmcnt(0)
s_cmp_lg_u32 s{sB}, 31
s_cbranch_scc1 {l}
s_mov_b64 exec, 1
buffer_store_dword v{t1}, v{t0}, s[{sWS}:{sWS+3}], s{sC} offen sc1
s_mov_b64 exec, -1
{l}:''')
    def poll():
        l=L('pl'); d=L('pd')
        a(f'''s_lshl_b32 s{sA}, s{sEV}, 10
s_add_u32 s{sA}, s{sA}, {SYNC+8192}
v_lshlrev_b32 v16, 7, v{LANE}
s_mov_b64 exec, 0xff
{l}:
buffer_load_dword v17, v16, s[{sWS}:{sWS+3}], s{sA} offen sc1
s_waitcnt vmcnt(0)
v_cmp_eq_u32 vcc, 0, v17
s_cbranch_vccz {d}''')
        spin(l)
        a(f'''{d}:
s_mov_b64 exec, -1''')
    def signal2():
        l=L('ns')
        a(f'''s_lshl_b32 s{sA}, s{sEV}, 10
s_and_b32 s{sC}, s2, 7
s_lshl_b32 s{sC}, s{sC}, 7
s_add_u32 s{sA}, s{sA}, s{sC}
{'s_add_u32 s%d, s%d, 49152'%(sA,sA) if cloc else ''}
{'s_xor_b32 s%d, s%d, s%d'%(sA,sA,sPOL) if cloc else ''}
s_mov_b32 s{sB}, 1
s_waitcnt lgkmcnt(0)
s_atomic_add s{sB}, s[92:93], s{sA} glc
s_add_u32 s{sC}, s{sC}, {SYNC+32768}
v_lshlrev_b32 v16, {10 if rep==2 else 13}, v{LANE}
v_mov_b32 v17, s{sEV}
s_waitcnt lgkmcnt(0)
s_cmp_lg_u32 s{sB}, 31
s_cbranch_scc1 {l}
s_mov_b64 exec, {0xffff if rep==2 else 3}
buffer_store_dword v17, v16, s[{sWS}:{sWS+3}], s{sC} offen sc1
s_mov_b64 exec, -1
{l}:''')
    def poll2():
        l=L('pl'); d=L('pd')
        a(f'''s_sub_u32 s{sA}, s{sXC}, 16384
s_lshl_b32 s{sA}, s{sA}, 3
{'' if rep==2 else 's_mov_b32 s%d, 0'%sA}
s_add_u32 s{sA}, s{sA}, s{sPOL}
s_add_u32 s{sA}, s{sA}, {SYNC+32768}
v_lshlrev_b32 v16, 7, v{LANE}
s_mov_b64 exec, 0xff
{l}:
buffer_load_dword v17, v16, s[{sWS}:{sWS+3}], s{sA} offen sc1
s_waitcnt vmcnt(0)
v_cmp_gt_u32 vcc, s{sEV}, v17
s_cbranch_vccz {d}''')
        spin(l)
        a(f'''{d}:
s_mov_b64 exec, -1''')
    def gstore():
        a(f'v_mul_f32 v{TMP}, v{S1}, v{DIS}')
        for t in range(4):
            for r in range(4): a(f'v_mul_f32 v{X+r}, v{TMP}, v{ACC+4*t+r}')
            a(f'''v_cvt_pk_bf16_f32 v{AOP+2*t}, v{X}, v{X+1}
v_cvt_pk_bf16_f32 v{AOP+2*t+1}, v{X+2}, v{X+3}
ds_write_b64 v{SWA}, v[{AOP+2*t}:{AOP+2*t+1}] offset:{32*t}''')
        a(f'''ds_read_b128 v[{X+8}:{X+11}], v{SRA}
ds_read_b128 v[{X+12}:{X+15}], v{SRA} offset:1152
v_xor_b32 v{DA}, 0x2000, v{SA}
v_xor_b32 v{DA+1}, 0x2000, v{SA+1}''')
        seq={'':((0,SA),(0,DA),(1,SA),(1,DA)),'r':((0,DA),(1,DA),(0,SA),(1,SA)),'l':((0,SA),(1,SA),(0,DA),(1,DA))}[sord]
        seen=set()
        for i,r in seq:
            if i not in seen: a(f's_waitcnt lgkmcnt({1-i})'); seen.add(i)
            a(f'buffer_store_dwordx4 v[{X+8+4*i}:{X+11+4*i}], v{r+i}, s[{sTOUT}:{sTOUT+3}], 0 offen sc1')
    def allq(r,t):
        a(f'''v_mov_b32 v{t}, v{r}
v_permlane16_swap_b32 v{t}, v{r}
v_add_f32 v{r}, v{r}, v{t}
v_mov_b32 v{t}, v{r}
v_permlane32_swap_b32 v{t}, v{r}
v_add_f32 v{r}, v{r}, v{t}''')
    def stats(a=a, NP=7, k=None):
        for i in range(2): a(f'v_add_f32 v{X+i}, v{ACC+i}, v{ACC+2+i}')
        for i in range(2): a(f'v_mul_f32 v{X+4+i}, v{ACC+i}, v{ACC+i}')
        for i in range(2,16):
            if i>=4: a(f'v_add_f32 v{X+i%2}, v{X+i%2}, v{ACC+i}')
            a(f'v_fmac_f32 v{X+4+i%2}, v{ACC+i}, v{ACC+i}')
        a(f'''v_add_f32 v{X}, v{X}, v{X+1}
v_add_f32 v{X+4}, v{X+4}, v{X+5}
v_mul_f32 v{X+5}, v{S1}, v{S1}
v_permlane16_swap_b32 v{X}, v{X+4}
v_add_f32 v{X}, v{X}, v{X+4}
v_mov_b32 v{X+4}, v{X}
v_mov_b32 v{X+6}, {fb(1e-5):#x}
v_permlane32_swap_b32 v{X}, v{X+4}
v_add_f32 v{X}, v{X}, v{X+4}
v_mul_f32 v{X}, {fb(1/64):#x}, v{X}
v_mov_b32 v{X+4}, v{X}
{'' if k is not None else 's_lshl_b32 s%d, s%d, 3'%(sA,sK)}
{'' if k is not None else 'v_add_u32 v%d, s%d, v%d'%(X+7,sA,STA)}
v_permlane16_swap_b32 v{X}, v{X+4}
v_fma_f32 v{X+4}, -v{X}, v{X}, v{X+4}
v_max_f32 v{X+4}, 0, v{X+4}
v_fmac_f32 v{X+6}, v{X+5}, v{X+4}      ; var+eps
v_rsq_f32 v{X+5}, v{X+6}
v_mul_f32 v{X+3}, v{X}, v{S1}          ; mu
v_mul_f32 v{X+2}, v{X+6}, v{X+5}       ; sigma
v_mul_f32 v{X+4}, v{X+5}, v{S1}
v_mul_f32 v{X+5}, v{X+5}, v{X+3}
ds_write_b64 v{X+7 if k is None else STA}, v[{X+2}:{X+3}] offset:{L_ST+(0 if k is None else 8*k)}''')
        for t in range(4):
            for r in range(4): a(f'v_fma_f32 v{ACC+4*t+r}, v{X+4}, v{ACC+4*t+r}, -v{X+5}')
            a(f'''v_cvt_pk_bf16_f32 v{AOP+2*t}, v{ACC+4*t}, v{ACC+4*t+1}
v_cvt_pk_bf16_f32 v{AOP+2*t+1}, v{ACC+4*t+2}, v{ACC+4*t+3}
ds_write_b64 v{SWA}, v[{AOP+2*t}:{AOP+2*t+1}] offset:{LT+32*t}''')
        if k is not None:
            for p in range(NP):
                a([f's_mov_b64 exec, s[{sM2}:{sM2+1}]']+[f'ds_read_b128 v[{T(p)+4*s}:{T(p)+4*s+3}], v{TRD} offset:{LT+288*p+64*s}' for s in range(2)]+['s_mov_b64 exec, -1'])
            return
        a(f's_lshl_b32 s{sTM}, 0x01010101, s{sK}')
    def scatter():
        l=L('sc')
        a(f'''s_cmp_eq_u32 s{sTM}, 0
s_cbranch_scc1 {l}
s_mov_b32 exec_lo, s{sTM}
s_mov_b32 exec_hi, s{sTM}''')
        for p in range(7):
            if p==6: a(f's_cmp_ge_u32 s{sW}, 2\ns_cbranch_scc1 {l}b')
            for s in range(2): a(f'ds_read_b128 v[{T(p)+4*s}:{T(p)+4*s+3}], v{TRD} offset:{LT+288*p+64*s}')
        a(f'''{l}b:
s_mov_b64 exec, -1
s_mov_b32 s{sTM}, 0
{l}:''')
    a(f'''s_cmp_lt_u32 s{sW}, 13
s_cbranch_scc1 L_p1
s_cmp_eq_u32 s{sW}, 13
s_cbranch_scc1 L_p1_b2
s_cmp_eq_u32 s{sW}, 15
s_cbranch_scc1 L_w15
s_lshr_b32 s{sPA}, s2, 6
s_lshl_b32 s{sPA}, s{sPA}, 14
s_and_b32 s{sB}, s2, 63
s_lshl_b32 s{sB}, s{sB}, 7
s_add_u32 s{sPA}, s{sPA}, s{sB}
s_and_b32 s{sB}, s2, 8
s_lshl_b32 s{sB}, s{sB}, 10
s_add_u32 s{sPA}, s{sPA}, s{sB}
s_xor_b32 s{sB}, s{sPA}, 0x2000
s_mov_b32 s{sC}, 1
s_mov_b32 s{sD}, 1
s_atomic_add s{sC}, s[90:91], s{sPA} glc
s_atomic_add s{sD}, s[90:91], s{sB} glc
L_w15:''')
    consts()
    a(f'''s_barrier
s_barrier
s_cmp_eq_u32 s{sW}, 14
s_cbranch_scc1 L_w15q
v_mov_b32 v16, 0
L_w15p:
buffer_load_dword v17, v16, s[{sDB}:{sDB+3}], 0 offen sc1
s_waitcnt vmcnt(0)
v_readfirstlane_b32 s{sA}, v17
s_cmp_lg_u32 s{sA}, 0
s_cbranch_scc1 L_w15q''')
    spin('L_w15p')
    a('L_w15q:\ns_setprio 3')
    g0(0)
    a(f'''s_barrier
s_cmp_eq_u32 s{sW}, 14
s_cbranch_scc1 L_w14''')
    st(3)
    signal()
    sx(2)
    a(f'''L_w14:''')
    tok0()
    stats()
    a(f'''s_cmp_eq_u32 s{sW}, 14
s_cbranch_scc1 L_w14b''')
    poll()
    a(f'''s_branch L_w15s
L_w14b:
s_waitcnt lgkmcnt(0)
s_mov_b32 s{sC}, 0
s_mov_b32 s{sPM}, 0
s_mov_b32 s{sPM2}, 0
L_pr:
s_mov_b32 s{sB}, 1
s_memtime s[{sP0}:{sP0+1}]
s_waitcnt lgkmcnt(0)
s_atomic_add s{sB}, s[90:91], s{sPA} glc
s_waitcnt lgkmcnt(0)
s_memtime s[{sP1}:{sP1+1}]
s_waitcnt lgkmcnt(0)
s_sub_u32 s{sB}, s{sP0}, s{sP1}
{('s_sub_u32 s80, 0, s%d'%sB+chr(10)+'s_lshl_b32 s%d, s%d, 3'%(sD,sC)+chr(10)+'s_add_u32 m0, s%d, 15'%sD+chr(10)+'s_nop 0'+chr(10)+'v_writelane_b32 v%d, s80, m0'%TS) if stamp else ''}
s_max_u32 s{sB}, s{sPM}, s{sB}
s_mov_b32 s{sPM}, s{sPM2}
s_mov_b32 s{sPM2}, s{sB}
s_xor_b32 s{sPA}, s{sPA}, 0x2000
s_add_u32 s{sC}, s{sC}, 1
s_cmp_lt_u32 s{sC}, {reps}
s_cbranch_scc1 L_pr
s_lshr_b32 s{sA}, s{sPA}, 11
s_and_b32 s{sA}, s{sA}, 4
s_add_u32 s{sA}, s{sA}, s{sXC}
s_xor_b32 s{sB}, s{sA}, 4
{'s_atomic_umax s%d, s[92:93], s%d glc'%(sPM,sA) if reps>1 else ''}
s_atomic_umax s{sPM2}, s[92:93], s{sB} glc
L_w15s:
s_setprio 0''')
    g0s((0,1,2))
    a('s_branch L_b5')
    a(f'''L_p1:
s_mov_b32 s{sA}, 85599
s_mov_b32 s{sB}, {L_CNT1}
s_movk_i32 s{sC}, {-NPW}
s_movk_i32 s{sD}, 0x2000
v_mov_b32 v2, 1''')
    for j in range(4): a(f'v_mov_b32 v{20+j}, 0x10000000')
    a('s_waitcnt vmcnt(5)')
    for j in range(4):
        a(f'''v_mul_u32_u24 v16, s{sA}, v{4+j}
v_lshrrev_b32 v16, 24, v16            ; owner
v_lshl_add_u32 v{12+j}, v16, 2, s{sB}
v_mad_i32_i24 v{4+j}, v16, s{sC}, v{4+j}   ; r''')
    for j in range(4):
        if j<2: a(f'v_cmpx_gt_u32 vcc, {CH-j}, v3')
        a(f'ds_add_rtn_u32 v{20+j}, v{12+j}, v2')
    a('s_mov_b64 exec, -1\ns_waitcnt vmcnt(4)')
    st(7)
    def entries(js):
        for j in js:
            a(f'''v_and_b32 v16, 0xffc0, v{8+j}
v_add_lshl_u32 v16, v16, v{8+j}, 7
v_and_or_b32 v16, v{8+j}, s{sD}, v16
v_lshrrev_b32 v17, 12, v{8+j}
v_lshl_or_b32 v16, v17, 24, v16
v_lshrrev_b32 v17, 4, v{4+j}
v_bfi_b32 v17, 1, v{4+j}, v17
v_lshrrev_b32 v18, 1, v{4+j}
v_lshl_or_b32 v17, v18, 28, v17
v_or_b32 v{8+j}, v16, v17''')
    entries(range(4))
    a(f'''L_p1_b2:
s_waitcnt lgkmcnt(0)
s_barrier''')
    st(2)
    scan(L_CNT1,X+8,False)
    a(f'''s_cmp_lg_u32 s{sW}, 13
s_cbranch_scc1 L_p1_sc''')
    for j in range(4): a(f'v_subrev_u32 v{X+12+j}, {L_W//4}, v{X+12+j}\nv_lshl_or_b32 v{X+8+j}, v{X+8+j}, 16, v{X+12+j}')
    a(f'''s_lshl_b32 s{sA}, s2, 10
s_add_u32 s{sA}, s{sA}, {OFFS}
v_lshlrev_b32 v16, 4, v{LANE}
buffer_store_dwordx4 v[{X+8}:{X+11}], v16, s[{sWS}:{sWS+3}], s{sA} offen sc1
s_waitcnt lgkmcnt(0)
s_barrier
s_branch L_p1_g
L_p1_sc:''')
    for j in range(4): a(f'ds_read_b32 v{16+j}, v{12+j} offset:1024')
    a(f'''v_lshlrev_b32 v2, 4, v0
v_add_u32 v3, {L_W}, v2
s_mul_i32 s{sA}, s2, {CHSTR}
v_cmp_gt_u32 vcc, {CHSTR}, v2
v_mov_b32 v1, {OOB}
v_cndmask_b32 v2, v1, v2, vcc''')
    for j in range(4):
        a(f'''s_waitcnt lgkmcnt(3)
v_add_lshl_u32 v{16+j}, v{16+j}, v{20+j}, 2
ds_write_b32 v{16+j}, v{8+j}''')
    a(f'''s_waitcnt lgkmcnt(0)
s_barrier''')
    sx(1)
    a(f'''ds_read_b128 v[4:7], v3
s_waitcnt lgkmcnt(0)
buffer_store_dwordx4 v[4:7], v2, s[{sWS}:{sWS+3}], s{sA} offen sc1
L_p1_g:''')
    g0(1)
    n=g0s((0,))
    a(f'''s_waitcnt vmcnt({n})
s_barrier''')
    st(3)
    a('L_b4:')
    g0s((1,))
    consts()
    tok0()
    g0s((2,))
    stats()
    sx(3)
    a('L_b5:')
    a(f'''s_lshl_b32 s{sBK}, s{sJ}, 2
s_add_u32 s{sBK}, s{sBK}, {OFFS}
v_lshrrev_b32 v{PC+1}, 2, v{TID}               ; segment
v_lshlrev_b32 v{PC+2}, 10, v{PC+1}
s_barrier
buffer_load_dword v{PC}, v{PC+2}, s[{sWS}:{sWS+3}], s{sBK} offen sc1''')
    n3=g0s((3,))
    st(4)
    a(f'''s_mov_b32 s{sEV}, 1
v_mul_u32_u24 v{PC+1}, {CHSTR}, v{PC+1}
v_and_b32 v{PC+2}, 3, v{TID}
v_lshlrev_b32 v{PC+2}, 2, v{PC+2}                ; 4*sub
v_mov_b32 v{PC+4}, {OOB}''')
    for j in range(8): a(f'v_mov_b32 v{PK+j}, 0x10000000')
    a(f's_waitcnt vmcnt({n3})')
    sx(4)
    a(f'''v_and_b32 v{PC+3}, 0xffff, v{PC}
v_lshrrev_b32 v{PC}, 16, v{PC}               ; count
v_add_u32 v{PC+3}, v{PC+3}, v{PC+2}
v_lshl_add_u32 v{PC+3}, v{PC+3}, 2, v{PC+1}
v_sub_u32 v{PC}, v{PC}, v{PC+2}
buffer_load_dwordx4 v[{PE}:{PE+3}], v{PC+3}, s[{sWS}:{sWS+3}], 0 offen sc1
v_cmp_lt_i32 vcc, 16, v{PC}
v_cndmask_b32 v{PC+4}, v{PC+4}, v{PC+3}, vcc
buffer_load_dwordx4 v[{PE+4}:{PE+7}], v{PC+4}, s[{sWS}:{sWS+3}], 0 offen offset:64 sc1''')
    if ev1==0:
        a(f'''s_waitcnt vmcnt(2)
s_barrier
s_cmp_lg_u32 s{sW}, 15
s_cbranch_scc1 L_p2a''')
        signal(24,25)
        a('s_waitcnt vmcnt(1)\nL_p2a:')
    a(f'''v_mul_f32 v{S1}, 0.5, v{DIS}
v_cmp_lt_i32 vcc, 32, v{PC}
v_mov_b32 v{PC+1}, 1
v_mov_b32 v{PC+2}, {L_MISC}
s_cbranch_vccz L_p2b
ds_write_b32 v{PC+2}, v{PC+1}
L_p2b:
s_mov_b32 s{sA}, {L_CNT2}''')
    for h in range(2):
        a(f's_waitcnt vmcnt({1-h})')
        if h==0: sx(5)
        for j in range(4*h,4*h+4):
            a(f'''v_lshrrev_b32 v24, 24, v{PE+j}
v_lshl_add_u32 v{PB+j}, v24, 2, s{sA}''')
        for j in range(4*h,4*h+4):
            a(f'''v_cmpx_lt_i32 vcc, {j%4+16*h}, v{PC}
ds_add_rtn_u32 v{PK+j}, v{PB+j}, v{PC+1}''')
        a('s_mov_b64 exec, -1')
    a(f'''v_mov_b32 v24, {SYNC}
buffer_load_dwordx2 v[{PC+4}:{PC+5}], v24, s[{sWS}:{sWS+3}], s{sXC} offen sc1
s_mov_b32 s{sM}, 0x11111111
s_mov_b32 s{sM+1}, 0x11111111
s_mov_b32 s{sM2}, 0x33333333
s_mov_b32 s{sM2+1}, 0x33333333
v_lshrrev_b32 v25, 2, v{LANE}
v_mul_u32_u24 v24, {WSTR//4}, v25
s_waitcnt lgkmcnt(0)
s_barrier''')
    st(5)
    if ev1==1:
        a(f'''s_cmp_lg_u32 s{sW}, 14
s_cbranch_scc1 L_p2a''')
        signal(22,23)
        a('L_p2a:')
    a(f'ds_read_b32 v{PC+1}, v{PC+2}')
    scan(L_CNT2,X+8,True)
    for j in range(8): a(f'ds_read_b32 v{PQ+j}, v{PB+j} offset:1024')
    a(f'''s_lshl_b32 s{sA}, s{sW}, 2
s_add_u32 s{sA}, s{sA}, 3
v_readlane_b32 s{sU}, v{X+16}, s{sA}
v_cmp_lt_u32 vcc, {CAP}, v{X+16}
v_readfirstlane_b32 s{sSLOW}, v{PC+1}
s_or_b32 s{sA}, vcc_lo, vcc_hi
s_or_b32 s{sSLOW}, s{sSLOW}, s{sA}
{'s_or_b32 s%d, s%d, 1'%(sSLOW,sSLOW) if force_slow else ''}
s_cbranch_scc1 L_p2d''')
    sx(6)
    for j in range(8):
        a(f'''s_waitcnt lgkmcnt(7)
v_add_lshl_u32 v{PQ+j}, v{PQ+j}, v{PK+j}, 2
ds_write_b32 v{PQ+j}, v{PE+j} offset:{L_AL}''')
    a(f'''L_p2d:
s_add_u32 s{sU}, s{sU}, 15
s_lshr_b32 s{sU}, s{sU}, 4
s_mul_i32 s{sTN}, s{sU}, 0x04030201
s_add_u32 s{sTN}, s{sTN}, 0x00020202
s_lshr_b32 s{sTN}, s{sTN}, 2
s_and_b32 s{sTN}, s{sTN}, 0x3f3f3f3f
s_cmp_eq_u32 s{sSLOW}, 0
s_cselect_b32 s{sNB}, 3, 0
s_cselect_b32 s{sU}, s{sU}, 4
s_waitcnt vmcnt(0)
v_cmp_gt_u32 s[{sM}:{sM+1}], v{PC+4}, v{PC+5}
v_mov_b32 v24, 0x2000
v_cndmask_b32 v24, 0, v24, s[{sM}:{sM+1}]
v_or_b32 v{LO}, v{LO}, v24
v_or_b32 v{LO+1}, v{LO+1}, v24
v_xor_b32 v{SA}, v{SA}, v24
v_xor_b32 v{SA+1}, v{SA+1}, v24
v_readfirstlane_b32 s{sPOL}, v24
s_cmp_lg_u32 s{sW}, 15
s_cbranch_scc1 L_p2e''')
    assert not ((MISC+SYNC)>>21)&1
    poll()
    a(f'''L_p2e:
s_waitcnt lgkmcnt(0)
s_barrier''')
    st(6)
    a(f'''s_cmp_lg_u32 s2, 255
s_cbranch_scc1 L_hop0
v_bfe_u32 v0, v{LANE}, 2, 2
v_and_b32 v1, 3, v{LANE}
v_lshl_add_u32 v0, v0, 3, v1           ; 8*(i>>2)+(i&3)
v_lshrrev_b32 v1, 4, v{LANE}           ; q
s_and_b32 s{sA}, s{sW}, 1
s_lshl_b32 s{sA}, s{sA}, 12            ; s*32 rows*128B
s_and_b32 s{sB}, s{sW}, 4
s_lshl_b32 s{sB}, s{sB}, 3
s_and_b32 s{sC}, s{sW}, 2
s_lshl_b32 s{sC}, s{sC}, 1
s_add_u32 s{sB}, s{sB}, s{sC}
v_lshlrev_b32 v2, 7, v0
v_lshl_add_u32 v2, v1, 4, v2           ; row*128 + q*16
s_cmp_ge_u32 s{sW}, 8
s_cbranch_scc1 L_jw''')
    srd(sT1,12,8192); srd(sT2,14,8192)
    a(f'''s_lshl_b32 s{sB}, s{sB}, 7
buffer_load_dwordx4 v[24:27], v2, s[{sT2}:{sT2+3}], s{sB} offen
buffer_load_dwordx4 v[28:31], v2, s[{sT2}:{sT2+3}], s{sB} offen offset:64
s_mov_b32 s{sC}, {fb(0.125*LOG2E):#x}
s_branch L_jm
L_jw:''')
    srd(sT1,16,8192); srd(sT2,18,8192)
    a(f'''s_lshl_b32 s{sB}, s{sB}, 1
v_lshlrev_b32 v3, 1, v0
v_lshl_add_u32 v3, v1, 10, v3          ; (8q)*128 + col*2
v_add_u32 v4, 4096, v3''')
    for s in range(2):
        for j in range(8):
            a(f'buffer_load_ushort v{X+8*s+j}, v{3+s}, s[{sT2}:{sT2+3}], s{sB} offen offset:{128*j}')
    a('s_waitcnt vmcnt(0)')
    for i in range(8): a(f'v_lshl_or_b32 v{24+i}, v{X+2*i+1}, 16, v{X+2*i}')
    a(f'''s_mov_b32 s{sC}, 1.0
L_jm:
buffer_load_dwordx4 v[8:11], v2, s[{sT1}:{sT1+3}], s{sA} offen
buffer_load_dwordx4 v[12:15], v2, s[{sT1}:{sT1+3}], s{sA} offen offset:64
buffer_load_dwordx4 v[16:19], v2, s[{sT1}:{sT1+3}], s{sA} offen offset:512
buffer_load_dwordx4 v[20:23], v2, s[{sT1}:{sT1+3}], s{sA} offen offset:576
s_lshl_b32 s{sD}, s{sW}, 10
s_add_u32 s{sD}, s{sD}, {WGT}
v_lshlrev_b32 v5, 4, v{LANE}
s_waitcnt vmcnt(0)
v_mfma_f32_16x16x32_bf16 v[{X}:{X+3}], v[8:11], v[24:27], 0
v_mfma_f32_16x16x32_bf16 v[{X+4}:{X+7}], v[16:19], v[24:27], 0
v_mfma_f32_16x16x32_bf16 v[{X}:{X+3}], v[12:15], v[28:31], v[{X}:{X+3}]
v_mfma_f32_16x16x32_bf16 v[{X+4}:{X+7}], v[20:23], v[28:31], v[{X+4}:{X+7}]''')
    for i in range(8): a(f'v_mul_f32 v{X+i}, s{sC}, v{X+i}')
    for i in range(4): a(f'v_cvt_pk_bf16_f32 v{12+i}, v{X+2*i}, v{X+2*i+1}')
    a(f'''buffer_store_dwordx4 v[12:15], v5, s[{sWS}:{sWS+3}], s{sD} offen sc1
s_cmp_ge_u32 s{sW}, 2
s_cbranch_scc1 L_jend''')
    srd(sT1,20,128)
    a(f'''v_lshlrev_b32 v2, 4, v1
s_lshl_b32 s{sA}, s{sW}, 6
buffer_load_dwordx4 v[8:11], v2, s[{sT1}:{sT1+3}], s{sA} offen
v_lshlrev_b32 v3, 1, v{LANE}
buffer_load_ushort v4, v3, s[{sT1}:{sT1+3}], 0 offen
s_mov_b32 s{sM}, 0x11111111
s_mov_b32 s{sM+1}, 0x11111111
s_mov_b32 s{sM2}, 0x22222222
s_mov_b32 s{sM2+1}, 0x22222222
v_mov_b32 v6, 0x3c803c80
v_cndmask_b32 v6, 0, v6, s[{sM}:{sM+1}]
s_add_u32 s{sD}, s{sD}, 16384
s_waitcnt vmcnt(0)''')
    for i in range(4): a(f'v_cndmask_b32 v{8+i}, v6, v{8+i}, s[{sM2}:{sM2+1}]')
    a(f'''buffer_store_dwordx4 v[8:11], v5, s[{sWS}:{sWS+3}], s{sD} offen sc1
v_lshlrev_b32 v4, 16, v4''')
    for m in ('quad_perm:[1,0,3,2]','quad_perm:[2,3,0,1]','row_half_mirror','row_mirror'):
        a(f'v_add_f32_dpp v4, v4, v4 {m} row_mask:0xf bank_mask:0xf')
    allq(4,6)
    a(f'''s_mov_b32 s{sA}, {WGT+18432}
v_lshlrev_b32 v3, 2, v{LANE}
buffer_store_dword v4, v3, s[{sWS}:{sWS+3}], s{sA} offen sc1
L_jend:
s_waitcnt vmcnt(0)''')
    def prep():
        a(f'''v_lshrrev_b32 v{AP}, 3, v{LANE}
v_lshl_add_u32 v{AP}, v{AP}, 3, s{sRB}
v_lshrrev_b32 v{CP}, 4, v{LANE}
v_lshl_add_u32 v{CP}, v{CP}, 2, s{sRB}''')
        for b in range(R): a(f'ds_read_b64 v[{X+2*b}:{X+2*b+1}], v{AP} offset:{L_AL+64*b}')
        a(f'''ds_read_b64 v[{EN}:{EN+1}], v{AP} offset:{L_AL+64*R}
s_mov_b32 s{sREM}, s{sU}
s_mov_b32 s{sBD}, s{sNB}
s_mov_b32 s{sI}, 0
s_waitcnt lgkmcnt(0)''')
        for b in range(2*R): a(f'v_bitop3_b32 v{X+b}, v{X+b}, s{sK3}, v{LO+(b&1)} bitop3:0x6a')
    def hopinit():
        a(f'''s_add_u32 s{sK}, s{sK}, 1
s_add_u32 s{sTOUT}, s{sTOUT}, {TSTR}
s_addc_u32 s{sTOUT+1}, s{sTOUT+1}, 0
s_mov_b32 s{sBA}, s{sTN}
s_and_b32 s{sTH}, s{sBA}, 0xff
s_mov_b32 s{sSEG}, 0
s_mov_b32 s{sOFF}, 0
s_mov_b32 s{sCNT}, 0''')
        for i in range(16): a(f'v_mov_b32 v{ACC+i}, 0')
        prep()
    a('L_hop0:')
    hopinit()
    a(f'''L_hop:
s_add_u32 s{sSI}, s{sSI}, 8
s_setprio 3''')
    st(0)
    a(f'''s_cmp_eq_u32 s{sSLOW}, 0
s_cbranch_scc1 L_gather
L_slow:
s_cmp_lt_u32 s{sOFF}, s{sCNT}
s_cbranch_scc1 L_slow2
s_cmp_ge_u32 s{sSEG}, 256
s_cbranch_scc1 L_gdone
s_lshl_b32 s{sA}, s{sSEG}, 10
v_mov_b32 v16, s{sA}
buffer_load_dword v17, v16, s[{sWS}:{sWS+3}], s{sBK} offen sc1
s_mul_i32 s{sSTART}, s{sSEG}, {CHSTR}
s_add_u32 s{sSEG}, s{sSEG}, 1
s_mov_b32 s{sOFF}, 0
s_waitcnt vmcnt(0)
v_readfirstlane_b32 s{sA}, v17
s_lshr_b32 s{sCNT}, s{sA}, 16
s_and_b32 s{sA}, s{sA}, 0xffff
s_lshl_b32 s{sA}, s{sA}, 2
s_add_u32 s{sSTART}, s{sSTART}, s{sA}
s_branch L_slow
L_slow2:
v_add_u32 v16, s{sOFF}, v{LANE}
v_lshl_add_u32 v17, v16, 2, s{sSTART}
buffer_load_dword v18, v17, s[{sWS}:{sWS+3}], 0 offen sc1
s_add_u32 s{sOFF}, s{sOFF}, 64
v_cmp_gt_u32 s[{sM}:{sM+1}], s{sCNT}, v16
s_waitcnt vmcnt(0)
v_lshrrev_b32 v19, 28, v18
v_cmp_eq_u32 vcc, s{sW}, v19
s_and_b64 s[{sM}:{sM+1}], s[{sM}:{sM+1}], vcc''')
    a('v_mov_b32 v20, v18\nv_and_b32 v21, 15, v18')
    a(f'''v_mov_b32 v22, {PADE:#x}
v_cndmask_b32 v20, v22, v20, s[{sM}:{sM+1}]
v_lshl_add_u32 v22, v{LANE}, 2, s{sRB}
v_add_u32 v23, s{sRB}, v{LANE}
ds_write_b32 v22, v20 offset:{L_AL}
ds_write_b8 v23, v21 offset:{L_CL}''')
    prep()
    def pacer(tag):
        a(f'''L_pa{tag}:
s_cmp_lt_u32 s{sI}, s{sTH}
s_cbranch_scc1 L_pb{tag}
s_cmp_eq_u32 s{sBD}, 0
s_cbranch_scc1 L_pb{tag}
s_sub_u32 s{sBD}, s{sBD}, 1
s_lshr_b32 s{sBA}, s{sBA}, 8
s_and_b32 s{sTH}, s{sBA}, 0xff
s_barrier
s_branch L_pa{tag}
L_pb{tag}:''')
    def issue(b,e0,e1):
        a(f'''s_add_u32 m0, s{sRB}, {2048*b}
s_add_u32 s{sI}, s{sI}, 1
buffer_load_dwordx4 v{e0}, s[{sTIN}:{sTIN+3}], 0 offen sc1 lds
s_add_u32 m0, s{sRB}, {2048*b+1024}
buffer_load_dwordx4 v{e1}, s[{sTIN}:{sTIN+3}], 0 offen sc1 lds''')
    a('L_gather:')
    for b in range(R):
        pacer(f'p{b}')
        a(f'''s_cmp_le_u32 s{sU}, {b}
s_cbranch_scc1 L_gl0''')
        issue(b,X+2*b,X+2*b+1)
    a(f'''L_gl0:
s_cmp_lg_u32 s{sTM}, 0x01010101
s_cbranch_scc1 L_gl1
v_lshl_add_u32 v{TMP}, v{LANE}, 4, s{sRB}
ds_read_b128 v[{AOP}:{AOP+3}], v{TMP} offset:{L_AL}
ds_read_b128 v[{AOP+4}:{AOP+7}], v{TMP} offset:{L_AL+CAP*4-1024}
v_lshl_add_u32 v{TMP}, v{LANE}, 2, s{sRB}
s_mov_b32 s{sA}, 0x0c0c0400
s_mov_b32 s{sB}, 0x0f0f0f0f''')
    for h in range(2):
        a(f'''s_waitcnt lgkmcnt(1)
v_perm_b32 v{AOP+4*h}, v{AOP+4*h+1}, v{AOP+4*h}, s{sA}
v_perm_b32 v{AOP+4*h+2}, v{AOP+4*h+3}, v{AOP+4*h+2}, s{sA}
v_lshl_or_b32 v{AOP+4*h}, v{AOP+4*h+2}, 16, v{AOP+4*h}
v_and_b32 v{AOP+4*h}, s{sB}, v{AOP+4*h}
ds_write_b32 v{TMP}, v{AOP+4*h} offset:{L_CL+h*(CAP-256)}''')
    a('L_gl1:')
    scatter()
    a('L_gl:')
    for b in range(R):
        pacer(b)
        if prio:
            a(f'''s_sub_i32 s{sA}, s{sTH}, s{sI}
s_setprio 0
s_cmp_le_i32 s{sA}, {prio-1}
s_cbranch_scc1 L_pc{b}_
s_setprio 1
s_cmp_le_i32 s{sA}, {prio}
s_cbranch_scc1 L_pc{b}_
s_setprio 2
s_cmp_le_i32 s{sA}, {prio+1}
s_cbranch_scc1 L_pc{b}_
s_setprio 3
L_pc{b}_:''')
        a(f'''ds_read_b32 v{COLW}, v{CP} offset:{L_CL+16*b}
s_cmp_ge_u32 s{sREM}, {R}
s_cbranch_scc1 L_gw{b}
s_cmp_eq_u32 s{sREM}, 0
s_cbranch_scc1 L_gend
s_setprio 3''')
        for m in range(R-1,1,-1):
            a(f'''s_waitcnt vmcnt({2*(m-1)})
s_cmp_eq_u32 s{sREM}, {m}
s_cbranch_scc1 L_gw{b}''')
        a(f'''s_waitcnt vmcnt(0)
L_gw{b}:
s_waitcnt lgkmcnt(0)
v_xad_u32 v{TMP}, v{COLW}, v{NOTN}, s{sK1}
v_bitop3_b32 v{DA}, v{EN}, s{sK3}, v{LO} bitop3:0x6a
v_bitop3_b32 v{DA+1}, v{EN+1}, s{sK3}, v{LO+1} bitop3:0x6a
s_waitcnt vmcnt({2*(R-1)})''')
        for t in range(4): a(f'ds_read_b64_tr_b16 v[{AOP+2*t}:{AOP+2*t+1}], v{TRA+t} offset:{2048*b}')
        a(f'''ds_read_b64 v[{EN}:{EN+1}], v{AP} offset:{L_AL+64*(R+1+b)}
v_and_b32 v{B1}, s{sK2}, v{TMP}
v_lshlrev_b32 v{TMP}, 8, v{TMP}
v_and_b32 v{B0}, s{sK2}, v{TMP}
s_cmp_le_u32 s{sREM}, {R}
s_waitcnt lgkmcnt(1)
s_cbranch_scc1 L_gn{b}''')
        issue(b,DA,DA+1)
        a(f'L_gn{b}:')
        for t in range(4): a(f'v_mfma_f32_16x16x16_bf16 v[{ACC+4*t}:{ACC+4*t+3}], v[{AOP+2*t}:{AOP+2*t+1}], v[{B0}:{B1}], v[{ACC+4*t}:{ACC+4*t+3}]')
        a(f's_sub_u32 s{sREM}, s{sREM}, 1')
    a(f'''v_add_u32 v{AP}, {64*R}, v{AP}
v_add_u32 v{CP}, {16*R}, v{CP}
s_branch L_gl
L_gend:
s_waitcnt lgkmcnt(0)
s_cmp_lg_u32 s{sSLOW}, 0
s_cbranch_scc1 L_slow
L_gdone:''')
    scatter()
    st(1)
    a(f'''s_cmp_eq_u32 s{sK}, 7
s_cbranch_scc1 L_final''')
    a('s_setprio 3')
    gstore()
    a('s_setprio 0')
    st(2)
    a(f'''s_add_u32 s{sEV}, s{sEV}, 1
s_add_u32 s{sTIN}, s{sTIN}, {TSTR}
s_addc_u32 s{sTIN+1}, s{sTIN+1}, 0
s_cmp_lg_u32 s{sW}, 15
s_cbranch_scc1 L_hA''')
    stats()
    a('''s_waitcnt vmcnt(0)
s_barrier''')
    signal2() if rep else signal()
    st(4)
    a(f'''s_branch L_job
L_hA:''')
    if sfirst: stats()
    a('s_waitcnt vmcnt(0)')
    st(3)
    a('s_barrier')
    if not sfirst: stats()
    st(4)
    a(f'''L_job:
s_cmp_lg_u32 s{sK}, 2
s_cbranch_scc1 L_jpf0
s_lshl_b32 s{sA}, s{sW}, 10
s_add_u32 m0, s{sA}, {L_W}
s_add_u32 s{sA}, s{sA}, {WGT}
v_lshlrev_b32 v3, 4, v{LANE}
buffer_load_dwordx4 v3, s[{sWS}:{sWS+3}], s{sA} offen sc1 lds
s_cmp_ge_u32 s{sW}, 3
s_cbranch_scc1 L_hB
s_add_u32 m0, m0, 16384
s_add_u32 s{sA}, s{sA}, 16384
buffer_load_dwordx4 v3, s[{sWS}:{sWS+3}], s{sA} offen sc1 lds
s_branch L_hB
L_jpf0:
s_cmp_lg_u32 s{sW}, 14
s_cbranch_scc1 L_hB
L_jpf:
s_cmp_lg_u32 s{sK}, {6 if not nopf else 99}
s_cbranch_scc1 L_hB
s_getpc_b64 s[94:95]
L_pc2:
v_lshlrev_b32 v3, 7, v{LANE}
v_min_u32 v4, L_end-L_pc2, v3
global_load_dword v4, v4, s[94:95]
v_add_u32 v3, 8192, v3
v_min_u32 v3, L_end-L_pc2, v3
global_load_dword v5, v3, s[94:95]
s_waitcnt vmcnt(0)''')
    a('L_hB:')
    st(5)
    hopinit()
    a(f'''s_cmp_lg_u32 s{sW}, 15
s_cbranch_scc1 L_hC''')
    poll2() if rep else poll()
    a('''L_hC:
s_barrier
s_branch L_hop''')
    a('L_final:\ns_setprio 0')
    if stamp:
        a(f'''s_lshl_b32 s{sA}, s2, 4
s_add_u32 s{sA}, s{sA}, s{sW}
s_lshl_b32 s{sA}, s{sA}, 8
s_add_u32 s88, s{sA}, {STAMP}
v_lshlrev_b32 v16, 2, v{LANE}
buffer_store_dword v{TS}, v16, s[{sWS}:{sWS+3}], s88 offen''')
    def fst(i):
        if stamp: a(f'''s_memrealtime s[80:81]
s_waitcnt lgkmcnt(0)
s_mov_b32 s{82+i}, s80''')
    if stamp:
        fst(0)
        a('s_memtime s[86:87]\ns_waitcnt lgkmcnt(0)')
    srd(sT1,22,N*128)
    a(f'''s_mov_b32 s{sM2}, 0x80808080
s_mov_b32 s{sM2+1}, 0x80808080
s_mov_b32 vcc_lo, 0x00ff00ff
s_mov_b32 vcc_hi, 0xff00ff00
s_mov_b32 s{sM}, 0x00f0000f
s_mov_b32 s{sM+1}, 0xf0000f00
s_lshl_b32 s{sB}, s{sW}, 1
s_mul_i32 s{sD}, s{sJ}, {NPW}
s_add_u32 s{sD}, s{sD}, s{sB}
s_lshl_b32 s{sD}, s{sD}, 7''')
    for p in range(7):
        a(f'''s_mov_b32 s{4+2*p}, {0x00010001<<(2*p):#x}
s_mov_b32 s{5+2*p}, {0x00020002<<(2*p):#x}''')
    a(f'''s_mov_b32 s18, 0x00300003
s_mov_b32 s19, 0x30000300
s_mov_b32 s20, 0x00c0000c
s_mov_b32 s21, 0xc0000c00
s_cmp_ge_u32 s{sW}, 2
s_cbranch_scc1 L_fin6''')
    def final(NP):
        it=[]
        def e(x):
            if isinstance(x,list): it.append(x); return
            for ln in x.split('\n'):
                ln=ln.split(';')[0].strip()
                if ln: it.append(ln)
        WA=69; SG=TG; SI=TG+1; PW=62
        LX=4608; LWB=LX+3*768+520+8
        assert LWB+256<=L_ST
        tup=lambda r,n=4: f'v[{r}:{r+n-1}]'
        e(f'''v_lshlrev_b32 v{WA}, 4, v{LANE}
v_add_u32 v{WA}, {L_W}, v{WA}
v_lshl_add_u32 v{PW}, v{LANE}, 3, s{sRB}
v_lshrrev_b32 v60, 2, v{LANE}
v_and_b32 v61, 7, v{LANE}
v_and_or_b32 v60, v60, 8, v61
v_add_u32 v61, 16, v60
v_cndmask_b32 v60, v61, v60, vcc
v_lshl_add_u32 v{SG}, v60, 3, s{sRB}''')
        for f in (6,7): e(f'ds_read_b128 {tup(4*f)}, v{WA} offset:{1024*f}')
        stats(e,NP,7)
        for f in range(6): e(f'ds_read_b128 {tup(4*f)}, v{WA} offset:{1024*f}')
        UA=[32,36,40]; UB=44; SAa=52; SBb=56; Y=60
        cnt=[0]
        def scores(p,S):
            for t in (3,0,1,2):
                u=UA[cnt[0]%3]; cnt[0]+=1
                e(f'''v_mfma_f32_16x16x32_bf16 {tup(u)}, {tup(8*t)}, {tup(T(p))}, 0
v_mfma_f32_16x16x32_bf16 {tup(u)}, {tup(8*t+4)}, {tup(T(p)+4)}, {tup(u)}
v_cvt_pk_bf16_f32 v{UB+2*t}, v{u}, v{u+1}
v_cvt_pk_bf16_f32 v{UB+2*t+1}, v{u+2}, v{u+3}''')
            e(f'''v_mfma_f32_16x16x32_bf16 {tup(S)}, {tup(T(p))}, {tup(UB)}, 0
v_mfma_f32_16x16x32_bf16 {tup(S)}, {tup(T(p)+4)}, {tup(UB+4)}, {tup(S)}''')
        for g in range((NP+1)//2):
            two=2*g+1<NP
            if two: scores(2*g+1,SBb)
            scores(2*g,SAa)
            e(f'ds_read_b32 v{SI}, v{SG} offset:{L_ST+256*g}')
            S=SAa
            if two:
                for r in range(4): e(f'v_cndmask_b32_dpp v{S+r}, v{SBb+r}, v{S+r}, vcc row_ror:8 row_mask:0xf bank_mask:0xf')
            e(f'''v_max3_f32 v{Y}, v{S}, v{S+1}, v{S+2}
v_max_f32 v{Y}, v{Y}, v{S+3}
v_mov_b32 v{Y+1}, v{Y}
v_permlane16_swap_b32 v{Y+1}, v{Y}
v_max_f32 v{Y}, v{Y}, v{Y+1}''')
            for r in range(4): e(f'v_sub_f32 v{S+r}, v{S+r}, v{Y}')
            for r in range(4): e(f'v_exp_f32 v{S+r}, v{S+r}')
            e(f'''v_add_f32 v{Y}, v{S}, v{S+1}
v_add_f32 v{Y+1}, v{S+2}, v{S+3}
v_add_f32 v{Y}, v{Y}, v{Y+1}
v_mov_b32 v{Y+1}, v{Y}
v_permlane16_swap_b32 v{Y+1}, v{Y}
v_add_f32 v{Y}, v{Y}, v{Y+1}
v_mul_f32 v{Y}, v{Y}, v{SI}
v_rcp_f32 v{Y}, v{Y}''')
            for r in range(4): e(f'v_mul_f32 v{S+r}, v{S+r}, v{Y}')
            e(f'''v_cvt_pk_bf16_f32 v{Y}, v{S}, v{S+1}
v_cvt_pk_bf16_f32 v{Y+1}, v{S+2}, v{S+3}''')
            if g==(NP+1)//2-1:
                for t in (3,0,1,2):
                    for s in range(2): e(f'ds_read_b128 {tup(8*t+4*s)}, v{WA} offset:{8192+1024*(2*t+s)}')
            e(f'ds_write_b64 v{PW}, v[{Y}:{Y+1}] offset:{LX+768*g}')
        POOL=[32,36,40,44,48]; ZT=52; OW=60; OT=61; GW=63; PRA=64; PRB=68
        e(f'''v_mov_b32 v{GW}, {OOB}
v_cndmask_b32 v{PRA}, v{GW}, v{PW}, vcc
v_and_b32 v{ZT}, 15, v{LANE}
v_lshl_add_u32 v{ZT+1}, v{ZT}, 3, s{sRB}
v_add_u32 v{ZT+1}, {LX}, v{ZT+1}
v_cndmask_b32 v{GW}, v{GW}, v{ZT+1}, s[{sM}:{sM+1}]
v_lshrrev_b32 v{ZT+1}, 4, v{LANE}
v_mul_u32_u24 v{OW}, 144, v{ZT}
v_lshl_add_u32 v{OW}, v{ZT+1}, 4, v{OW}
v_add_u32 v{OW}, s{sRB}, v{OW}
v_lshrrev_b32 v{ZT+4}, 2, v{LANE}
v_mul_u32_u24 v{ZT+4}, 112, v{ZT+4}
v_add_u32 v{OT}, v{ZT+4}, v{PW}
v_and_b32 v{ZT}, 1, v{LANE}
v_lshlrev_b32 v{ZT}, 4, v{ZT}
v_mov_b32 v{ZT+1}, 0x3f80
v_lshlrev_b32 v{ZT}, v{ZT}, v{ZT+1}
v_cndmask_b32 v{ZT+2}, 0, v{ZT}, s[18:19]
v_cndmask_b32 v{ZT+3}, 0, v{ZT}, s[20:21]
v_mov_b64 v[{ZT+6}:{ZT+7}], v[{ZT+2}:{ZT+3}]
v_xor_b32 v{PRB}, 64, v{PRA}''')
        def o2reg(p,t):
            return (TG+16*(p//2)+4*t+2*(p&1)) if p<6 else (TG+48+2*t)
        pc=[0]
        def pool():
            r=POOL[pc[0]%len(POOL)]; pc[0]+=1; return r
        e(f'ds_read_b64 v[{T(0)-2}:{T(0)-1}], v{PRA} offset:{LX}')
        for p in range(NP):
            tp=T(p); ob=tp-2
            z=[]
            for t in range(4):
                u=pool(); z.append(u)
                e(f'''v_mfma_f32_16x16x32_bf16 {tup(u)}, {tup(tp)}, {tup(8*t)}, 0
v_mfma_f32_16x16x32_bf16 {tup(u)}, {tup(tp+4)}, {tup(8*t+4)}, {tup(u)}''')
            for t in range(4):
                zt=ZT+4*(t&1); b=tp-2+2*t; u=z[t]
                if t: e(f'v_mov_b64 v[{b}:{b+1}], v[{b-2}:{b-1}]')
                e(f'''v_cvt_pk_bf16_f32 v{zt}, v{u}, v{u+1}
v_cvt_pk_bf16_f32 v{zt+1}, v{u+2}, v{u+3}
v_mfma_f32_16x16x32_bf16 {tup(u)}, {tup(zt)}, {tup(b)}, 0''')
            if p+1<NP: e(f'ds_read_b64 v[{tp+6}:{tp+7}], v{PRB if (p+1)&1 else PRA} offset:{LX+768*((p+1)//2)}')
            for t in range(4):
                e(f'''v_cvt_pk_bf16_f32 v{ob+2*t}, v{z[t]}, v{z[t]+1}
v_cvt_pk_bf16_f32 v{ob+2*t+1}, v{z[t]+2}, v{z[t]+3}''')
            img=2304*(p&1)
            a0=pool(); a1=pool(); g_=pool()
            e(f'''ds_read_b128 {tup(a0)}, v{WA} offset:16384
ds_read_b128 {tup(a1)}, v{WA} offset:17408
ds_write_b128 v{OW}, {tup(ob)} offset:{img}
ds_write_b128 v{OW}, {tup(ob+4)} offset:{img+64}
v_mfma_f32_16x16x32_bf16 {tup(g_)}, {tup(ob)}, {tup(ob)}, 0
v_mfma_f32_16x16x32_bf16 {tup(g_)}, {tup(ob+4)}, {tup(ob+4)}, {tup(g_)}
v_mfma_f32_16x16x32_bf16 {tup(a0)}, {tup(a0)}, {tup(ob)}, 0
v_mfma_f32_16x16x32_bf16 {tup(a0)}, {tup(a1)}, {tup(ob+4)}, {tup(a0)}''')
            if p&1 or p==NP-1:
                for pp in ((p-1,p) if p&1 else (p,)):
                    for t in range(4):
                        r=o2reg(pp,t)
                        e(f'ds_read_b64_tr_b16 v[{r}:{r+1}], v{OT} offset:{2304*(pp&1)+32*t}')
            e(f'''ds_write_b64 v{GW}, v[{g_}:{g_+1}] offset:{384*p}
ds_write_b64 v{GW}, v[{g_+2}:{g_+3}] offset:{384*p+128}
ds_write_b64 v{GW}, v[{a0}:{a0+1}] offset:{384*p+256}''')
        F=0; K=16; EPS=K+7; OAD=K+8
        e(f'''v_subrev_u32 v{K}, s{sRB}, v{PW}               ; lane*8
v_and_b32 v{K+1}, 0x180, v{K}                   ; q*128
v_lshl_add_u32 v{K+2}, v{K+1}, 1, v{PW}         ; q*384 + n*8
v_and_b32 v{K+3}, 16, v{K}
v_lshl_add_u32 v{K+3}, v{K+3}, 3, v{K+2}
v_bfe_u32 v{K+4}, v{K}, 3, 1
v_lshl_add_u32 v{K+3}, v{K+4}, 2, v{K+3}
v_lshrrev_b32 v{K+4}, 2, v{K}
v_add_u32 v{K+4}, s{sRB}, v{K+4}                ; w write
v_lshrrev_b32 v{K+5}, 4, v{K+1}
v_add_u32 v{K+5}, s{sRB}, v{K+5}                ; w read
v_mov_b32 v{K+6}, {L_SH+2048}
v_mov_b32 v{EPS}, {fb(1e-5):#x}
ds_read_b32 v{K+6}, v{K+6}
v_and_b32 v{OAD}, 0x78, v{K}
v_lshlrev_b32 v{OAD}, 1, v{OAD}
v_lshl_add_u32 v{OAD}, v{K+1}, 5, v{OAD}
v_add_u32 v{OAD}, s{sD}, v{OAD}
v_add_u32 v{OAD+1}, {128*128}, v{OAD}
v_mov_b32 v{OAD+2}, {OOB}
v_mov_b32_dpp v{OAD+1}, v{OAD+2} quad_perm:[0,1,2,3] row_mask:{0x8 if NP==7 else 0xc} bank_mask:0xf''')
        Rr=lambda h:(0,8)[h]
        red=lambda op,x,y: '\n'.join(f'{op}_dpp v{{{x}}}, v{{{y if i==0 else x}}}, v{{{y if i==0 else x}}} {m} row_mask:0xf bank_mask:0xf' for i,m in enumerate(('quad_perm:[1,0,3,2]','quad_perm:[2,3,0,1]','row_half_mirror')))
        for h in range(2):
            r=Rr(h)
            e(f'''ds_read_b32 v{r}, v{K+3} offset:{LX+1536*h}
ds_read_b64 v[{r+2}:{r+3}], v{K+2} offset:{LX+256+1536*h}
ds_read_b64 v[{r+4}:{r+5}], v{PW} offset:{L_ST+512*h}''')
        for h in range(2):
            r=Rr(h)
            e(f'''v_mul_f32 v{{q}}, {fb(1/64):#x}, v{{q}}
v_fma_f32 v{{q}}, -v{{s}}, v{{s}}, v{{q}}
v_max_f32 v{{q}}, 0, v{{q}}
v_mul_f32 v{{a}}, v{{g}}, v{{g}}
v_fma_f32 v{{q}}, v{{a}}, v{{q}}, v{EPS}
v_rsq_f32 v{{q}}, v{{q}}
v_fma_f32 v{{d}}, -v{{s}}, v{K+6}, v{{d}}
v_mul_f32 v{{a}}, {fb(LOG2E):#x}, v{{g}}
v_mul_f32 v{{d}}, v{{d}}, v{{a}}
v_mul_f32 v{{d}}, v{{d}}, v{{q}}
{red('v_max_f32','a','d')}
v_sub_f32 v{{d}}, v{{d}}, v{{a}}
v_exp_f32 v{{d}}, v{{d}}
v_mul_f32 v{{m}}, v{{m}}, v{{d}}
{red('v_add_f32','a','d')}
{red('v_add_f32','m','m')}
v_rcp_f32 v{{a}}, v{{a}}
v_mul_f32 v{{d}}, v{{d}}, v{{g}}
v_mul_f32 v{{d}}, v{{d}}, v{{a}}
v_mul_f32 v{{m}}, v{{m}}, v{{a}}
v_cvt_pk_bf16_f32 v{{d}}, v{{d}}, v{{d}}'''.format(q=r,a=r+1,s=r+2,d=r+3,g=r+4,m=r+5))
        for h in range(2):
            r=Rr(h)
            e(f'''ds_write_b16 v{K+4}, v{r+3} offset:{LWB+128*h}
ds_write_b32 v{PW}, v{r+5} offset:{L_ST+512*h}''')
        WT=32; CI=28
        e(f'ds_read_b32 v{CI}, v{STA} offset:{L_ST}')
        for p in range(NP): e(f'ds_read_b64 v[{WT+2*p}:{WT+2*p+1}], v{K+5} offset:{LWB+32*p}')
        e(f'''v_mov_b32 v{CI+1}, v{CI}
v_mov_b64 v[{CI+2}:{CI+3}], v[{CI}:{CI+1}]''')
        for g in range((NP+1)//2):
            two=2*g+1<NP
            for p in ((2*g,2*g+1) if two else (2*g,)):
                e(f'''v_cndmask_b32 v{WT+2*p}, 0, v{WT+2*p}, s[{4+2*p}:{5+2*p}]
v_cndmask_b32 v{WT+2*p+1}, 0, v{WT+2*p+1}, s[{4+2*p}:{5+2*p}]''')
            for t in range(4):
                c=tup(CI) if g==0 else tup(F+4*t)
                r=o2reg(2*g,t)
                if two: e(f'v_mfma_f32_16x16x32_bf16 {tup(F+4*t)}, {tup(r)}, {tup(WT+4*g)}, {c}')
                else: e(f'v_mfma_f32_16x16x16_bf16 {tup(F+4*t)}, {tup(r,2)}, {tup(WT+4*g,2)}, {c}')
        for t in range(4):
            e(f'''v_cvt_pk_bf16_f32 v{48+2*t}, v{F+4*t}, v{F+4*t+1}
v_cvt_pk_bf16_f32 v{49+2*t}, v{F+4*t+2}, v{F+4*t+3}
ds_write_b64 v{SWA}, v[{48+2*t}:{49+2*t}] offset:{32*t}''')
        e(f'''ds_read_b128 v[32:35], v{SRA}
ds_read_b128 v[36:39], v{SRA} offset:1152
buffer_store_dwordx4 v[32:35], v{OAD}, s[{sT1}:{sT1+3}], 0 offen {oaux}
buffer_store_dwordx4 v[36:39], v{OAD+1}, s[{sT1}:{sT1+3}], 0 offen {oaux}''')
        if fskip:
            import re
            k0=next(i for i,x in enumerate(it) if isinstance(x,str) and x.startswith('v_mfma'))
            k1=next(i for i,x in enumerate(it) if isinstance(x,str) and x.startswith('v_subrev_u32'))
            it=it[:k0]+[x for x in it[k0:k1] if not re.match(fskip,x)]+it[k1:]
        out=schedule(it,ldslat=ldslat,window=window,verbose=True)
        n=len(out); nxt=0
        for i,ln in enumerate(out):
            if nxt<len(fprio) and i>=n*nxt//len(fprio):
                a(f's_setprio {fprio[nxt]}'); nxt+=1
            a(ln)
    final(7)
    a('s_branch L_fend\nL_fin6:')
    final(6)
    a('L_fend:')
    if stamp:
        fst(2)
        a('s_memtime s[80:81]\ns_waitcnt lgkmcnt(0)\ns_sub_u32 s86, s80, s86')
        a('s_waitcnt vmcnt(0)')
        fst(3)
        a(f'''v_mov_b32 v0, s82
v_mov_b32 v1, s84
v_mov_b32 v2, s85
v_mov_b32 v3, s86
v_mov_b32 v4, {60*4}
s_mov_b64 exec, 1
buffer_store_dwordx4 v[0:3], v4, s[{sWS}:{sWS+3}], s88 offen''')
    if enc:
        a(f'''s_cmp_lg_u32 s2, {encwg}
s_cbranch_scc1 L_end
s_cmp_lg_u32 s{sW}, 15
s_cbranch_scc1 L_end
s_waitcnt vmcnt(0)
s_memrealtime s[80:81]
s_waitcnt lgkmcnt(0)
{'s_mov_b32 s84, s80' if enc[1] is None else ''}
s_sub_u32 s82, s84, s82
s_mul_i32 s82, s82, {enc[2]}
s_min_u32 s82, s82, 100000
L_encs:
s_memrealtime s[84:85]
s_waitcnt lgkmcnt(0)
s_sub_u32 s84, s84, s80
s_cmp_lt_u32 s84, s82
s_cbranch_scc1 L_encs''')
    a('L_end:\ns_endpgm')
    body=a.pad(verbose=True)
    ref=open('standalone__hybrid_graph_tf_nagphormer__graph.s.ref').read().split('\n')
    head=[l for l in ref if l.startswith(';') and '@launch' not in l]
    out='\n'.join(head)+f'''
; @launch grid=(256,1,1) block=(1024,1,1) lds={LDS_BYTES}
.amdgcn_target "amdgcn-amd-amdhsa--gfx950"
.text
.globl {KNAME}
.p2align 8
.type {KNAME},@function
{KNAME}:
'''+body+f'''.section .rodata,"a"
.p2align 6
.amdhsa_kernel {KNAME}
  .amdhsa_next_free_vgpr 128
  .amdhsa_next_free_sgpr 100
  .amdhsa_accum_offset 128
  .amdhsa_group_segment_fixed_size 0
  .amdhsa_kernarg_size 96
  .amdhsa_user_sgpr_count 2
  .amdhsa_user_sgpr_kernarg_segment_ptr 1
  .amdhsa_system_sgpr_workgroup_id_x 1
  .amdhsa_float_denorm_mode_32 3
.end_amdhsa_kernel
'''
    return out
if __name__=='__main__':
    kw=eval('dict('+(sys.argv[2] if len(sys.argv)>2 else '')+')')
    open(sys.argv[1] if len(sys.argv)>1 else 'standalone__hybrid_graph_tf_nagphormer__graph.s','w').write(gen(**kw))
```

```python
import sys, struct
sys.path.insert(0,'gen')
from asmlib import Asm
from sched import schedule
N=50000; E=800000; NPW=196; CH=3125
KNAME='standalone__hybrid_graph_tf_nagphormer__graph_kernel'
TSTR=16<<20
MISC=112<<20
CHSTR=12544
OFFS=4<<20
SYNC=5<<20
STAMP=6<<20
WGT=(5<<20)+(512<<10)
PROBE=14<<20
WSTR=8960
L_RING=0; L_AL=6144; CAP=352; L_CL=L_AL+CAP*4; L_ST=7936
L_W=16*WSTR
L_CNT1=L_W+13312
L_SH=L_W+16384
L_CNT2=L_SH; L_SA=L_SH; L_TB=L_SH+2048; L_MISC=7904
LDS_BYTES=L_SH+4096
assert LDS_BYTES==163840 and L_CL+CAP<=L_ST and L_ST+1024<=WSTR
fb=lambda x: struct.unpack('<I',struct.pack('<f',x))[0]
LOG2E=1.4426950408889634
OOB=0x80000000
TREC=13<<20
PADE=0x00ffff80

def gen(R=3, NBAR=6, stamp=False, force_slow=False, spinmax=1<<18, reps=1, sfirst=False, prio=0, skip='', dbg=False, enc=None, nopf=False, oaux='sc1', encwg=100, ldslat=96, window=10**9, fprio=(), fskip='', sord='r', rep=1, cloc=0, psleep=1, g0p=(2,2,4,4), ev1=1, nE=6, defer=True, nogate=False, ppi=2, fin=2, fr=(14,24,44), gi=1, nua=4, gsel=1, gmode=2, pfk=99):
    a=Asm()
    assert R==2
    DE=16*nE; DL=NPW-DE; BB=256*DE
    ACC=0; AOP=16; B0=24; B1=25; COLW=26; TMP=27; EN=28; DA=30; TRA=32; LO=36; AP=38; CP=39; NOTN=40
    DIS=41; SA=42; X=44; TID=62; S1=63; TRD=64; STA=65; SWA=66; SRA=67; LANE=68; TS=69
    TG=70; T0=72; PA=70; PV=71
    T=lambda p:T0+8*p
    sWG=2; sW=3; sTIN=28; sTOUT=32; sWS=36; sT1=40; sT2=44
    sU=48; sREM=49; sBA=50; sBD=51; sRB=52; sK=53; sSLOW=54; sNB=55; sA=56; sB=57; sC=58; sD=59
    sK1=60; sK2=61; sSPIN=62; sEV=63; sM=64
    sP0=66; sP1=68; sPM=70; sSEG=71; sOFF=72; sCNT=73; sSTART=74; sBK=75; sSI=76; sXC=77; sDB=96; sPA=86; sPM2=87; sTN=6; sK3=7; sJ=89; sUE=5; sSB=4; sI=8; sTH=9; sPOL=10; sTM=11; LT=4096; sM2=78
    nst=[0]
    def st(i):
        if enc:
            for j,pt in enumerate(enc[:2]):
                if pt is not None and pt>=0 and i<8 and pt%8==i:
                    nst[0]+=1
                    a(f'''s_cmp_lg_u32 s{sSI}, {pt-i}
s_cbranch_scc1 L_enc{nst[0]}
s_memrealtime s[{82+2*j}:{83+2*j}]
s_waitcnt lgkmcnt(0)
L_enc{nst[0]}:''')
        if stamp and (stamp!='lite' or i==0):
            a(f'''s_memrealtime s[80:81]
s_waitcnt lgkmcnt(0)
s_add_u32 m0, s{sSI}, {i}
s_nop 0
v_writelane_b32 v{TS}, s80, m0''')
    def sx(i): st(8*i+6)
    def srd(d,lo,nbytes):
        a(f'''s_mov_b32 s{d}, s{lo}
s_mov_b32 s{d+1}, s{lo+1}
s_mov_b32 s{d+2}, {nbytes}
s_mov_b32 s{d+3}, 0x20000''')
    uid=[0]
    def L(x):
        uid[0]+=1; return f'L_{x}_{uid[0]}'
    def spin(lab):
        a(f'''{'s_sleep %d'%psleep if psleep else ''}
s_add_u32 s{sSPIN}, s{sSPIN}, 1
s_cmp_lt_u32 s{sSPIN}, {spinmax}
s_cbranch_scc1 {lab}
s_endpgm''')
    G0=T0; PE=T0+8; PB=PE+8; PK=PB+8; PQ=PK+8; PC=PQ+16
    if enc and enc[0]==-1: a('s_memrealtime s[82:83]')
    a(f'''s_cmp_ge_u32 s2, 256
s_cbranch_scc1 L_end
s_load_dwordx16 s[4:19], s[0:1], 0
s_load_dwordx8 s[20:27], s[0:1], 64
v_lshrrev_b32 v1, 6, v0
v_and_b32 v{LANE}, 63, v0
v_readfirstlane_b32 s{sW}, v1
v_lshlrev_b32 v2, 4, v0
s_mul_i32 s{sA}, s2, {CH*4}
s_and_b32 s{sJ}, s2, 7
s_lshl_b32 s{sJ}, s{sJ}, 5
s_lshr_b32 s{sB}, s2, 3
s_add_u32 s{sJ}, s{sJ}, s{sB}
s_mov_b32 s{sSI}, 0
s_mov_b32 s{sSPIN}, 0
v_mov_b32 v{TS}, 0
s_mul_i32 s{sRB}, s{sW}, {WSTR}
s_cmp_lg_u32 s{sW}, {13 if not nopf else 99}
s_cbranch_scc1 L_nopf
s_getpc_b64 s[94:95]
L_pc1:
v_lshlrev_b32 v3, 7, v{LANE}
global_load_dword v4, v3, s[94:95]
v_add_u32 v3, 8192, v3
global_load_dword v5, v3, s[94:95]
v_add_u32 v3, 8192, v3
v_min_u32 v6, L_end-L_pc1, v3
global_load_dword v6, v6, s[94:95]
v_add_u32 v3, 8192, v3
v_min_u32 v3, L_end-L_pc1, v3
global_load_dword v7, v3, s[94:95]
L_nopf:
v_mov_b32 v16, 0
v_lshlrev_b32 v3, 2, v0
v_add_u32 v22, {L_CNT1}, v3
v_lshrrev_b32 v28, 4, v{LANE}
v_bfe_u32 v29, v{LANE}, 3, 1
v_lshl_add_u32 v28, v28, 5, v29
s_lshl_b32 s{sB}, s{sW}, 1
v_add_u32 v28, s{sB}, v28
v_cmp_gt_u32 vcc, {DL}, v28
s_mul_i32 s{sD}, s{sJ}, {DL}
s_add_u32 s{sD}, s{sD}, {BB}
v_add_u32 v29, s{sD}, v28
v_mov_b32 v19, 0x01000000
v_cndmask_b32 v29, v19, v29, vcc
v_cmp_gt_u32 vcc, {DE}, v28
s_mul_i32 s{sD}, s{sJ}, {DE}
v_add_u32 v28, s{sD}, v28
v_cndmask_b32 v28, v19, v28, vcc
v_and_b32 v19, 0x70, v2
v_lshl_add_u32 v20, v28, 7, v19
v_lshl_add_u32 v21, v29, 7, v19
v_lshlrev_b32 v24, 1, v28
v_lshlrev_b32 v25, 1, v29
s_waitcnt lgkmcnt(0)''')
    srd(sT1,6,E*4); srd(sT2,8,E*4)
    a(f'''s_cmp_ge_u32 s{sW}, 13
s_cbranch_scc1 L_noedge
buffer_load_dwordx4 v[4:7], v2, s[{sT2}:{sT2+3}], s{sA} offen
buffer_load_dwordx4 v[8:11], v2, s[{sT1}:{sT1+3}], s{sA} offen
s_cmp_ge_u32 s{sW}, 4
s_cbranch_scc1 L_noedge
ds_write_b32 v22, v16
ds_write_b32 v22, v16 offset:{L_CNT2-L_CNT1}
ds_write_b32 v16, v16 offset:{L_MISC}
ds_write_b32 v16, v16 offset:{L_MISC+4}
L_noedge:
s_add_u32 s26, s26, 0x1fffff
s_addc_u32 s27, s27, 0
s_and_b32 s26, s26, 0xffe00000
s_add_u32 s{sWS}, s26, {MISC}
s_addc_u32 s{sWS+1}, s27, 0
s_mov_b32 s{sWS+2}, {8<<20}
s_mov_b32 s{sWS+3}, 0x20000''')
    srd(sDB,24,256); srd(sT1,4,N*128); srd(sT2,10,N*2)
    a(f'''s_cmp_lg_u32 s{sW}, 15
s_cbranch_scc1 L_b1
buffer_load_dword v4, v16, s[{sDB}:{sDB+3}], 0 offen offset:128 sc1
s_cmp_ge_u32 s2, 24
s_cbranch_scc1 L_b1
v_lshlrev_b32 v6, 4, v{LANE}
v_mov_b32 v8, 0
v_mov_b32 v9, 0
v_mov_b32 v10, 0
v_mov_b32 v11, 0
s_lshl_b32 s{sA}, s2, 10
s_cmp_lt_u32 s2, 8
s_cbranch_scc1 L_z8
s_add_u32 s{sA}, s{sA}, {SYNC+32768-8192}
buffer_store_dwordx4 v[8:11], v6, s[{sWS}:{sWS+3}], s{sA} offen sc1
s_branch L_b1
L_z8:
s_add_u32 s{sA}, s{sA}, {SYNC}
buffer_store_dwordx4 v[8:11], v6, s[{sWS}:{sWS+3}], s{sA} offen sc1
s_add_u32 s{sA}, s{sA}, 8192
buffer_store_dwordx4 v[8:11], v6, s[{sWS}:{sWS+3}], s{sA} offen sc1
s_add_u32 s{sA}, s{sA}, 8192
buffer_store_dwordx4 v[8:11], v6, s[{sWS}:{sWS+3}], s{sA} offen sc1
L_b1:''')
    st(0)
    a(f'''s_waitcnt lgkmcnt(0)
s_barrier
s_cmp_lg_u32 s{sW}, 15
s_cbranch_scc1 L_xl
s_cmp_lg_u32 s2, 0
s_cbranch_scc1 L_xl
s_waitcnt vmcnt(0)
v_mov_b32 v6, 1
s_mov_b64 exec, 1
buffer_store_dword v6, v16, s[{sDB}:{sDB+3}], 0 offen sc1
s_mov_b64 exec, -1
L_xl:
buffer_load_dwordx4 v[{X}:{X+3}], v20, s[{sT1}:{sT1+3}], 0 offen
buffer_load_dwordx4 v[{X+4}:{X+7}], v21, s[{sT1}:{sT1+3}], 0 offen
buffer_load_ushort v26, v24, s[{sT2}:{sT2+3}], 0 offen
buffer_load_ushort v27, v25, s[{sT2}:{sT2+3}], 0 offen
v_mov_b32 v{TID}, v0
s_add_u32 s90, s26, {PROBE}
s_addc_u32 s91, s27, 0
s_add_u32 s92, s26, {MISC+SYNC}
s_addc_u32 s93, s27, 0
s_mov_b32 s{sEV}, 0
s_mov_b32 s{sK}, 0
s_getreg_b32 s{sXC}, hwreg(HW_REG_XCC_ID, 0, 3)
s_lshl_b32 s{sXC}, s{sXC}, 7
s_add_u32 s{sXC}, s{sXC}, 16384''')
    srd(sTIN,26,TREC); srd(sTOUT,26,TREC)
    def g0(wait):
        a(f'''v_and_b32 v19, 7, v{LANE}
v_lshlrev_b32 v19, 4, v19''')
        for i in range(2):
            a(f'''v_and_b32 v24, 0xffc0, v{28+i}
v_add_lshl_u32 v24, v24, v{28+i}, 7
v_and_b32 v25, 0x2000, v{28+i}
v_or3_b32 v{SA+i}, v24, v25, v19
v_xor_b32 v{DA+i}, 0x2000, v{SA+i}''')
        a(f's_waitcnt vmcnt({wait})')
        for i in range(2):
            a(f'v_lshlrev_b32 v{26+i}, 16, v{26+i}')
            for c in range(4):
                a(f'''v_lshlrev_b32 v24, 16, v{X+4*i+c}
v_and_b32 v25, 0xffff0000, v{X+4*i+c}
v_mul_f32 v24, v24, v{26+i}
v_mul_f32 v25, v25, v{26+i}
v_cvt_pk_bf16_f32 v{G0+4*i+c}, v24, v25''')
    def g0s(pts):
        n=0
        for k,(i,r) in enumerate(((0,SA),(0,DA),(1,SA),(1,DA))):
            if g0p[k] in pts:
                a(f'buffer_store_dwordx4 v[{G0+4*i}:{G0+3+4*i}], v{r+i}, s[{sTOUT}:{sTOUT+3}], 0 offen sc1'); n+=1
        return n
    def consts():
        a(f'''v_and_b32 v12, 15, v{LANE}            ; n
v_lshrrev_b32 v13, 4, v{LANE}          ; q
v_mov_b32 v20, {PADE:#x}
v_mov_b32 v21, {PADE:#x}
v_mov_b32 v22, {PADE:#x}
v_mov_b32 v23, {PADE:#x}
v_lshl_add_u32 v17, v{LANE}, 4, s{sRB}
ds_write_b128 v17, v[20:23] offset:{L_AL}
ds_write_b128 v17, v[20:23] offset:{L_AL+CAP*4-1024}
v_bfe_u32 v16, v{LANE}, 2, 1           ; r&1
v_bfe_u32 v14, v{LANE}, 3, 1           ; i
v_lshl_add_u32 v16, v13, 1, v16        ; g
v_lshl_add_u32 v16, v16, 7, s{sRB}
v_lshl_add_u32 v16, v14, 10, v16
v_and_b32 v18, 1, v13
v_lshl_add_u32 v17, v18, 1, v14        ; swz
v_lshl_add_u32 v16, v17, 5, v16
v_and_b32 v17, 3, v{LANE}
v_lshl_add_u32 v{TRA}, v17, 3, v16
v_xor_b32 v{TRA+1}, 32, v{TRA}
v_xor_b32 v{TRA+2}, 64, v{TRA}
v_xor_b32 v{TRA+3}, 96, v{TRA}
v_and_b32 v16, 7, v{LANE}
v_lshlrev_b32 v18, 2, v18
v_xor_b32 v17, v18, v16
v_lshlrev_b32 v{LO}, 4, v17
v_xor_b32 v{LO+1}, 32, v{LO}
s_mov_b32 s{sA}, 0x01010101
v_mul_lo_u32 v{NOTN}, v12, s{sA}
v_not_b32 v{NOTN}, v{NOTN}
s_mov_b32 s{sK1}, 0x40404041
s_mov_b32 s{sK2}, 0x40004000
s_mov_b32 s{sK3}, {PADE:#x}
s_movk_i32 s{sA}, 144
v_lshl_add_u32 v17, v13, 3, s{sRB}
v_mad_u32_u24 v{SWA}, v12, s{sA}, v17
v_cmp_gt_u32 vcc, 14, v12
v_mov_b32 v17, {OOB}
v_lshrrev_b32 v18, 3, v{LANE}          ; g
v_cndmask_b32 v{SWA}, v17, v{SWA}, vcc
v_lshl_add_u32 v17, v16, 4, s{sRB}
v_mad_u32_u24 v{SRA}, v18, s{sA}, v17
v_lshl_add_u32 v17, v13, 4, s{sRB}
v_mad_u32_u24 v{TRD}, v14, s{sA}, v17
v_lshl_add_u32 v{STA}, v12, 6, s{sRB}   ; col*64 (+k*8)
v_mov_b32 v{S1}, 1.0''')
    def tok0():
        a(f'''ds_write_b128 v{SRA}, v[{X}:{X+3}]
ds_write_b128 v{SRA}, v[{X+4}:{X+7}] offset:{144*nE}
v_lshrrev_b32 v16, 3, v{LANE}
v_lshl_add_u32 v16, v16, 2, s{sRB}
ds_write_b32 v16, v26 offset:2304
ds_write_b32 v16, v27 offset:{2304+4*nE}
v_and_b32 v17, 15, v{LANE}
v_lshl_add_u32 v17, v17, 2, s{sRB}''')
        for t in range(4): a(f'ds_read_b64 v[{X+2*t}:{X+2*t+1}], v{SWA} offset:{32*t}')
        a(f'''ds_read_b32 v{DIS}, v17 offset:2304
s_waitcnt lgkmcnt(0)''')
        for i in range(8):
            a(f'''v_lshlrev_b32 v{ACC+2*i}, 16, v{X+i}
v_and_b32 v{ACC+2*i+1}, 0xffff0000, v{X+i}''')
    def scan(cnt, c, quad):
        a(f'''v_lshlrev_b32 v{c+9}, 4, v{LANE}
v_add_u32 v{c+9}, {cnt}, v{c+9}
ds_read_b128 v[{c}:{c+3}], v{c+9}
s_waitcnt lgkmcnt(0)
v_add_u32 v{c+6}, v{c}, v{c+1}
v_add_u32 v{c+7}, v{c+6}, v{c+2}
v_add_u32 v{c+4}, v{c+7}, v{c+3}''')
        if quad:
            a(f'''v_mov_b32_dpp v{c+5}, v{c+4} quad_perm:[0,0,1,2] row_mask:0xf bank_mask:0xf
v_cndmask_b32 v{c+5}, v{c+5}, 0, s[{sM}:{sM+1}]
v_add_u32 v{c+8}, v{c+4}, v{c+5}
v_mov_b32_dpp v{c+5}, v{c+8} quad_perm:[0,0,0,1] row_mask:0xf bank_mask:0xf
v_cndmask_b32 v{c+5}, v{c+5}, 0, s[{sM2}:{sM2+1}]
v_add_u32 v{c+8}, v{c+8}, v{c+5}''')
        else:
            a(f'v_mov_b32 v{c+8}, v{c+4}')
            for m in ('row_shr:1 row_mask:0xf','row_shr:2 row_mask:0xf','row_shr:4 row_mask:0xf','row_shr:8 row_mask:0xf','row_bcast:15 row_mask:0xa','row_bcast:31 row_mask:0xc'):
                a(f'v_add_u32_dpp v{c+8}, v{c+8}, v{c+8} {m} bank_mask:0xf')
        a(f'''v_sub_u32 v{c+4}, v{c+8}, v{c+4}
v_add_u32 v{c+4}, {'v24' if quad else L_W//4}, v{c+4}
v_add_u32 v{c+5}, v{c+4}, v{c}
v_add_u32 v{c+6}, v{c+4}, v{c+6}
v_add_u32 v{c+7}, v{c+4}, v{c+7}
ds_write_b128 v{c+9}, v[{c+4}:{c+7}] offset:1024''')
    def signal(t0=16,t1=17):
        l=L('ns')
        a(f'''s_lshl_b32 s{sA}, s{sEV}, 10
s_and_b32 s{sB}, s2, 7
s_lshl_b32 s{sB}, s{sB}, 7
s_add_u32 s{sA}, s{sA}, s{sB}
s_mov_b32 s{sB}, 1
s_waitcnt lgkmcnt(0)
s_atomic_add s{sB}, s[92:93], s{sA} glc
s_add_u32 s{sC}, s{sA}, {SYNC+8192}
v_mov_b32 v{t0}, 0
v_mov_b32 v{t1}, 1
s_waitcnt lgkmcnt(0)
s_cmp_lg_u32 s{sB}, 31
s_cbranch_scc1 {l}
s_mov_b64 exec, 1
buffer_store_dword v{t1}, v{t0}, s[{sWS}:{sWS+3}], s{sC} offen sc1
s_mov_b64 exec, -1
{l}:''')
    def poll():
        l=L('pl'); d=L('pd')
        a(f'''s_lshl_b32 s{sA}, s{sEV}, 10
s_add_u32 s{sA}, s{sA}, {SYNC+8192}
v_lshlrev_b32 v16, 7, v{LANE}
s_mov_b64 exec, 0xff
{l}:
buffer_load_dword v17, v16, s[{sWS}:{sWS+3}], s{sA} offen sc1
s_waitcnt vmcnt(0)
v_cmp_eq_u32 vcc, 0, v17
s_cbranch_vccz {d}''')
        spin(l)
        a(f'''{d}:
s_mov_b64 exec, -1''')
    def sig_issue(B,r):
        a(f'''s_lshl_b32 s{sA}, s{sEV}, 10
s_and_b32 s{sC}, s2, 7
s_lshl_b32 s{sC}, s{sC}, 7
s_add_u32 s{sA}, s{sA}, s{sC}
{'s_add_u32 s%d, s%d, 8192'%(sA,sA) if B else ''}
s_mov_b32 s{r}, 1
s_waitcnt lgkmcnt(0)
s_atomic_add s{r}, s[92:93], s{sA} glc''')
    def sig_finish(B,r,t0,t1):
        l=L('ns')
        a(f'''s_waitcnt lgkmcnt(0)
s_cmp_lg_u32 s{r}, 31
s_cbranch_scc1 {l}
s_and_b32 s{sC}, s2, 7
s_lshl_b32 s{sC}, s{sC}, 7
s_add_u32 s{sC}, s{sC}, {SYNC+32768+1024*B}
v_lshlrev_b32 v{t0}, 13, v{LANE}
v_mov_b32 v{t1}, s{sEV}
s_mov_b64 exec, 3
buffer_store_dword v{t1}, v{t0}, s[{sWS}:{sWS+3}], s{sC} offen sc1
s_mov_b64 exec, -1
s_mov_b32 s{r}, 0
{l}:''')
    def signal2(B=0,t0=16,t1=17):
        sig_issue(B,sB); sig_finish(B,sB,t0,t1)
    def joinB(tag):
        a(f'''v_mov_b32 v16, {L_MISC+4}
v_mov_b32 v17, 1
s_lshl_b32 s{sSB}, s{sEV}, 10
s_add_u32 s{sSB}, s{sSB}, {SYNC+8192}
s_and_b32 s{sA}, s2, 7
s_lshl_b32 s{sA}, s{sA}, 7
v_mov_b32 v19, s{sA}
s_waitcnt vmcnt(0)
s_mov_b64 exec, 1
ds_add_rtn_u32 v18, v16, v17
s_waitcnt lgkmcnt(0)
v_readfirstlane_b32 s{sA}, v18
s_and_b32 s{sA}, s{sA}, 15
s_cmp_lg_u32 s{sA}, 15
s_cbranch_scc1 L_jc{tag}
buffer_atomic_add v17, v19, s[{sWS}:{sWS+3}], s{sSB} offen sc1
L_jc{tag}:
s_mov_b64 exec, -1
s_cmp_lg_u32 s{sW}, 15
s_cbranch_scc1 L_jb{tag}''')
        if tag!='p' or ev1>=0: poll2(0,18)
        a(f'L_jb{tag}:')
    def pollissue(B,t1):
        a(f'buffer_load_dword v{t1}, v{PA}, s[{sWS}:{sWS+3}], s{sSB if B else sPOL} offen sc1')
    def poll2(B=0,t1=17):
        l=L('pl'); d=L('pd')
        a(f'{l}:')
        pollissue(B,t1)
        a(f'''s_waitcnt vmcnt(0)
v_cmp_gt_u32 vcc, {32 if B else 's%d'%sEV}, v{t1}
s_cbranch_vccz {d}
{'s_sleep 8' if B else ''}''')
        spin(l)
        a(f'{d}:')
    def prep():
        a(f'''v_lshrrev_b32 v{AP}, 3, v{LANE}
v_lshl_add_u32 v{AP}, v{AP}, 3, s{sRB}
v_lshrrev_b32 v{CP}, 4, v{LANE}
v_lshl_add_u32 v{CP}, v{CP}, 2, s{sRB}''')
        for b in range(R): a(f'ds_read_b64 v[{X+2*b}:{X+2*b+1}], v{AP} offset:{L_AL+64*b}')
        a(f'''ds_read_b64 v[{EN}:{EN+1}], v{AP} offset:{L_AL+64*R}
s_mov_b32 s{sREM}, s{sU}
s_mov_b32 s{sBD}, s{sNB}
s_mov_b32 s{sI}, 0
s_waitcnt lgkmcnt(0)''')
        for b in range(2*R): a(f'v_bitop3_b32 v{X+b}, v{X+b}, s{sK3}, v{LO+(b&1)} bitop3:0x6a')
    def hopA():
        a(f'''s_add_u32 s{sK}, s{sK}, 1
s_add_u32 s{sTOUT}, s{sTOUT}, {TSTR}
s_addc_u32 s{sTOUT+1}, s{sTOUT+1}, 0
s_mov_b32 s{sBA}, s{sTN}
s_and_b32 s{sTH}, s{sBA}, 31
s_mov_b32 s{sSEG}, 0
s_mov_b32 s{sOFF}, 0
s_mov_b32 s{sCNT}, 0''')
        for i in range(16): a(f'v_mov_b32 v{ACC+i}, 0')
        a(f'v_mov_b32 v{PV}, 0')
    def hopinit():
        hopA(); prep()
    def gstore():
        a(f'v_mul_f32 v{TMP}, v{S1}, v{DIS}')
        for t in range(4):
            for r in range(4): a(f'v_mul_f32 v{X+r}, v{TMP}, v{ACC+4*t+r}')
            a(f'''v_cvt_pk_bf16_f32 v{AOP+2*t}, v{X}, v{X+1}
v_cvt_pk_bf16_f32 v{AOP+2*t+1}, v{X+2}, v{X+3}
ds_write_b64 v{SWA}, v[{AOP+2*t}:{AOP+2*t+1}] offset:{32*t}''')
        a(f'''ds_read_b128 v[{X+8}:{X+11}], v{SRA}
ds_read_b128 v[{X+12}:{X+15}], v{SRA} offset:{144*nE}
v_xor_b32 v{DA}, 0x2000, v{SA}
v_xor_b32 v{DA+1}, 0x2000, v{SA+1}''')
        a('s_waitcnt lgkmcnt(1)')
        rows(0)
        a('s_waitcnt lgkmcnt(0)')
        if not defer: rows(1)
    def rows(i):
        for r in (DA,SA): a(f'buffer_store_dwordx4 v[{X+8+4*i}:{X+11+4*i}], v{r+i}, s[{sTOUT}:{sTOUT+3}], 0 offen sc1')
    def allq(r,t):
        a(f'''v_mov_b32 v{t}, v{r}
v_permlane16_swap_b32 v{t}, v{r}
v_add_f32 v{r}, v{r}, v{t}
v_mov_b32 v{t}, v{r}
v_permlane32_swap_b32 v{t}, v{r}
v_add_f32 v{r}, v{r}, v{t}''')
    def stats(a=a, NP=7, k=None):
        for i in range(2): a(f'v_add_f32 v{X+i}, v{ACC+i}, v{ACC+2+i}')
        for i in range(2): a(f'v_mul_f32 v{X+4+i}, v{ACC+i}, v{ACC+i}')
        for i in range(2,16):
            if i>=4: a(f'v_add_f32 v{X+i%2}, v{X+i%2}, v{ACC+i}')
            a(f'v_fmac_f32 v{X+4+i%2}, v{ACC+i}, v{ACC+i}')
        a(f'''v_add_f32 v{X}, v{X}, v{X+1}
v_add_f32 v{X+4}, v{X+4}, v{X+5}
v_mul_f32 v{X+5}, v{S1}, v{S1}
v_permlane16_swap_b32 v{X}, v{X+4}
v_add_f32 v{X}, v{X}, v{X+4}
v_mov_b32 v{X+4}, v{X}
v_mov_b32 v{X+6}, {fb(1e-5):#x}
v_permlane32_swap_b32 v{X}, v{X+4}
v_add_f32 v{X}, v{X}, v{X+4}
v_mul_f32 v{X}, {fb(1/64):#x}, v{X}
v_mov_b32 v{X+4}, v{X}
{'' if k is not None else 's_lshl_b32 s%d, s%d, 3'%(sA,sK)}
{'' if k is not None else 'v_add_u32 v%d, s%d, v%d'%(X+7,sA,STA)}
v_permlane16_swap_b32 v{X}, v{X+4}
v_fma_f32 v{X+4}, -v{X}, v{X}, v{X+4}
v_max_f32 v{X+4}, 0, v{X+4}
v_fmac_f32 v{X+6}, v{X+5}, v{X+4}      ; var+eps
v_rsq_f32 v{X+5}, v{X+6}
v_mul_f32 v{X+3}, v{X}, v{S1}          ; mu
v_mul_f32 v{X+2}, v{X+6}, v{X+5}       ; sigma
v_mul_f32 v{X+4}, v{X+5}, v{S1}
v_mul_f32 v{X+5}, v{X+5}, v{X+3}
ds_write_b64 v{X+7 if k is None else STA}, v[{X+2}:{X+3}] offset:{L_ST+(0 if k is None else 8*k)}''')
        for t in range(4):
            for r in range(4): a(f'v_fma_f32 v{ACC+4*t+r}, v{X+4}, v{ACC+4*t+r}, -v{X+5}')
            a(f'''v_cvt_pk_bf16_f32 v{AOP+2*t}, v{ACC+4*t}, v{ACC+4*t+1}
v_cvt_pk_bf16_f32 v{AOP+2*t+1}, v{ACC+4*t+2}, v{ACC+4*t+3}''')
            if k is None: a(f'ds_write_b64 v{SWA}, v[{AOP+2*t}:{AOP+2*t+1}] offset:{LT+32*t}')
            elif t&1: a(f'ds_write2_b64 v{SWA}, v[{AOP+2*t-2}:{AOP+2*t-1}], v[{AOP+2*t}:{AOP+2*t+1}] offset0:{4*t-4} offset1:{4*t}')
        if k is not None:
            for p in range(NP):
                a([f's_mov_b64 exec, s[{sM2}:{sM2+1}]']+[f'ds_read_b128 v[{T(p)+4*s}:{T(p)+4*s+3}], v{TRD} offset:{288*p+64*s}' for s in range(2)]+['s_mov_b64 exec, -1'])
            return
        a(f's_lshl_b32 s{sTM}, 0x01010101, s{sK}')
    def scatter():
        l=L('sc')
        a(f'''s_cmp_eq_u32 s{sTM}, 0
s_cbranch_scc1 {l}
s_mov_b32 exec_lo, s{sTM}
s_mov_b32 exec_hi, s{sTM}''')
        for p in range(7):
            if p==6: a(f's_cmp_ge_u32 s{sW}, 2\ns_cbranch_scc1 {l}b')
            for s in range(2): a(f'ds_read_b128 v[{T(p)+4*s}:{T(p)+4*s+3}], v{TRD} offset:{LT+288*p+64*s}')
        a(f'''{l}b:
s_mov_b64 exec, -1
s_mov_b32 s{sTM}, 0
{l}:''')
    a(f'''s_cmp_lt_u32 s{sW}, 13
s_cbranch_scc1 L_p1
s_cmp_lg_u32 s{sW}, 13
s_cbranch_scc1 L_w1415
s_cmp_lt_u32 s{sJ}, 254
s_cbranch_scc1 L_p1_b2
v_lshlrev_b32 v13, 7, v{LANE}
v_mov_b32 v14, 0
global_load_dword v8, v13, s[12:13]
global_load_dword v9, v13, s[14:15]
global_load_dword v10, v13, s[16:17]
global_load_dword v11, v13, s[18:19]
global_load_dword v12, v14, s[20:21]
s_branch L_p1_b2
L_w1415:
s_cmp_eq_u32 s{sW}, 15
s_cbranch_scc1 L_w15
s_lshr_b32 s{sPA}, s2, 6
s_lshl_b32 s{sPA}, s{sPA}, 14
s_and_b32 s{sB}, s2, 63
s_lshl_b32 s{sB}, s{sB}, 7
s_add_u32 s{sPA}, s{sPA}, s{sB}
s_and_b32 s{sB}, s2, 8
s_lshl_b32 s{sB}, s{sB}, 10
s_add_u32 s{sPA}, s{sPA}, s{sB}
s_xor_b32 s{sB}, s{sPA}, 0x2000
s_mov_b32 s{sC}, 1
s_mov_b32 s{sD}, 1
s_atomic_add s{sC}, s[90:91], s{sPA} glc
s_atomic_add s{sD}, s[90:91], s{sB} glc
L_w15:''')
    consts()
    a(f'''s_barrier
s_barrier
s_cmp_eq_u32 s{sW}, 14
s_cbranch_scc1 L_w15q
v_mov_b32 v16, 0
L_w15p:
buffer_load_dword v17, v16, s[{sDB}:{sDB+3}], 0 offen sc1
s_waitcnt vmcnt(0)
v_readfirstlane_b32 s{sA}, v17
s_cmp_lg_u32 s{sA}, 0
s_cbranch_scc1 L_w15q''')
    spin('L_w15p')
    a('L_w15q:\ns_setprio 3')
    g0(0)
    if ev1<0:
        g0s((0,)); a('s_waitcnt vmcnt(0)')
    a(f'''s_barrier
s_cmp_eq_u32 s{sW}, 14
s_cbranch_scc1 L_w14''')
    st(3)
    signal()
    sx(2)
    a(f'''L_w14:''')
    tok0()
    stats()
    a(f'''s_cmp_eq_u32 s{sW}, 14
s_cbranch_scc1 L_w14b''')
    poll()
    a(f'''s_branch L_w15s
L_w14b:
s_waitcnt lgkmcnt(0)
s_mov_b32 s{sC}, 0
s_mov_b32 s{sPM}, 0
s_mov_b32 s{sPM2}, 0
L_pr:
s_mov_b32 s{sB}, 1
s_memtime s[{sP0}:{sP0+1}]
s_waitcnt lgkmcnt(0)
s_atomic_add s{sB}, s[90:91], s{sPA} glc
s_waitcnt lgkmcnt(0)
s_memtime s[{sP1}:{sP1+1}]
s_waitcnt lgkmcnt(0)
s_sub_u32 s{sB}, s{sP0}, s{sP1}
{('s_sub_u32 s80, 0, s%d'%sB+chr(10)+'s_lshl_b32 s%d, s%d, 3'%(sD,sC)+chr(10)+'s_add_u32 m0, s%d, 15'%sD+chr(10)+'s_nop 0'+chr(10)+'v_writelane_b32 v%d, s80, m0'%TS) if stamp else ''}
s_max_u32 s{sB}, s{sPM}, s{sB}
s_mov_b32 s{sPM}, s{sPM2}
s_mov_b32 s{sPM2}, s{sB}
s_xor_b32 s{sPA}, s{sPA}, 0x2000
s_add_u32 s{sC}, s{sC}, 1
s_cmp_lt_u32 s{sC}, {reps}
s_cbranch_scc1 L_pr
s_lshr_b32 s{sA}, s{sPA}, 11
s_and_b32 s{sA}, s{sA}, 4
s_add_u32 s{sA}, s{sA}, s{sXC}
s_xor_b32 s{sB}, s{sA}, 4
{'s_atomic_umax s%d, s[92:93], s%d glc'%(sPM,sA) if reps>1 else ''}
s_atomic_umax s{sPM2}, s[92:93], s{sB} glc
L_w15s:
s_setprio 0''')
    g0s((0,1,2) if ev1>=0 else (1,2))
    a('s_branch L_b5')
    a(f'''L_p1:
s_mov_b32 s{sA}, {BB}
s_mov_b32 s{sB}, {L_CNT1}
s_movk_i32 s{sD}, 0x2000
v_mov_b32 v2, 1
v_mov_b32 v32, {-(-(1<<20)//DE)}
v_mov_b32 v33, {-(-(1<<20)//DL)}
v_mov_b32 v34, {-DE}
v_mov_b32 v35, {-DL}''')
    for j in range(4): a(f'v_mov_b32 v{20+j}, 0x10000000')
    a('s_waitcnt vmcnt(5)')
    for j in range(4):
        m=(sM,sM2,sP0,sP1)[j]
        a(f'''v_cmp_le_u32 s[{m}:{m+1}], s{sA}, v{4+j}
v_subrev_u32 v16, s{sA}, v{4+j}
v_min_u32 v{4+j}, v16, v{4+j}
v_cndmask_b32 v16, v32, v33, s[{m}:{m+1}]
v_mul_u32_u24 v16, v16, v{4+j}
v_lshrrev_b32 v{36+j}, 20, v16            ; owner
v_lshl_add_u32 v{12+j}, v{36+j}, 2, s{sB}''')
    for j in range(4):
        if j<2: a(f'v_cmpx_gt_u32 vcc, {CH-j}, v3')
        a(f'ds_add_rtn_u32 v{20+j}, v{12+j}, v2')
    a('s_mov_b64 exec, -1')
    for j in range(4):
        m=(sM,sM2,sP0,sP1)[j]
        a(f'''v_cndmask_b32 v16, v34, v35, s[{m}:{m+1}]
v_mad_i32_i24 v{4+j}, v{36+j}, v16, v{4+j}
v_cndmask_b32 v16, 0, v34, s[{m}:{m+1}]
v_sub_u32 v{4+j}, v{4+j}, v16           ; r''')
    a('s_waitcnt vmcnt(4)')
    st(7)
    def entries(js):
        for j in js:
            a(f'''v_and_b32 v16, 0xffc0, v{8+j}
v_add_lshl_u32 v16, v16, v{8+j}, 7
v_and_or_b32 v16, v{8+j}, s{sD}, v16
v_lshrrev_b32 v17, 12, v{8+j}
v_lshl_or_b32 v16, v17, 24, v16
v_lshrrev_b32 v17, 4, v{4+j}
v_bfi_b32 v17, 1, v{4+j}, v17
v_lshrrev_b32 v18, 1, v{4+j}
v_lshl_or_b32 v17, v18, 28, v17
v_or_b32 v{8+j}, v16, v17''')
    entries(range(4))
    a(f'''L_p1_b2:
s_waitcnt lgkmcnt(0)
s_barrier''')
    st(2)
    scan(L_CNT1,X+8,False)
    a(f'''s_cmp_lg_u32 s{sW}, 13
s_cbranch_scc1 L_p1_sc''')
    for j in range(4): a(f'v_subrev_u32 v{X+12+j}, {L_W//4}, v{X+12+j}\nv_lshl_or_b32 v{X+8+j}, v{X+8+j}, 16, v{X+12+j}')
    a(f'''s_lshl_b32 s{sA}, s2, 10
s_add_u32 s{sA}, s{sA}, {OFFS}
v_lshlrev_b32 v16, 4, v{LANE}
buffer_store_dwordx4 v[{X+8}:{X+11}], v16, s[{sWS}:{sWS+3}], s{sA} offen sc1
s_waitcnt lgkmcnt(0)
s_barrier
s_branch L_p1_g
L_p1_sc:''')
    for j in range(4): a(f'ds_read_b32 v{16+j}, v{12+j} offset:1024')
    a(f'''v_lshlrev_b32 v2, 4, v0
v_add_u32 v3, {L_W}, v2
s_mul_i32 s{sA}, s2, {CHSTR}
v_cmp_gt_u32 vcc, {CHSTR}, v2
v_mov_b32 v1, {OOB}
v_cndmask_b32 v2, v1, v2, vcc''')
    for j in range(4):
        a(f'''s_waitcnt lgkmcnt(3)
v_add_lshl_u32 v{16+j}, v{16+j}, v{20+j}, 2
ds_write_b32 v{16+j}, v{8+j}''')
    a(f'''s_waitcnt lgkmcnt(0)
s_barrier''')
    sx(1)
    a(f'''ds_read_b128 v[4:7], v3
s_waitcnt lgkmcnt(0)
buffer_store_dwordx4 v[4:7], v2, s[{sWS}:{sWS+3}], s{sA} offen sc1
L_p1_g:''')
    g0(1)
    n=g0s((0,))
    if ev1<0: n=0; assert g0p[:2]==(0,0)
    a(f'''s_waitcnt vmcnt({n})
s_barrier''')
    st(3)
    a('L_b4:')
    g0s((1,))
    consts()
    tok0()
    g0s((2,))
    stats()
    sx(3)
    a('L_b5:')
    a(f'''s_lshl_b32 s{sBK}, s{sJ}, 2
s_add_u32 s{sBK}, s{sBK}, {OFFS}
v_lshrrev_b32 v{PC+1}, 2, v{TID}               ; segment
v_lshlrev_b32 v{PC+2}, 10, v{PC+1}
s_barrier
buffer_load_dword v{PC}, v{PC+2}, s[{sWS}:{sWS+3}], s{sBK} offen sc1''')
    n3=g0s((3,))
    st(4)
    a(f'''s_mov_b32 s{sEV}, 1
v_mul_u32_u24 v{PC+1}, {CHSTR}, v{PC+1}
v_and_b32 v{PC+2}, 3, v{TID}
v_lshlrev_b32 v{PC+2}, 2, v{PC+2}                ; 4*sub
v_mov_b32 v{PC+4}, {OOB}''')
    for j in range(8): a(f'v_mov_b32 v{PK+j}, 0x10000000')
    a(f's_waitcnt vmcnt({n3})')
    sx(4)
    a(f'''v_and_b32 v{PC+3}, 0xffff, v{PC}
v_lshrrev_b32 v{PC}, 16, v{PC}               ; count
v_add_u32 v{PC+3}, v{PC+3}, v{PC+2}
v_lshl_add_u32 v{PC+3}, v{PC+3}, 2, v{PC+1}
v_sub_u32 v{PC}, v{PC}, v{PC+2}
buffer_load_dwordx4 v[{PE}:{PE+3}], v{PC+3}, s[{sWS}:{sWS+3}], 0 offen sc1
v_cmp_lt_i32 vcc, 16, v{PC}
v_cndmask_b32 v{PC+4}, v{PC+4}, v{PC+3}, vcc
buffer_load_dwordx4 v[{PE+4}:{PE+7}], v{PC+4}, s[{sWS}:{sWS+3}], 0 offen offset:64 sc1''')
    if ev1==0:
        a(f'''s_waitcnt vmcnt(2)
s_barrier
s_cmp_lg_u32 s{sW}, 15
s_cbranch_scc1 L_p2a''')
        signal2(0,24,25)
        a('s_waitcnt vmcnt(1)\nL_p2a:')
    a(f'''v_mul_f32 v{S1}, 0.5, v{DIS}
v_cmp_lt_i32 vcc, 32, v{PC}
v_mov_b32 v{PC+1}, 1
v_mov_b32 v{PC+2}, {L_MISC}
s_cbranch_vccz L_p2b
ds_write_b32 v{PC+2}, v{PC+1}
L_p2b:
s_mov_b32 s{sA}, {L_CNT2}''')
    for h in range(2):
        a(f's_waitcnt vmcnt({1-h})')
        if h==0: sx(5)
        for j in range(4*h,4*h+4):
            a(f'''v_lshrrev_b32 v24, 24, v{PE+j}
v_lshl_add_u32 v{PB+j}, v24, 2, s{sA}''')
        for j in range(4*h,4*h+4):
            a(f'''v_cmpx_lt_i32 vcc, {j%4+16*h}, v{PC}
ds_add_rtn_u32 v{PK+j}, v{PB+j}, v{PC+1}''')
        a('s_mov_b64 exec, -1')
    a(f'''v_mov_b32 v24, {SYNC}
buffer_load_dwordx2 v[{PC+4}:{PC+5}], v24, s[{sWS}:{sWS+3}], s{sXC} offen sc1''')
    g0s((4,))
    a(f'''s_mov_b32 s{sM}, 0x11111111
s_mov_b32 s{sM+1}, 0x11111111
s_mov_b32 s{sM2}, 0x33333333
s_mov_b32 s{sM2+1}, 0x33333333
v_lshrrev_b32 v25, 2, v{LANE}
v_mul_u32_u24 v24, {WSTR//4}, v25
s_waitcnt lgkmcnt(0)
s_barrier''')
    st(5)
    if ev1==1:
        a(f'''s_cmp_lg_u32 s{sW}, 14
s_cbranch_scc1 L_p2a''')
        signal2(0,22,23)
        a('L_p2a:')
    a(f'ds_read_b32 v{PC+1}, v{PC+2}')
    scan(L_CNT2,X+8,True)
    for j in range(8): a(f'ds_read_b32 v{PQ+j}, v{PB+j} offset:1024')
    a(f'''s_lshl_b32 s{sA}, s{sW}, 2
s_add_u32 s{sA}, s{sA}, 3
v_readlane_b32 s{sU}, v{X+16}, s{sA}
s_sub_u32 s{sA}, s{sA}, {3-nE//4}
v_readlane_b32 s{sUE}, v{X+12+nE%4}, s{sA}
v_cmp_lt_u32 vcc, {CAP}, v{X+16}
v_readfirstlane_b32 s{sSLOW}, v{PC+1}
s_or_b32 s{sA}, vcc_lo, vcc_hi
s_or_b32 s{sSLOW}, s{sSLOW}, s{sA}
{'s_or_b32 s%d, s%d, 1'%(sSLOW,sSLOW) if force_slow else ''}
s_cbranch_scc1 L_p2d''')
    sx(6)
    for j in range(8):
        a(f'''s_waitcnt lgkmcnt(7)
v_add_lshl_u32 v{PQ+j}, v{PQ+j}, v{PK+j}, 2
ds_write_b32 v{PQ+j}, v{PE+j} offset:{L_AL}''')
    a(f'''L_p2d:
s_add_u32 s{sU}, s{sU}, 15
s_lshr_b32 s{sU}, s{sU}, 4
s_lshr_b32 s{sA}, s{sRB}, 2
s_sub_u32 s{sUE}, s{sUE}, s{sA}
s_lshr_b32 s{sUE}, s{sUE}, 4
s_mul_i32 s{sA}, s{sU}, {fr[gi]}
s_add_u32 s{sA}, s{sA}, 32
s_lshr_b32 s{sA}, s{sA}, 6
s_min_u32 s{sUE}, s{sUE}, s{sA}
s_lshl_b32 s{sTN}, s{sU}, {5*len(fr)}''')
    assert len(fr)<=5
    for j,f in enumerate(fr):
        a(f'''s_mul_i32 s{sA}, s{sU}, {f}
s_add_u32 s{sA}, s{sA}, 32
s_lshr_b32 s{sA}, s{sA}, 6
s_{'min' if j<=gi else 'max'}_u32 s{sA}, s{sA}, s{sUE}
s_lshl_b32 s{sA}, s{sA}, {5*j}
s_or_b32 s{sTN}, s{sTN}, s{sA}''')
    a(f'''s_sub_u32 s{sUE}, s{sUE}, 2
s_min_i32 s{sUE}, s{sUE}, {ppi}
s_cmp_eq_u32 s{sW}, 15
s_cselect_b32 s{sUE}, s{sUE}, -1''')
    g0s((5,))
    a(f'''s_cmp_eq_u32 s{sSLOW}, 0
s_cselect_b32 s{sNB}, {len(fr)}, 0
s_cselect_b32 s{sU}, s{sU}, 4
s_waitcnt vmcnt(0)
v_cmp_gt_u32 s[{sM}:{sM+1}], v{PC+4}, v{PC+5}
v_mov_b32 v24, 0x2000
v_cndmask_b32 v24, 0, v24, s[{sM}:{sM+1}]
v_or_b32 v{LO}, v{LO}, v24
v_or_b32 v{LO+1}, v{LO+1}, v24
v_xor_b32 v{SA}, v{SA}, v24
v_xor_b32 v{SA+1}, v{SA+1}, v24
v_readfirstlane_b32 s{sPOL}, v24
v_and_b32 v{PA}, 7, v{LANE}
v_lshlrev_b32 v{PA}, 7, v{PA}
s_add_u32 s{sPOL}, s{sPOL}, {SYNC+32768}
''')
    assert not ((MISC+SYNC)>>21)&1
    hopA()
    joinB('p')
    a('s_barrier')
    prep()
    st(6)
    a(f'''L_hop:
s_add_u32 s{sSI}, s{sSI}, 8
s_setprio 3''')
    if stamp: a('s_memrealtime s[84:85]')
    if enc: st(0)
    a(f'''s_cmp_eq_u32 s{sSLOW}, 0
s_cbranch_scc1 L_gather
''')
    a(f's_cmp_lg_u32 s{sW}, 15\ns_cbranch_scc1 L_slow0')
    poll2(1)
    a(f'''L_slow0:
s_barrier
L_slow:
s_cmp_lt_u32 s{sOFF}, s{sCNT}
s_cbranch_scc1 L_slow2
s_cmp_ge_u32 s{sSEG}, 256
s_cbranch_scc1 L_gdone
s_lshl_b32 s{sA}, s{sSEG}, 10
v_mov_b32 v16, s{sA}
buffer_load_dword v17, v16, s[{sWS}:{sWS+3}], s{sBK} offen sc1
s_mul_i32 s{sSTART}, s{sSEG}, {CHSTR}
s_add_u32 s{sSEG}, s{sSEG}, 1
s_mov_b32 s{sOFF}, 0
s_waitcnt vmcnt(0)
v_readfirstlane_b32 s{sA}, v17
s_lshr_b32 s{sCNT}, s{sA}, 16
s_and_b32 s{sA}, s{sA}, 0xffff
s_lshl_b32 s{sA}, s{sA}, 2
s_add_u32 s{sSTART}, s{sSTART}, s{sA}
s_branch L_slow
L_slow2:
v_add_u32 v16, s{sOFF}, v{LANE}
v_lshl_add_u32 v17, v16, 2, s{sSTART}
buffer_load_dword v18, v17, s[{sWS}:{sWS+3}], 0 offen sc1
s_add_u32 s{sOFF}, s{sOFF}, 64
v_cmp_gt_u32 s[{sM}:{sM+1}], s{sCNT}, v16
s_waitcnt vmcnt(0)
v_lshrrev_b32 v19, 28, v18
v_cmp_eq_u32 vcc, s{sW}, v19
s_and_b64 s[{sM}:{sM+1}], s[{sM}:{sM+1}], vcc''')
    a('v_mov_b32 v20, v18\nv_and_b32 v21, 15, v18')
    a(f'''v_mov_b32 v22, {PADE:#x}
v_cndmask_b32 v20, v22, v20, s[{sM}:{sM+1}]
v_lshl_add_u32 v22, v{LANE}, 2, s{sRB}
v_add_u32 v23, s{sRB}, v{LANE}
ds_write_b32 v22, v20 offset:{L_AL}
ds_write_b8 v23, v21 offset:{L_CL}''')
    prep()
    def pacer(tag):
        a(f'''L_pa{tag}:
s_cmp_lt_u32 s{sI}, s{sTH}
s_cbranch_scc1 L_pb{tag}
s_cmp_eq_u32 s{sBD}, 0
s_cbranch_scc1 L_pb{tag}
s_sub_u32 s{sBD}, s{sBD}, 1
s_lshr_b32 s{sBA}, s{sBA}, 5
s_and_b32 s{sTH}, s{sBA}, 31
s_cmp_lg_u32 s{sBD}, {len(fr)-1-gi}
s_cbranch_scc1 L_pz{tag}
''')
        a(f'''s_cmp_lg_u32 s{sW}, 15
s_cbranch_scc1 L_pz{tag}
{'s_branch L_pz%s'%tag if nogate else ''}
s_waitcnt vmcnt(4)
v_cmp_gt_u32 vcc, 32, v{PV}
s_cbranch_vccz L_pz{tag}''')
        poll2(1,PV)
        a(f'''L_pz{tag}:
s_barrier
s_branch L_pa{tag}
L_pb{tag}:''')
    def issue(b,e0,e1):
        a(f'''s_add_u32 m0, s{sRB}, {2048*b}
s_add_u32 s{sI}, s{sI}, 1
buffer_load_dwordx4 v{e0}, s[{sTIN}:{sTIN+3}], 0 offen sc1 lds
s_add_u32 m0, s{sRB}, {2048*b+1024}
buffer_load_dwordx4 v{e1}, s[{sTIN}:{sTIN+3}], 0 offen sc1 lds''')
    a('L_gather:')
    for b in range(R):
        pacer(f'p{b}')
        a(f'''s_cmp_le_u32 s{sU}, {b}
s_cbranch_scc1 L_gl0''')
        issue(b,X+2*b,X+2*b+1)
    a('L_gl0:')
    if stamp: a(f's_waitcnt lgkmcnt(0)\ns_mov_b32 m0, s{sSI}\ns_nop 0\nv_writelane_b32 v{TS}, s84, m0')
    a(f'''L_gl0b:
s_cmp_lg_u32 s{sTM}, 0x01010101
s_cbranch_scc1 L_gl1
v_lshl_add_u32 v{TMP}, v{LANE}, 4, s{sRB}
ds_read_b128 v[{AOP}:{AOP+3}], v{TMP} offset:{L_AL}
ds_read_b128 v[{AOP+4}:{AOP+7}], v{TMP} offset:{L_AL+CAP*4-1024}
v_lshl_add_u32 v{TMP}, v{LANE}, 2, s{sRB}
s_mov_b32 s{sA}, 0x0c0c0400
s_mov_b32 s{sB}, 0x0f0f0f0f''')
    for h in range(2):
        a(f'''s_waitcnt lgkmcnt(1)
v_perm_b32 v{AOP+4*h}, v{AOP+4*h+1}, v{AOP+4*h}, s{sA}
v_perm_b32 v{AOP+4*h+2}, v{AOP+4*h+3}, v{AOP+4*h+2}, s{sA}
v_lshl_or_b32 v{AOP+4*h}, v{AOP+4*h+2}, 16, v{AOP+4*h}
v_and_b32 v{AOP+4*h}, s{sB}, v{AOP+4*h}
ds_write_b32 v{TMP}, v{AOP+4*h} offset:{L_CL+h*(CAP-256)}''')
    a('L_gl1:')
    scatter()
    a('L_gl:')
    for b in range(R):
        pacer(b)
        if prio:
            a(f'''s_sub_i32 s{sA}, s{sTH}, s{sI}
s_setprio 0
s_cmp_le_i32 s{sA}, {prio-1}
s_cbranch_scc1 L_pc{b}_
s_setprio 1
s_cmp_le_i32 s{sA}, {prio}
s_cbranch_scc1 L_pc{b}_
s_setprio 2
s_cmp_le_i32 s{sA}, {prio+1}
s_cbranch_scc1 L_pc{b}_
s_setprio 3
L_pc{b}_:''')
        a(f'''ds_read_b32 v{COLW}, v{CP} offset:{L_CL+16*b}
s_cmp_ge_u32 s{sREM}, {R}
s_cbranch_scc1 L_gw{b}
s_cmp_eq_u32 s{sREM}, 0
s_cbranch_scc1 L_gend
s_setprio 3''')
        for m in range(R-1,1,-1):
            a(f'''s_waitcnt vmcnt({2*(m-1)})
s_cmp_eq_u32 s{sREM}, {m}
s_cbranch_scc1 L_gw{b}''')
        a(f'''s_waitcnt vmcnt(0)
L_gw{b}:
s_waitcnt lgkmcnt(0)
v_xad_u32 v{TMP}, v{COLW}, v{NOTN}, s{sK1}
v_bitop3_b32 v{DA}, v{EN}, s{sK3}, v{LO} bitop3:0x6a
v_bitop3_b32 v{DA+1}, v{EN+1}, s{sK3}, v{LO+1} bitop3:0x6a
s_waitcnt vmcnt({2*(R-1)})''')
        for t in range(4): a(f'ds_read_b64_tr_b16 v[{AOP+2*t}:{AOP+2*t+1}], v{TRA+t} offset:{2048*b}')
        a(f'''ds_read_b64 v[{EN}:{EN+1}], v{AP} offset:{L_AL+64*(R+1+b)}
v_and_b32 v{B1}, s{sK2}, v{TMP}
v_lshlrev_b32 v{TMP}, 8, v{TMP}
v_and_b32 v{B0}, s{sK2}, v{TMP}
s_cmp_le_u32 s{sREM}, {R}
s_waitcnt lgkmcnt(1)
s_cbranch_scc1 L_gn{b}
s_cmp_lg_u32 s{sI}, s{sUE}
s_cbranch_scc1 L_gq{b}''')
        pollissue(1,PV)
        a(f'L_gq{b}:')
        issue(b,DA,DA+1)
        a(f'L_gn{b}:')
        for t in range(4): a(f'v_mfma_f32_16x16x16_bf16 v[{ACC+4*t}:{ACC+4*t+3}], v[{AOP+2*t}:{AOP+2*t+1}], v[{B0}:{B1}], v[{ACC+4*t}:{ACC+4*t+3}]')
        a(f's_sub_u32 s{sREM}, s{sREM}, 1')
    a(f'''v_add_u32 v{AP}, {64*R}, v{AP}
v_add_u32 v{CP}, {16*R}, v{CP}
s_branch L_gl
L_gend:
s_waitcnt lgkmcnt(0)
s_cmp_lg_u32 s{sSLOW}, 0
s_cbranch_scc1 L_slow
L_gdone:''')
    scatter()
    st(1)
    a(f'''s_cmp_eq_u32 s{sK}, 7
s_cbranch_scc1 L_final''')
    a('s_setprio 3')
    gstore()
    a('s_setprio 0')
    st(2)
    a(f'''s_add_u32 s{sEV}, s{sEV}, 1
s_add_u32 s{sTIN}, s{sTIN}, {TSTR}
s_addc_u32 s{sTIN+1}, s{sTIN+1}, 0
s_cmp_lg_u32 s{sW}, 15
s_cbranch_scc1 L_hA''')
    stats()
    a('''s_waitcnt vmcnt(0)
s_barrier''')
    sig_issue(0,sB)
    if defer: rows(1)
    sig_finish(0,sB,16,17)
    st(4)
    a(f'''s_branch L_hB
L_hA:''')
    if sfirst: stats()
    a('s_waitcnt vmcnt(0)')
    st(3)
    a('s_barrier')
    if defer==1: rows(1)
    if not sfirst: stats()
    if defer==2: rows(1)
    st(4)
    a('L_hB:')
    a(f'''s_cmp_lt_u32 s{sJ}, 254
s_cbranch_scc1 L_jend
s_cmp_lg_u32 s{sK}, 1
s_cbranch_scc1 L_jend''')
    a(f'''v_lshrrev_b32 v1, 4, v{LANE}           ; q
v_lshlrev_b32 v5, 4, v{LANE}
s_lshl_b32 s{sD}, s{sW}, 10
s_add_u32 s{sD}, s{sD}, {WGT}
s_cmp_eq_u32 s{sJ}, 254
s_cbranch_scc1 L_jr
v_bfe_u32 v0, v{LANE}, 2, 2
v_and_b32 v2, 3, v{LANE}
v_lshl_add_u32 v0, v0, 3, v2           ; 8*(i>>2)+(i&3)
s_and_b32 s{sA}, s{sW}, 1
s_lshl_b32 s{sA}, s{sA}, 12            ; s*32 rows*128B
s_and_b32 s{sB}, s{sW}, 4
s_lshl_b32 s{sB}, s{sB}, 3
s_and_b32 s{sC}, s{sW}, 2
s_lshl_b32 s{sC}, s{sC}, 1
s_add_u32 s{sB}, s{sB}, s{sC}
v_lshlrev_b32 v2, 7, v0
v_lshl_add_u32 v2, v1, 4, v2           ; row*128 + q*16
s_cmp_ge_u32 s{sW}, 8
s_cbranch_scc1 L_jw''')
    def aload():
        a(f'''buffer_load_dwordx4 v[8:11], v2, s[{sT1}:{sT1+3}], s{sA} offen
buffer_load_dwordx4 v[12:15], v2, s[{sT1}:{sT1+3}], s{sA} offen offset:64
buffer_load_dwordx4 v[16:19], v2, s[{sT1}:{sT1+3}], s{sA} offen offset:512
buffer_load_dwordx4 v[20:23], v2, s[{sT1}:{sT1+3}], s{sA} offen offset:576''')
    srd(sT1,12,8192); srd(sT2,14,8192)
    aload()
    a(f'''s_lshl_b32 s{sB}, s{sB}, 7
buffer_load_dwordx4 v[24:27], v2, s[{sT2}:{sT2+3}], s{sB} offen
buffer_load_dwordx4 v[28:31], v2, s[{sT2}:{sT2+3}], s{sB} offen offset:64
s_mov_b32 s{sC}, {fb(0.125*LOG2E):#x}
s_waitcnt vmcnt(0)
s_branch L_jm
L_jw:''')
    srd(sT1,16,8192); srd(sT2,18,8192)
    aload()
    a(f'''s_lshl_b32 s{sB}, s{sB}, 1
v_lshlrev_b32 v3, 1, v0
v_lshl_add_u32 v3, v1, 10, v3          ; (8q)*128 + col*2
v_add_u32 v4, 4096, v3''')
    for s in range(2):
        for j in range(8):
            a(f'buffer_load_ushort v{X+8*s+j}, v{3+s}, s[{sT2}:{sT2+3}], s{sB} offen offset:{128*j}')
    a('s_waitcnt vmcnt(0)')
    for i in range(8): a(f'v_lshl_or_b32 v{24+i}, v{X+2*i+1}, 16, v{X+2*i}')
    a(f'''s_mov_b32 s{sC}, 1.0
L_jm:
v_mfma_f32_16x16x32_bf16 v[{X}:{X+3}], v[8:11], v[24:27], 0
v_mfma_f32_16x16x32_bf16 v[{X+4}:{X+7}], v[16:19], v[24:27], 0
v_mfma_f32_16x16x32_bf16 v[{X}:{X+3}], v[12:15], v[28:31], v[{X}:{X+3}]
v_mfma_f32_16x16x32_bf16 v[{X+4}:{X+7}], v[20:23], v[28:31], v[{X+4}:{X+7}]''')
    for i in range(8): a(f'v_mul_f32 v{X+i}, s{sC}, v{X+i}')
    for i in range(4): a(f'v_cvt_pk_bf16_f32 v{X+8+i}, v{X+2*i}, v{X+2*i+1}')
    a(f'''buffer_store_dwordx4 v[{X+8}:{X+11}], v5, s[{sWS}:{sWS+3}], s{sD} offen sc1
s_branch L_jend
L_jr:
s_cmp_ge_u32 s{sW}, 2
s_cbranch_scc1 L_jend''')
    srd(sT1,20,128)
    a(f'''v_lshlrev_b32 v2, 4, v1
s_lshl_b32 s{sA}, s{sW}, 6
buffer_load_dwordx4 v[8:11], v2, s[{sT1}:{sT1+3}], s{sA} offen
v_lshlrev_b32 v3, 1, v{LANE}
buffer_load_ushort v4, v3, s[{sT1}:{sT1+3}], 0 offen
s_mov_b32 s{sM}, 0x11111111
s_mov_b32 s{sM+1}, 0x11111111
s_mov_b32 s{sM2}, 0x22222222
s_mov_b32 s{sM2+1}, 0x22222222
v_mov_b32 v6, 0x3c803c80
v_cndmask_b32 v6, 0, v6, s[{sM}:{sM+1}]
s_add_u32 s{sD}, s{sD}, 16384
s_waitcnt vmcnt(0)''')
    for i in range(4): a(f'v_cndmask_b32 v{X+8+i}, v6, v{8+i}, s[{sM2}:{sM2+1}]')
    a(f'''buffer_store_dwordx4 v[{X+8}:{X+11}], v5, s[{sWS}:{sWS+3}], s{sD} offen sc1
v_lshlrev_b32 v4, 16, v4''')
    for m in ('quad_perm:[1,0,3,2]','quad_perm:[2,3,0,1]','row_half_mirror','row_mirror'):
        a(f'v_add_f32_dpp v4, v4, v4 {m} row_mask:0xf bank_mask:0xf')
    allq(4,6)
    a(f'''s_mov_b32 s{sA}, {WGT+18432}
v_lshlrev_b32 v3, 2, v{LANE}
v_mov_b32 v{X+12}, v4
buffer_store_dword v{X+12}, v3, s[{sWS}:{sWS+3}], s{sA} offen sc1
L_jend:''')
    st(5)
    hopinit()
    joinB('h')
    a(f'''s_cmp_lg_u32 s{sK}, 4
s_cbranch_scc1 L_hD
s_lshl_b32 s{sA}, s{sW}, 10
s_add_u32 m0, s{sA}, {L_W}
s_add_u32 s{sA}, s{sA}, {WGT}
v_lshlrev_b32 v16, 4, v{LANE}
buffer_load_dwordx4 v16, s[{sWS}:{sWS+3}], s{sA} offen sc1 lds
v_mov_b32 v17, {WGT+18432}
buffer_load_dword v{TID}, v17, s[{sWS}:{sWS+3}], 0 offen sc1
s_cmp_ge_u32 s{sW}, 4
s_cbranch_scc1 L_hD
s_add_u32 m0, m0, 16384
s_cmp_ge_u32 s{sW}, 2
s_cbranch_scc1 L_hE
s_add_u32 s{sA}, s{sA}, 16384
buffer_load_dwordx4 v16, s[{sWS}:{sWS+3}], s{sA} offen sc1 lds
s_branch L_hD
L_hE:
s_getpc_b64 s[94:95]
L_pc2:
s_lshl_b32 s{sA}, s{sW}, 10
s_add_u32 s{sA}, s{sA}, lane_table-L_pc2-2048
v_add_u32 v16, s{sA}, v16
global_load_lds_dwordx4 v16, s[94:95]
L_hD:
s_barrier
s_branch L_hop''')
    a('L_final:\ns_setprio 0')
    if stamp:
        a(f'''s_lshl_b32 s{sA}, s2, 4
s_add_u32 s{sA}, s{sA}, s{sW}
s_lshl_b32 s{sA}, s{sA}, 8
s_add_u32 s88, s{sA}, {STAMP}
v_lshlrev_b32 v16, 2, v{LANE}
buffer_store_dword v{TS}, v16, s[{sWS}:{sWS+3}], s88 offen''')
    def fst(i):
        if stamp: a(f'''s_memrealtime s[80:81]
s_waitcnt lgkmcnt(0)
s_mov_b32 s{82+i}, s80''')
    if stamp:
        fst(0)
        a('s_memtime s[86:87]\ns_waitcnt lgkmcnt(0)')
    srd(sT1,22,N*128)
    sSW=12; sEPS=13; sG=14
    a(f'''v_readfirstlane_b32 s{sSW}, v{TID}
s_mov_b32 s{sM2}, 0x80808080
s_mov_b32 s{sM2+1}, 0x80808080
s_mov_b32 vcc_lo, 0x00ff00ff
s_mov_b32 vcc_hi, 0xff00ff00
s_mov_b32 s{sM}, 0x33333333
s_mov_b32 s{sM+1}, 0x33333333
s_mov_b32 s4, 0x55555555
s_mov_b32 s5, 0x55555555
s_mov_b32 s{sEPS}, {fb(1e-5):#x}
s_lshl_b32 s{sB}, s{sW}, 1
s_mul_i32 s{sD}, s{sJ}, {DE}
s_add_u32 s{sD}, s{sD}, s{sB}
s_lshl_b32 s{sD}, s{sD}, 7
s_mul_i32 s{sC}, s{sJ}, {DL}
s_add_u32 s{sC}, s{sC}, s{sB}
s_add_u32 s{sC}, s{sC}, {BB}
s_lshl_b32 s{sC}, s{sC}, 7
s_sub_u32 s{sA}, s{sRB}, {L_W//2}''')
    for g in range(4):
        a(f'''s_mov_b32 s{sG+2*g}, {0x000f000f<<(4*g):#x}
s_mov_b32 s{sG+2*g+1}, {0x000f000f<<(4*g):#x}''')
    a(f'''s_cmp_ge_u32 s{sW}, 2
s_cbranch_scc1 L_fin6''')
    LX=4608; LWB=16
    tab=[[],[]]
    for l in range(64):
        q=l>>4; n=l&15; valid=(q>>1)==(n>>3); diag=q==(n>>2); X_=0xffff
        sg=((q>>1)*8+(n&7)+(0 if valid else 16))*2
        ow=(q*256+((n*16)^((q&1)*128)))//4; c=l&3; ot=((c>>1)*256+(((l>>2)*16)^((c>>1)*128))+(c&1)*8)//4
        gw=(LX+n*(16 if gmode else 8))//4 if diag else X_
        pra=(LX+l*8)//4 if valid else X_; prb=(LX+(l^8)*8)//4 if valid else X_
        iv=(0x3f800000 if n&1 else 0x3f80) if diag else 0
        tab[0]+=[sg|ow<<16, ot|gw<<16, pra|prb<<16, iv]
        k2=(LX+q*384+n*8)//4; k3=k2+((n>>1)&1)*32+(n&1); k2+=64
        if gmode: k2=(LX+q*384+n*16)//4; k3=k2+2+(n&1 if gmode==2 else 0)
        ww=((l>>2)*16+(q&1)*8+(l&3)*2)//2
        p=n>>1; wr=(LWB+(p*4+q)*16)//4 if (n&1)==(q>>1) else X_
        sta=n*16; swa=(n*144+q*8)//4 if n<14 else X_; sra=((l>>3)*144+(l&7)*16)//4
        oad=q*256+n
        tab[1]+=[k2|k3<<16, ww|wr<<16, sta|swa<<16, sra|oad<<16]
    def final(NP):
        it=[]
        def e(x):
            if isinstance(x,list): it.append(x); return
            for ln in x.split('\n'):
                ln=ln.split(';')[0].strip()
                if ln: it.append(ln)
        WA=69; SG=TG; SI=TG+1; PW=68
        tup=lambda r,n=4: f'v[{r}:{r+n-1}]'
        mad=lambda d,r,h,sc=4,b=sRB: e(f'v_mad_u32_u16 v{d}, v{r}, {sc}, s{b} op_sel:[{h},0,0,0]')
        e(f'''v_lshlrev_b32 v{WA}, 4, v{LANE}
v_add_u32 v{WA}, {L_W}, v{WA}
v_lshl_add_u32 v{PW}, v{LANE}, 3, s{sRB}
ds_read_b32 v{SG}, v{WA} offset:{L_TB-L_W}''')
        mad(SG,SG,0)
        for f in (6,7): e(f'ds_read_b128 {tup(4*f)}, v{WA} offset:{1024*f}')
        stats(e,NP,7)
        for f in range(6): e(f'ds_read_b128 {tup(4*f)}, v{WA} offset:{1024*f}')
        UA=[32,36,40,64][:nua]; UB=44; SAa=52; SBb=56; Y=60
        cnt=[0]
        def scores(p,S):
            for t in (3,0,1,2):
                u=UA[cnt[0]%len(UA)]; cnt[0]+=1
                e(f'''v_mfma_f32_16x16x32_bf16 {tup(u)}, {tup(8*t)}, {tup(T(p))}, 0
v_mfma_f32_16x16x32_bf16 {tup(u)}, {tup(8*t+4)}, {tup(T(p)+4)}, {tup(u)}
v_cvt_pk_bf16_f32 v{UB+2*t}, v{u}, v{u+1}
v_cvt_pk_bf16_f32 v{UB+2*t+1}, v{u+2}, v{u+3}''')
            e(f'''v_mfma_f32_16x16x32_bf16 {tup(S)}, {tup(T(p))}, {tup(UB)}, 0
v_mfma_f32_16x16x32_bf16 {tup(S)}, {tup(T(p)+4)}, {tup(UB+4)}, {tup(S)}''')
        STA_=44
        for g in range((NP+1)//2):
            two=2*g+1<NP
            if two: scores(2*g+1,SBb)
            scores(2*g,SAa)
            e(f'ds_read_b32 v{SI}, v{SG} offset:{L_ST+256*g}')
            S=SAa
            if two:
                for r in range(4): e(f'v_cndmask_b32_dpp v{S+r}, v{SBb+r}, v{S+r}, vcc row_ror:8 row_mask:0xf bank_mask:0xf')
            e(f'''v_max3_f32 v{Y}, v{S}, v{S+1}, v{S+2}
v_max_f32 v{Y}, v{Y}, v{S+3}
v_mov_b32 v{Y+1}, v{Y}
v_permlane16_swap_b32 v{Y+1}, v{Y}
v_max_f32 v{Y}, v{Y}, v{Y+1}''')
            for r in range(4): e(f'v_sub_f32 v{S+r}, v{S+r}, v{Y}')
            for r in range(4): e(f'v_exp_f32 v{S+r}, v{S+r}')
            e(f'''v_add_f32 v{Y}, v{S}, v{S+1}
v_add_f32 v{Y+1}, v{S+2}, v{S+3}
v_add_f32 v{Y}, v{Y}, v{Y+1}
v_mov_b32 v{Y+1}, v{Y}
v_permlane16_swap_b32 v{Y+1}, v{Y}
v_add_f32 v{Y}, v{Y}, v{Y+1}
v_mul_f32 v{Y}, v{Y}, v{SI}
v_rcp_f32 v{Y}, v{Y}''')
            for r in range(4): e(f'v_mul_f32 v{S+r}, v{S+r}, v{Y}')
            e(f'''v_cvt_pk_bf16_f32 v{Y}, v{S}, v{S+1}
v_cvt_pk_bf16_f32 v{Y+1}, v{S+2}, v{S+3}''')
            if g==(NP+1)//2-1:
                for t in (3,0,1,2):
                    for s in range(2): e(f'ds_read_b128 {tup(8*t+4*s)}, v{WA} offset:{8192+1024*(2*t+s)}')
                e(f'''ds_read_b128 {tup(SBb)}, v{WA} offset:{L_TB-L_W}
ds_read_b128 {tup(STA_)}, v{WA} offset:16384
ds_read_b128 {tup(STA_+4)}, v{WA} offset:17408''')
            e(f'ds_write_b64 v{PW}, v[{Y}:{Y+1}] offset:{LX+768*g}')
        ZT=52; OW=60; OT=61; GW=62; PRA=63; PRB=PW
        mad(OW,SBb,1); mad(OT,SBb+1,0); mad(GW,SBb+1,1); mad(PRA,SBb+2,0); mad(PRB,SBb+2,1)
        e(f'''v_cndmask_b32 v{ZT+2}, 0, v{SBb+3}, s[{sM}:{sM+1}]
v_cndmask_b32 v{ZT+3}, v{SBb+3}, 0, s[{sM}:{sM+1}]
v_mov_b64 v[{ZT+6}:{ZT+7}], v[{ZT+2}:{ZT+3}]''')
        def o2reg(p,t):
            return (TG+16*(p//2)+4*t+2*(p&1)) if p<6 else (TG+48+2*t)
        free=[32,36,40,64]
        e(f'ds_read_b64 v[{T(0)-2}:{T(0)-1}], v{PRA}')
        gadj=0
        for p in range(NP):
            tp=T(p); ob=tp-2
            z=[]
            for t in range(4):
                u=free.pop(0); z.append(u)
                e(f'''v_mfma_f32_16x16x32_bf16 {tup(u)}, {tup(tp)}, {tup(8*t)}, 0
v_mfma_f32_16x16x32_bf16 {tup(u)}, {tup(tp+4)}, {tup(8*t+4)}, {tup(u)}''')
            for t in range(4):
                zt=ZT+4*(t&1); b=tp-2+2*t; u=z[t]
                if t: e(f'v_mov_b64 v[{b}:{b+1}], v[{b-2}:{b-1}]')
                e(f'''v_cvt_pk_bf16_f32 v{zt}, v{u}, v{u+1}
v_cvt_pk_bf16_f32 v{zt+1}, v{u+2}, v{u+3}
v_mfma_f32_16x16x32_bf16 {tup(u)}, {tup(zt)}, {tup(b)}, 0''')
            if p+1<NP: e(f'ds_read_b64 v[{tp+6}:{tp+7}], v{PRB if (p+1)&1 else PRA} offset:{768*((p+1)//2)}')
            for t in range(4):
                e(f'''v_cvt_pk_bf16_f32 v{ob+2*t}, v{z[t]}, v{z[t]+1}
v_cvt_pk_bf16_f32 v{ob+2*t+1}, v{z[t]+2}, v{z[t]+3}''')
            img=2048*(p&1)
            g_,a0=(z[2],z[3]) if gsel else (z[0],z[1])
            free=[z[0],z[1],z[2],z[3]] if gsel else [z[2],z[3],z[0],z[1]]
            e(f'''ds_write_b128 v{OW}, {tup(ob)} offset:{img}
ds_write_b128 v{OW}, {tup(ob+4)} offset:{img+1024}
v_mfma_f32_16x16x32_bf16 {tup(g_)}, {tup(ob)}, {tup(ob)}, 0
v_mfma_f32_16x16x32_bf16 {tup(g_)}, {tup(ob+4)}, {tup(ob+4)}, {tup(g_)}
v_mfma_f32_16x16x32_bf16 {tup(a0)}, {tup(STA_)}, {tup(ob)}, 0
v_mfma_f32_16x16x32_bf16 {tup(a0)}, {tup(STA_+4)}, {tup(ob+4)}, {tup(a0)}''')
            if p&1 or p==NP-1:
                for pp in ((p-1,p) if p&1 else (p,)):
                    for t in range(4):
                        r=o2reg(pp,t)
                        e(f'ds_read_b64_tr_b16 v[{r}:{r+1}], v{OT} offset:{2048*(pp&1)+512*t}')
            if gmode==0:
                if p==5:
                    e(f'v_add_u32 v{GW}, {384*5}, v{GW}'); gadj=5
                o=48*(p-gadj)
                e(f'''ds_write2_b64 v{GW}, v[{g_}:{g_+1}], v[{g_+2}:{g_+3}] offset0:{o} offset1:{o+16}
ds_write_b64 v{GW}, v[{a0}:{a0+1}] offset:{8*o+256}''')
            elif gmode==1:
                e(f'''v_cndmask_b32 v{g_}, v{g_+2}, v{g_}, s[{sM}:{sM+1}]
v_cndmask_b32 v{g_+1}, v{g_+3}, v{g_+1}, s[{sM}:{sM+1}]
v_cndmask_b32 v{a0+2}, v{g_+1}, v{g_}, s[4:5]
ds_write_b96 v{GW}, v[{a0}:{a0+2}] offset:{384*p}''')
            else:
                e(f'''v_cndmask_b32 v{a0+2}, v{g_+2}, v{g_}, s[{sM}:{sM+1}]
v_cndmask_b32 v{a0+3}, v{g_+3}, v{g_+1}, s[{sM}:{sM+1}]
ds_write_b128 v{GW}, {tup(a0)} offset:{384*p}''')
        F=0; K=16; OAD=K+8; TB=28; ZR=44
        K2,K3,WW,WR,CR,IW,IR,P8=range(K,K+8)
        e(f'''ds_read_b128 {tup(TB)}, v{WA} offset:{L_TB-L_W+1024}
v_mov_b64 v[{ZR}:{ZR+1}], 0
v_lshrrev_b32 v{P8}, 1, v{WA}
v_add_u32 v{P8}, s{sA}, v{P8}
v_mov_b32 v{OAD+2}, {OOB}
ds_write_b64 v{P8}, v[{ZR}:{ZR+1}] offset:{LWB}''')
        mad(K2,TB,0); mad(K3,TB,1); mad(WW,TB+1,0,2); mad(WR,TB+1,1); mad(CR,TB+2,0); mad(IW,TB+2,1); mad(IR,TB+3,0)
        mad(OAD,TB+3,1,16,sD); mad(OAD+1,TB+3,1,16,sC)
        for i,np_ in enumerate((nE//2,NP-nE//2)):
            if np_<4: e(f'v_mov_b32_dpp v{OAD+i}, v{OAD+2} quad_perm:[0,1,2,3] row_mask:{(0xf<<np_)&0xf:#x} bank_mask:0xf')
        Rr=lambda h:(0,8)[h]
        red=lambda op,x,y: '\n'.join(f'{op}_dpp v{{{x}}}, v{{{y if i==0 else x}}}, v{{{y if i==0 else x}}} {m} row_mask:0xf bank_mask:0xf' for i,m in enumerate(('quad_perm:[1,0,3,2]','quad_perm:[2,3,0,1]','row_half_mirror')))
        for h in range(2):
            r=Rr(h)
            e(f'''ds_read_b32 v{r}, v{K3} offset:{1536*h}
ds_read_b64 v[{r+2}:{r+3}], v{K2} offset:{1536*h}
ds_read_b64 v[{r+4}:{r+5}], v{P8} offset:{L_ST+512*h}''')
        for h in range(2):
            r=Rr(h)
            e(f'''v_mul_f32 v{{q}}, {fb(1/64):#x}, v{{q}}
v_fma_f32 v{{q}}, -v{{s}}, v{{s}}, v{{q}}
v_max_f32 v{{q}}, 0, v{{q}}
v_mul_f32 v{{a}}, v{{g}}, v{{g}}
v_fma_f32 v{{q}}, v{{a}}, v{{q}}, s{sEPS}
v_rsq_f32 v{{q}}, v{{q}}
v_fma_f32 v{{d}}, -v{{s}}, s{sSW}, v{{d}}
v_mul_f32 v{{a}}, {fb(LOG2E):#x}, v{{g}}
v_mul_f32 v{{d}}, v{{d}}, v{{a}}
v_mul_f32 v{{d}}, v{{d}}, v{{q}}
{red('v_max_f32','a','d')}
v_sub_f32 v{{d}}, v{{d}}, v{{a}}
v_exp_f32 v{{d}}, v{{d}}
v_mul_f32 v{{m}}, v{{m}}, v{{d}}
{red('v_add_f32','a','d')}
{red('v_add_f32','m','m')}
v_rcp_f32 v{{a}}, v{{a}}
v_mul_f32 v{{d}}, v{{d}}, v{{g}}
v_mul_f32 v{{d}}, v{{d}}, v{{a}}
v_mul_f32 v{{m}}, v{{m}}, v{{a}}
v_cvt_pk_bf16_f32 v{{d}}, v{{d}}, v{{d}}'''.format(q=r,a=r+1,s=r+2,d=r+3,g=r+4,m=r+5))
        for h in range(2):
            r=Rr(h)
            e(f'''ds_write_b16 v{WW}, v{r+3} offset:{LWB+256*h}
ds_write_b32 v{P8}, v{r+5} offset:{L_ST+512*h}''')
        WT=32; CI=28; WG=48
        e(f'ds_read_b32 v{CI}, v{CR} offset:{L_ST}')
        for g in range((NP+1)//2):
            e(f'''v_cndmask_b32 v{WG+g}, v{OAD+2}, v{WR}, s[{sG+2*g}:{sG+2*g+1}]
ds_read_b128 {tup(WT+4*g)}, v{WG+g}''')
        e(f'''v_mov_b32 v{CI+1}, v{CI}
v_mov_b64 v[{CI+2}:{CI+3}], v[{CI}:{CI+1}]''')
        for g in range((NP+1)//2):
            two=2*g+1<NP
            for t in range(4):
                c=tup(CI) if g==0 else tup(F+4*t)
                r=o2reg(2*g,t)
                if two: e(f'v_mfma_f32_16x16x32_bf16 {tup(F+4*t)}, {tup(r)}, {tup(WT+4*g)}, {c}')
                else: e(f'v_mfma_f32_16x16x16_bf16 {tup(F+4*t)}, {tup(r,2)}, {tup(WT+4*g,2)}, {c}')
        for t in range(4):
            e(f'''v_cvt_pk_bf16_f32 v{52+2*t}, v{F+4*t}, v{F+4*t+1}
v_cvt_pk_bf16_f32 v{53+2*t}, v{F+4*t+2}, v{F+4*t+3}''')
            if t&1: e(f'ds_write2_b64 v{IW}, v[{50+2*t}:{51+2*t}], v[{52+2*t}:{53+2*t}] offset0:{4*t-4} offset1:{4*t}')
        e(f'''ds_read_b128 v[32:35], v{IR}
ds_read_b128 v[36:39], v{IR} offset:{144*nE}
buffer_store_dwordx4 v[32:35], v{OAD}, s[{sT1}:{sT1+3}], 0 offen {oaux}
buffer_store_dwordx4 v[36:39], v{OAD+1}, s[{sT1}:{sT1+3}], 0 offen {oaux}''')
        if fskip:
            import re
            k0=next(i for i,x in enumerate(it) if isinstance(x,str) and x.startswith('v_mfma'))
            k1=next(i for i,x in enumerate(it) if isinstance(x,str) and x.startswith('ds_read_b128 v[28:31], v69 offset:19456'))
            it=it[:k0]+[x for x in it[k0:k1] if not re.match(fskip,x)]+it[k1:]
        out=schedule(it,ldslat=ldslat,window=window,verbose=True)
        n=len(out); nxt=0
        for i,ln in enumerate(out):
            if nxt<len(fprio) and i>=n*nxt//len(fprio):
                a(f's_setprio {fprio[nxt]}'); nxt+=1
            a(ln)
    final(7)
    a('s_branch L_fend\nL_fin6:')
    final(6)
    a('L_fend:')
    if stamp:
        fst(2)
        a('s_memtime s[80:81]\ns_waitcnt lgkmcnt(0)\ns_sub_u32 s86, s80, s86')
        a('s_waitcnt vmcnt(0)')
        fst(3)
        a(f'''v_mov_b32 v0, s82
v_mov_b32 v1, s84
v_mov_b32 v2, s85
v_mov_b32 v3, s86
v_mov_b32 v4, {60*4}
s_mov_b64 exec, 1
buffer_store_dwordx4 v[0:3], v4, s[{sWS}:{sWS+3}], s88 offen''')
    if enc:
        a(f'''s_cmp_lg_u32 s2, {encwg}
s_cbranch_scc1 L_end
s_cmp_lg_u32 s{sW}, 15
s_cbranch_scc1 L_end
s_waitcnt vmcnt(0)
s_memrealtime s[80:81]
s_waitcnt lgkmcnt(0)
{'s_mov_b32 s84, s80' if enc[1] is None else ''}
s_sub_u32 s82, s84, s82
s_mul_i32 s82, s82, {enc[2]}
s_min_u32 s82, s82, 100000
L_encs:
s_memrealtime s[84:85]
s_waitcnt lgkmcnt(0)
s_sub_u32 s84, s84, s80
s_cmp_lt_u32 s84, s82
s_cbranch_scc1 L_encs''')
    a('L_end:\ns_endpgm')
    body=a.pad(verbose=True)
    ref=open('standalone__hybrid_graph_tf_nagphormer__graph.s.ref').read().split('\n')
    head=[l for l in ref if l.startswith(';') and '@launch' not in l]
    out='\n'.join(head)+f'''
; @launch grid=(256,1,1) block=(1024,1,1) lds={LDS_BYTES}
.amdgcn_target "amdgcn-amd-amdhsa--gfx950"
.text
.globl {KNAME}
.p2align 8
.type {KNAME},@function
{KNAME}:
'''+body+'.p2align 4\n.type lane_table,@object\nlane_table:\n'+''.join('  .long '+', '.join(f'{x:#x}' for x in t[i:i+4])+'\n' for t in tab for i in range(0,256,4))+'.size lane_table, 2048\n'+f'''.section .rodata,"a"
.p2align 6
.amdhsa_kernel {KNAME}
  .amdhsa_next_free_vgpr 128
  .amdhsa_next_free_sgpr 100
  .amdhsa_accum_offset 128
  .amdhsa_group_segment_fixed_size 0
  .amdhsa_kernarg_size 96
  .amdhsa_user_sgpr_count 2
  .amdhsa_user_sgpr_kernarg_segment_ptr 1
  .amdhsa_system_sgpr_workgroup_id_x 1
  .amdhsa_float_denorm_mode_32 3
.end_amdhsa_kernel
'''
    return out
if __name__=='__main__':
    kw=eval('dict('+(sys.argv[2] if len(sys.argv)>2 else '')+')')
    open(sys.argv[1] if len(sys.argv)>1 else 'standalone__hybrid_graph_tf_nagphormer__graph.s','w').write(gen(**kw))
```

```python
import sys, struct
sys.path.insert(0,'gen')
from asmlib import Asm
from sched import schedule
N=50000; E=800000; NPW=196; CH=3125
KNAME='standalone__hybrid_graph_tf_nagphormer__graph_kernel'
TSTR=16<<20
MISC=112<<20
CHSTR=12544
OFFS=4<<20
SYNC=5<<20
STAMP=6<<20
WGT=(5<<20)+(512<<10)
PROBE=14<<20
WSTR=8960
L_RING=0; L_AL=6144; CAP=352; L_CL=L_AL+CAP*4; L_ST=7936
L_W=16*WSTR
L_CNT1=L_W+13312
L_SH=L_W+16384
L_CNT2=L_SH; L_SA=L_SH; L_TB=L_SH+2048; L_MISC=7904
LDS_BYTES=L_SH+4096
assert LDS_BYTES==163840 and L_CL+CAP<=L_ST and L_ST+1024<=WSTR
fb=lambda x: struct.unpack('<I',struct.pack('<f',x))[0]
LOG2E=1.4426950408889634
OOB=0x80000000
TREC=13<<20
PADE=0x00ffff80

def gen(R=3, NBAR=6, stamp=False, force_slow=False, spinmax=1<<18, reps=1, sfirst=False, prio=0, skip='', dbg=False, enc=None, nopf=False, oaux='sc1', encwg=100, ldslat=96, window=10**9, fprio=(), fskip='', sord='r', rep=1, cloc=0, psleep=1, g0p=(1,2,4,4), early=0, pfm=2, ev1=2, nE=6, defer=True, nogate=False, ppi=2, fin=2, fr=(14,24,44), gi=1, nua=4, gsel=1, gmode=2, sflag=1, ssplit=32, w15l=1, npf=0, lp=0, pp1=1, sf0=1, pf0=0, pfp=False, pfk=99):
    a=Asm()
    assert R==2
    DE=16*nE; DL=NPW-DE; BB=256*DE
    ACC=0; AOP=16; B0=24; B1=25; COLW=26; TMP=27; EN=28; DA=30; TRA=32; LO=36; AP=38; CP=39; NOTN=40
    DIS=41; SA=42; X=44; TID=62; S1=63; TRD=64; STA=65; SWA=66; SRA=67; LANE=68; TS=69
    TG=70; T0=72; PA=70; PV=71
    T=lambda p:T0+8*p
    sWG=2; sW=3; sTIN=28; sTOUT=32; sWS=36; sT1=40; sT2=44
    sU=48; sREM=49; sBA=50; sBD=51; sRB=52; sK=53; sSLOW=54; sNB=55; sA=56; sB=57; sC=58; sD=59
    sK1=60; sK2=61; sSPIN=62; sEV=63; sM=64
    sP0=66; sP1=68; sPM=70; sSEG=71; sOFF=72; sCNT=73; sSTART=74; sBK=75; sSI=76; sXC=77; sDB=96; sPA=86; sPM2=87; sTN=6; sK3=7; sJ=89; sUE=5; sSB=4; sMY=66; sINC=67; sI=8; sTH=9; sPOL=10; sTM=11; LT=4096; sM2=78
    nst=[0]
    def st(i):
        if enc:
            for j,pt in enumerate(enc[:2]):
                if pt is not None and pt>=0 and i<8 and pt%8==i:
                    nst[0]+=1
                    a(f'''s_cmp_lg_u32 s{sSI}, {pt-i}
s_cbranch_scc1 L_enc{nst[0]}
s_memrealtime s[{82+2*j}:{83+2*j}]
s_waitcnt lgkmcnt(0)
L_enc{nst[0]}:''')
        if stamp and (stamp!='lite' or i==0):
            a(f'''s_memrealtime s[80:81]
s_waitcnt lgkmcnt(0)
s_add_u32 m0, s{sSI}, {i}
s_nop 0
v_writelane_b32 v{TS}, s80, m0''')
    def sx(i): st(8*i+6)
    def srd(d,lo,nbytes):
        a(f'''s_mov_b32 s{d}, s{lo}
s_mov_b32 s{d+1}, s{lo+1}
s_mov_b32 s{d+2}, {nbytes}
s_mov_b32 s{d+3}, 0x20000''')
    uid=[0]
    def L(x):
        uid[0]+=1; return f'L_{x}_{uid[0]}'
    def spin(lab):
        a(f'''{'s_sleep %d'%psleep if psleep else ''}
s_add_u32 s{sSPIN}, s{sSPIN}, 1
s_cmp_lt_u32 s{sSPIN}, {spinmax}
s_cbranch_scc1 {lab}
s_endpgm''')
    G0=T0; PE=T0+8; PB=PE+8; PK=PB+8; PQ=PK+8; PC=PQ+16
    if enc and enc[0]==-1: a('s_memrealtime s[82:83]')
    if stamp: a('s_memrealtime s[84:85]')
    ids=f'''s_and_b32 s{sJ}, s2, 7
s_lshl_b32 s{sJ}, s{sJ}, 5
s_lshr_b32 s{sB}, s2, 3
s_add_u32 s{sJ}, s{sJ}, s{sB}
s_mov_b32 s{sSI}, 0
s_mov_b32 s{sSPIN}, 0
v_mov_b32 v{TS}, 0
s_mul_i32 s{sRB}, s{sW}, {WSTR}
v_lshrrev_b32 v28, 4, v{LANE}
v_bfe_u32 v29, v{LANE}, 3, 1
v_lshl_add_u32 v28, v28, 5, v29
s_lshl_b32 s{sB}, s{sW}, 1
v_add_u32 v28, s{sB}, v28
v_cmp_gt_u32 vcc, {DL}, v28
s_mul_i32 s{sD}, s{sJ}, {DL}
s_add_u32 s{sD}, s{sD}, {BB}
v_add_u32 v29, s{sD}, v28
v_mov_b32 v19, 0x01000000
v_cndmask_b32 v29, v19, v29, vcc
v_cmp_gt_u32 vcc, {DE}, v28
s_mul_i32 s{sD}, s{sJ}, {DE}
v_add_u32 v28, s{sD}, v28
v_cndmask_b32 v28, v19, v28, vcc
v_and_b32 v19, 0x70, v2
v_lshl_add_u32 v20, v28, 7, v19
v_lshl_add_u32 v21, v29, 7, v19
v_lshlrev_b32 v24, 1, v28
v_lshlrev_b32 v25, 1, v29'''
    a(f'''s_cmp_ge_u32 s2, 256
s_cbranch_scc1 L_end
s_load_dwordx16 s[4:19], s[0:1], 0
s_load_dwordx8 s[20:27], s[0:1], 64
v_lshrrev_b32 v1, 6, v0
v_and_b32 v{LANE}, 63, v0
v_readfirstlane_b32 s{sW}, v1
v_lshlrev_b32 v2, 4, v0
s_mul_i32 s{sA}, s2, {CH*4}
s_mov_b32 s{sT1+2}, {E*4}
s_mov_b32 s{sT1+3}, 0x20000
s_mov_b32 s{sT2+2}, {E*4}
s_mov_b32 s{sT2+3}, 0x20000
s_cmp_ge_u32 s{sW}, 13
s_cbranch_scc1 L_pf''')
    if not early: a(ids)
    a(f'''s_waitcnt lgkmcnt(0)
s_mov_b64 s[{sT2}:{sT2+1}], s[8:9]
s_mov_b64 s[{sT1}:{sT1+1}], s[6:7]
buffer_load_dwordx4 v[4:7], v2, s[{sT2}:{sT2+3}], s{sA} offen
buffer_load_dwordx4 v[8:11], v2, s[{sT1}:{sT1+3}], s{sA} offen
s_branch L_nopf
L_pf:''')
    if not early: a(ids)
    def codepf():
        a(f'''s_cmp_lg_u32 s{sW}, {13 if not nopf else 99}
s_cbranch_scc1 L_pfe
s_getpc_b64 s[94:95]
L_pc1:
v_lshlrev_b32 v8, 7, v{LANE}''')
        if pfm<2:
            a('''global_load_dword v4, v8, s[94:95]
v_add_u32 v8, 8192, v8
global_load_dword v5, v8, s[94:95]
v_add_u32 v8, 8192, v8
v_min_u32 v6, L_end-L_pc1, v8
global_load_dword v6, v6, s[94:95]
v_add_u32 v8, 8192, v8
v_min_u32 v8, L_end-L_pc1, v8
global_load_dword v7, v8, s[94:95]''')
        else:
            a(f'''s_lshr_b32 s{sC}, s2, 3
s_lshl_b32 s{sC}, s{sC}, 7
v_lshl_add_u32 v8, v8, 5, s{sC}
v_min_u32 v8, L_end-L_pc1, v8
s_mov_b64 exec, 0xff
global_load_dword v4, v8, s[94:95]
s_mov_b64 exec, -1''')
        a('L_pfe:')
    if pfm%2==0: codepf()
    a(f'''L_nopf:
v_mov_b32 v16, 0
v_lshlrev_b32 v3, 2, v0
s_cmp_ge_u32 s{sW}, 4
s_cbranch_scc1 L_noedge
v_add_u32 v22, {L_CNT1}, v3
ds_write_b32 v22, v16
ds_write_b32 v22, v16 offset:{L_CNT2-L_CNT1}
ds_write_b32 v16, v16 offset:{L_MISC}
ds_write_b32 v16, v16 offset:{L_MISC+4}
ds_write_b32 v16, v16 offset:{L_MISC+8}
L_noedge:''')
    if early: a(ids)
    a(f'''s_waitcnt lgkmcnt(0)
s_add_u32 s26, s26, 0x1fffff
s_addc_u32 s27, s27, 0
s_and_b32 s26, s26, 0xffe00000
s_add_u32 s{sWS}, s26, {MISC}
s_addc_u32 s{sWS+1}, s27, 0
s_mov_b32 s{sWS+2}, {8<<20}
s_mov_b32 s{sWS+3}, 0x20000''')
    srd(sDB,24,256); srd(sT1,4,N*128); srd(sT2,10,N*2)
    a(f'''s_cmp_lg_u32 s{sW}, 15
s_cbranch_scc1 L_b1
buffer_load_dword v4, v16, s[{sDB}:{sDB+3}], 0 offen offset:128 sc1
s_cmp_ge_u32 s2, 24
s_cbranch_scc1 L_b1
v_lshlrev_b32 v6, 4, v{LANE}
v_mov_b32 v8, 0
v_mov_b32 v9, 0
v_mov_b32 v10, 0
v_mov_b32 v11, 0
s_lshl_b32 s{sA}, s2, 10
s_cmp_lt_u32 s2, 8
s_cbranch_scc1 L_z8
s_add_u32 s{sA}, s{sA}, {SYNC+32768-8192}
buffer_store_dwordx4 v[8:11], v6, s[{sWS}:{sWS+3}], s{sA} offen sc1
s_branch L_b1
L_z8:
s_add_u32 s{sA}, s{sA}, {SYNC}
buffer_store_dwordx4 v[8:11], v6, s[{sWS}:{sWS+3}], s{sA} offen sc1
s_add_u32 s{sA}, s{sA}, 8192
buffer_store_dwordx4 v[8:11], v6, s[{sWS}:{sWS+3}], s{sA} offen sc1
s_add_u32 s{sA}, s{sA}, 8192
buffer_store_dwordx4 v[8:11], v6, s[{sWS}:{sWS+3}], s{sA} offen sc1
L_b1:''')
    if stamp: a(f'v_writelane_b32 v{TS}, s84, 0')
    if enc: st(0)
    a('s_waitcnt lgkmcnt(0)\ns_barrier')
    if pfm%2==1: codepf()
    a(f'''s_cmp_lg_u32 s{sW}, 15
s_cbranch_scc1 L_xl
s_cmp_lg_u32 s2, 0
s_cbranch_scc1 L_xl
s_waitcnt vmcnt(0)
v_mov_b32 v6, 1
s_mov_b64 exec, 1
buffer_store_dword v6, v16, s[{sDB}:{sDB+3}], 0 offen sc1
s_mov_b64 exec, -1
L_xl:
buffer_load_dwordx4 v[{X}:{X+3}], v20, s[{sT1}:{sT1+3}], 0 offen
buffer_load_dwordx4 v[{X+4}:{X+7}], v21, s[{sT1}:{sT1+3}], 0 offen
buffer_load_ushort v26, v24, s[{sT2}:{sT2+3}], 0 offen
buffer_load_ushort v27, v25, s[{sT2}:{sT2+3}], 0 offen
v_mov_b32 v{TID}, v0
s_add_u32 s90, s26, {PROBE}
s_addc_u32 s91, s27, 0
s_add_u32 s92, s26, {MISC+SYNC}
s_addc_u32 s93, s27, 0
s_mov_b32 s{sEV}, 0
s_mov_b32 s{sK}, 0
s_getreg_b32 s{sXC}, hwreg(HW_REG_XCC_ID, 0, 3)
s_lshl_b32 s{sXC}, s{sXC}, 7
s_add_u32 s{sXC}, s{sXC}, 16384''')
    srd(sTIN,26,TREC); srd(sTOUT,26,TREC)
    def g0(wait):
        a(f'''v_and_b32 v19, 7, v{LANE}
v_lshlrev_b32 v19, 4, v19''')
        for i in range(2):
            a(f'''v_and_b32 v24, 0xffc0, v{28+i}
v_add_lshl_u32 v24, v24, v{28+i}, 7
v_and_b32 v25, 0x2000, v{28+i}
v_or3_b32 v{SA+i}, v24, v25, v19
v_xor_b32 v{DA+i}, 0x2000, v{SA+i}''')
        a(f's_waitcnt vmcnt({wait})')
        for i in range(2):
            a(f'v_lshlrev_b32 v{26+i}, 16, v{26+i}')
            for c in range(4):
                a(f'''v_lshlrev_b32 v24, 16, v{X+4*i+c}
v_and_b32 v25, 0xffff0000, v{X+4*i+c}
v_mul_f32 v24, v24, v{26+i}
v_mul_f32 v25, v25, v{26+i}
v_cvt_pk_bf16_f32 v{G0+4*i+c}, v24, v25''')
    def g0s(pts):
        n=0
        for k,(i,r) in enumerate(((0,SA),(0,DA),(1,SA),(1,DA))):
            if g0p[k] in pts:
                a(f'buffer_store_dwordx4 v[{G0+4*i}:{G0+3+4*i}], v{r+i}, s[{sTOUT}:{sTOUT+3}], 0 offen sc1'); n+=1
        return n
    def consts():
        a(f'''v_and_b32 v12, 15, v{LANE}            ; n
v_lshrrev_b32 v13, 4, v{LANE}          ; q
v_mov_b32 v20, {PADE:#x}
v_mov_b32 v21, {PADE:#x}
v_mov_b32 v22, {PADE:#x}
v_mov_b32 v23, {PADE:#x}
v_lshl_add_u32 v17, v{LANE}, 4, s{sRB}
ds_write_b128 v17, v[20:23] offset:{L_AL}
ds_write_b128 v17, v[20:23] offset:{L_AL+CAP*4-1024}
v_bfe_u32 v16, v{LANE}, 2, 1           ; r&1
v_bfe_u32 v14, v{LANE}, 3, 1           ; i
v_lshl_add_u32 v16, v13, 1, v16        ; g
v_lshl_add_u32 v16, v16, 7, s{sRB}
v_lshl_add_u32 v16, v14, 10, v16
v_and_b32 v18, 1, v13
v_lshl_add_u32 v17, v18, 1, v14        ; swz
v_lshl_add_u32 v16, v17, 5, v16
v_and_b32 v17, 3, v{LANE}
v_lshl_add_u32 v{TRA}, v17, 3, v16
v_xor_b32 v{TRA+1}, 32, v{TRA}
v_xor_b32 v{TRA+2}, 64, v{TRA}
v_xor_b32 v{TRA+3}, 96, v{TRA}
v_and_b32 v16, 7, v{LANE}
v_lshlrev_b32 v18, 2, v18
v_xor_b32 v17, v18, v16
v_lshlrev_b32 v{LO}, 4, v17
v_xor_b32 v{LO+1}, 32, v{LO}
s_mov_b32 s{sA}, 0x01010101
v_mul_lo_u32 v{NOTN}, v12, s{sA}
v_not_b32 v{NOTN}, v{NOTN}
s_mov_b32 s{sK1}, 0x40404041
s_mov_b32 s{sK2}, 0x40004000
s_mov_b32 s{sK3}, {PADE:#x}
s_movk_i32 s{sA}, 144
v_lshl_add_u32 v17, v13, 3, s{sRB}
v_mad_u32_u24 v{SWA}, v12, s{sA}, v17
v_cmp_gt_u32 vcc, 14, v12
v_mov_b32 v17, {OOB}
v_lshrrev_b32 v18, 3, v{LANE}          ; g
v_cndmask_b32 v{SWA}, v17, v{SWA}, vcc
v_lshl_add_u32 v17, v16, 4, s{sRB}
v_mad_u32_u24 v{SRA}, v18, s{sA}, v17
v_lshl_add_u32 v17, v13, 4, s{sRB}
v_mad_u32_u24 v{TRD}, v14, s{sA}, v17
v_lshl_add_u32 v{STA}, v12, 6, s{sRB}   ; col*64 (+k*8)
v_mov_b32 v{S1}, 1.0''')
    def tok0():
        a(f'''ds_write_b128 v{SRA}, v[{X}:{X+3}]
ds_write_b128 v{SRA}, v[{X+4}:{X+7}] offset:{144*nE}
v_lshrrev_b32 v16, 3, v{LANE}
v_lshl_add_u32 v16, v16, 2, s{sRB}
ds_write_b32 v16, v26 offset:2304
ds_write_b32 v16, v27 offset:{2304+4*nE}
v_and_b32 v17, 15, v{LANE}
v_lshl_add_u32 v17, v17, 2, s{sRB}''')
        for t in range(4): a(f'ds_read_b64 v[{X+2*t}:{X+2*t+1}], v{SWA} offset:{32*t}')
        a(f'''ds_read_b32 v{DIS}, v17 offset:2304
s_waitcnt lgkmcnt(0)''')
        for i in range(8):
            a(f'''v_lshlrev_b32 v{ACC+2*i}, 16, v{X+i}
v_and_b32 v{ACC+2*i+1}, 0xffff0000, v{X+i}''')
    def scan(cnt, c, quad):
        a(f'''v_lshlrev_b32 v{c+9}, 4, v{LANE}
v_add_u32 v{c+9}, {cnt}, v{c+9}
ds_read_b128 v[{c}:{c+3}], v{c+9}
s_waitcnt lgkmcnt(0)
v_add_u32 v{c+6}, v{c}, v{c+1}
v_add_u32 v{c+7}, v{c+6}, v{c+2}
v_add_u32 v{c+4}, v{c+7}, v{c+3}''')
        if quad:
            a(f'''v_mov_b32_dpp v{c+5}, v{c+4} quad_perm:[0,0,1,2] row_mask:0xf bank_mask:0xf
v_cndmask_b32 v{c+5}, v{c+5}, 0, s[{sM}:{sM+1}]
v_add_u32 v{c+8}, v{c+4}, v{c+5}
v_mov_b32_dpp v{c+5}, v{c+8} quad_perm:[0,0,0,1] row_mask:0xf bank_mask:0xf
v_cndmask_b32 v{c+5}, v{c+5}, 0, s[{sM2}:{sM2+1}]
v_add_u32 v{c+8}, v{c+8}, v{c+5}''')
        else:
            a(f'v_mov_b32 v{c+8}, v{c+4}')
            for m in ('row_shr:1 row_mask:0xf','row_shr:2 row_mask:0xf','row_shr:4 row_mask:0xf','row_shr:8 row_mask:0xf','row_bcast:15 row_mask:0xa','row_bcast:31 row_mask:0xc'):
                a(f'v_add_u32_dpp v{c+8}, v{c+8}, v{c+8} {m} bank_mask:0xf')
        a(f'''v_sub_u32 v{c+4}, v{c+8}, v{c+4}
v_add_u32 v{c+4}, {'v24' if quad else L_W//4}, v{c+4}
v_add_u32 v{c+5}, v{c+4}, v{c}
v_add_u32 v{c+6}, v{c+4}, v{c+6}
v_add_u32 v{c+7}, v{c+4}, v{c+7}
ds_write_b128 v{c+9}, v[{c+4}:{c+7}] offset:1024''')
    def signal(t0=16,t1=17):
        l=L('ns')
        a(f'''s_lshl_b32 s{sA}, s{sEV}, 10
s_and_b32 s{sB}, s2, 7
s_lshl_b32 s{sB}, s{sB}, 7
s_add_u32 s{sA}, s{sA}, s{sB}
s_mov_b32 s{sB}, 1
s_waitcnt lgkmcnt(0)
s_atomic_add s{sB}, s[92:93], s{sA} glc
s_add_u32 s{sC}, s{sA}, {SYNC+8192}
v_mov_b32 v{t0}, 0
v_mov_b32 v{t1}, 1
s_waitcnt lgkmcnt(0)
s_cmp_lg_u32 s{sB}, 31
s_cbranch_scc1 {l}
''')
        if sf0: a(f's_add_u32 s{sA}, s{sA}, 8192\ns_atomic_add s{sB}, s[92:93], s{sA}')
        else: a(f'''s_mov_b64 exec, 1
buffer_store_dword v{t1}, v{t0}, s[{sWS}:{sWS+3}], s{sC} offen sc1
s_mov_b64 exec, -1''')
        a(f'{l}:')
    def poll():
        l=L('pl'); d=L('pd')
        a(f'''s_lshl_b32 s{sA}, s{sEV}, 10
s_add_u32 s{sA}, s{sA}, {SYNC+8192}
v_lshlrev_b32 v16, 7, v{LANE}
s_mov_b64 exec, 0xff
{l}:
buffer_load_dword v17, v16, s[{sWS}:{sWS+3}], s{sA} offen sc1
s_waitcnt vmcnt(0)
v_cmp_eq_u32 vcc, 0, v17
s_cbranch_vccz {d}''')
        spin(l)
        a(f'''{d}:
s_mov_b64 exec, -1''')
    def sig_issue(B,r):
        a(f'''s_lshl_b32 s{sA}, s{sEV}, 10
s_and_b32 s{sC}, s2, 7
s_lshl_b32 s{sC}, s{sC}, 7
s_add_u32 s{sA}, s{sA}, s{sC}
{'s_add_u32 s%d, s%d, 8192'%(sA,sA) if B else ''}
s_mov_b32 s{r}, 1
s_waitcnt lgkmcnt(0)
s_atomic_add s{r}, s[92:93], s{sA} glc''')
    def sig_finish(B,r,t0,t1):
        l=L('ns')
        a(f'''s_waitcnt lgkmcnt(0)
s_cmp_lg_u32 s{r}, 31
s_cbranch_scc1 {l}
s_and_b32 s{sC}, s2, 7
s_lshl_b32 s{sC}, s{sC}, 7
''')
        if sflag:
            a(f'''s_add_u32 s{sC}, s{sC}, 32768
s_add_u32 s{sA}, s{sC}, 8192
s_atomic_umax s{sEV}, s[92:93], s{sC}
s_atomic_umax s{sEV}, s[92:93], s{sA}''')
        else:
            a(f'''s_add_u32 s{sC}, s{sC}, {SYNC+32768}
v_lshlrev_b32 v{t0}, 13, v{LANE}
v_mov_b32 v{t1}, s{sEV}
s_mov_b64 exec, 3
buffer_store_dword v{t1}, v{t0}, s[{sWS}:{sWS+3}], s{sC} offen sc1
s_mov_b64 exec, -1''')
        a(f'{l}:')
    def signal2(B=0,t0=16,t1=17):
        sig_issue(B,sB); sig_finish(B,sB,t0,t1)
    def joinB(tag):
        dopf = npf and tag=='h'
        if dopf:
            a(f'''v_lshl_add_u32 v20, v{LANE}, 2, s{sRB}
ds_read_b32 v20, v20 offset:{L_AL+4*pf0}''')
        a(f'''v_mov_b32 v16, {L_MISC+4}
v_mov_b32 v17, 1
s_lshl_b32 s{sSB}, s{sEV}, 10
s_add_u32 s{sSB}, s{sSB}, {SYNC+8192}
s_and_b32 s{sA}, s2, 7
s_lshl_b32 s{sA}, s{sA}, 7
v_mov_b32 v19, s{sA}
s_waitcnt vmcnt(0)
s_mov_b64 exec, 1
ds_add_rtn_u32 v18, v16, v17
s_waitcnt lgkmcnt(0)
v_readfirstlane_b32 s{sA}, v18
s_and_b32 s{sA}, s{sA}, 15
s_cmp_lg_u32 s{sA}, 15
s_cbranch_scc1 L_jc{tag}
buffer_atomic_add v17, v19, s[{sWS}:{sWS+3}], s{sSB} offen sc1
L_jc{tag}:
s_mov_b64 exec, -1
s_cmp_eq_u32 s{sW}, 15
s_cbranch_scc1 L_ja{tag}''')
        if dopf:
            m=(1<<npf)-1
            a(f'''v_bitop3_b32 v20, v20, s{sK3}, v{LO} bitop3:0x6a
s_mov_b32 exec_lo, {m&0xffffffff:#x}
s_mov_b32 exec_hi, {m>>32:#x}
buffer_load_dword v{X+16}, v20, s[{sTIN}:{sTIN+3}], 0 offen sc1
s_mov_b64 exec, -1''')
        a(f's_branch L_jb{tag}\nL_ja{tag}:')
        poll2(0,18)
        a(f'L_jb{tag}:')
    def pollissue(B,t1):
        a(f'buffer_load_dword v{t1}, v{PA}, s[{sWS}:{sWS+3}], s{sSB if B else sPOL} offen sc1')
    def poll2(B=0,t1=17):
        l=L('pl'); d=L('pd')
        a(f'{l}:')
        pollissue(B,t1)
        a(f'''s_waitcnt vmcnt(0)
v_cmp_gt_u32 vcc, {32 if B else 's%d'%sEV}, v{t1}
s_cbranch_vccz {d}
{'s_sleep 8' if B else ''}''')
        spin(l)
        a(f'{d}:')
    def prep():
        a(f'''v_lshrrev_b32 v{AP}, 3, v{LANE}
v_lshl_add_u32 v{AP}, v{AP}, 3, s{sRB}
v_lshrrev_b32 v{CP}, 4, v{LANE}
v_lshl_add_u32 v{CP}, v{CP}, 2, s{sRB}''')
        for b in range(R): a(f'ds_read_b64 v[{X+2*b}:{X+2*b+1}], v{AP} offset:{L_AL+64*b}')
        a(f'''ds_read_b64 v[{EN}:{EN+1}], v{AP} offset:{L_AL+64*R}
s_mov_b32 s{sREM}, s{sU}
s_mov_b32 s{sBD}, s{sNB}
s_mov_b32 s{sI}, 0
s_waitcnt lgkmcnt(0)''')
        for b in range(2*R): a(f'v_bitop3_b32 v{X+b}, v{X+b}, s{sK3}, v{LO+(b&1)} bitop3:0x6a')
    def hopA(vec=True):
        a(f'''s_add_u32 s{sK}, s{sK}, 1
s_add_u32 s{sTOUT}, s{sTOUT}, {TSTR}
s_addc_u32 s{sTOUT+1}, s{sTOUT+1}, 0
s_mov_b32 s{sBA}, s{sTN}
s_and_b32 s{sTH}, s{sBA}, 31
s_mov_b32 s{sSEG}, 0
s_mov_b32 s{sOFF}, 0
s_mov_b32 s{sCNT}, 0''')
        if not vec: return
        a(f's_min_i32 s{sUE}, s{sUE}, {ppi}')
        for i in range(16): a(f'v_mov_b32 v{ACC+i}, 0')
        a(f'v_mov_b32 v{PV}, 0')
        if lp:
            a(f'''v_mov_b32 v{X+4}, {L_MISC+8}
ds_write_b32 v{X+4}, v{PV}
s_add_u32 s{sA}, s{sU}, 1
v_cvt_f32_u32 v{X+5}, s{sA}
v_rcp_f32 v{X+5}, v{X+5}
v_mul_f32 v{X+5}, 0x44800000, v{X+5}
v_cvt_u32_f32 v{X+5}, v{X+5}
v_readfirstlane_b32 s{sINC}, v{X+5}
s_lshl_b32 s{sINC}, s{sINC}, 4
s_lshr_b32 s{sMY}, s{sINC}, 1
s_sub_u32 s{sMY}, 0, s{sMY}''')
    def hopinit():
        hopA(); prep()
    def gstore():
        a(f'v_mul_f32 v{TMP}, v{S1}, v{DIS}')
        for t in range(4):
            for r in range(4): a(f'v_mul_f32 v{X+r}, v{TMP}, v{ACC+4*t+r}')
            a(f'''v_cvt_pk_bf16_f32 v{AOP+2*t}, v{X}, v{X+1}
v_cvt_pk_bf16_f32 v{AOP+2*t+1}, v{X+2}, v{X+3}
ds_write_b64 v{SWA}, v[{AOP+2*t}:{AOP+2*t+1}] offset:{32*t}''')
        a(f'''ds_read_b128 v[{X+8}:{X+11}], v{SRA}
ds_read_b128 v[{X+12}:{X+15}], v{SRA} offset:{144*nE}
v_xor_b32 v{DA}, 0x2000, v{SA}
v_xor_b32 v{DA+1}, 0x2000, v{SA+1}''')
        a('s_waitcnt lgkmcnt(1)')
        rows(0)
        a('s_waitcnt lgkmcnt(0)')
        if not defer: rows(1)
    def rows(i):
        for r in (DA,SA): a(f'buffer_store_dwordx4 v[{X+8+4*i}:{X+11+4*i}], v{r+i}, s[{sTOUT}:{sTOUT+3}], 0 offen sc1')
    def allq(r,t):
        a(f'''v_mov_b32 v{t}, v{r}
v_permlane16_swap_b32 v{t}, v{r}
v_add_f32 v{r}, v{r}, v{t}
v_mov_b32 v{t}, v{r}
v_permlane32_swap_b32 v{t}, v{r}
v_add_f32 v{r}, v{r}, v{t}''')
    def stats(a=a, NP=7, k=None):
        for i in range(2): a(f'v_add_f32 v{X+i}, v{ACC+i}, v{ACC+2+i}')
        for i in range(2): a(f'v_mul_f32 v{X+4+i}, v{ACC+i}, v{ACC+i}')
        for i in range(2,16):
            if i>=4: a(f'v_add_f32 v{X+i%2}, v{X+i%2}, v{ACC+i}')
            a(f'v_fmac_f32 v{X+4+i%2}, v{ACC+i}, v{ACC+i}')
        a(f'''v_add_f32 v{X}, v{X}, v{X+1}
v_add_f32 v{X+4}, v{X+4}, v{X+5}
v_mul_f32 v{X+5}, v{S1}, v{S1}
v_permlane16_swap_b32 v{X}, v{X+4}
v_add_f32 v{X}, v{X}, v{X+4}
v_mov_b32 v{X+4}, v{X}
v_mov_b32 v{X+6}, {fb(1e-5):#x}
v_permlane32_swap_b32 v{X}, v{X+4}
v_add_f32 v{X}, v{X}, v{X+4}
v_mul_f32 v{X}, {fb(1/64):#x}, v{X}
v_mov_b32 v{X+4}, v{X}
{'' if k is not None else 's_lshl_b32 s%d, s%d, 3'%(sA,sK)}
{'' if k is not None else 'v_add_u32 v%d, s%d, v%d'%(X+7,sA,STA)}
v_permlane16_swap_b32 v{X}, v{X+4}
v_fma_f32 v{X+4}, -v{X}, v{X}, v{X+4}
v_max_f32 v{X+4}, 0, v{X+4}
v_fmac_f32 v{X+6}, v{X+5}, v{X+4}      ; var+eps
v_rsq_f32 v{X+5}, v{X+6}
v_mul_f32 v{X+3}, v{X}, v{S1}          ; mu
v_mul_f32 v{X+2}, v{X+6}, v{X+5}       ; sigma
v_mul_f32 v{X+4}, v{X+5}, v{S1}
v_mul_f32 v{X+5}, v{X+5}, v{X+3}
ds_write_b64 v{X+7 if k is None else STA}, v[{X+2}:{X+3}] offset:{L_ST+(0 if k is None else 8*k)}''')
        for t in range(4):
            for r in range(4): a(f'v_fma_f32 v{ACC+4*t+r}, v{X+4}, v{ACC+4*t+r}, -v{X+5}')
            a(f'''v_cvt_pk_bf16_f32 v{AOP+2*t}, v{ACC+4*t}, v{ACC+4*t+1}
v_cvt_pk_bf16_f32 v{AOP+2*t+1}, v{ACC+4*t+2}, v{ACC+4*t+3}''')
            if k is None: a(f'ds_write_b64 v{SWA}, v[{AOP+2*t}:{AOP+2*t+1}] offset:{LT+32*t}')
            elif t&1: a(f'ds_write2_b64 v{SWA}, v[{AOP+2*t-2}:{AOP+2*t-1}], v[{AOP+2*t}:{AOP+2*t+1}] offset0:{4*t-4} offset1:{4*t}')
        if k is not None:
            for p in range(NP):
                a([f's_mov_b64 exec, s[{sM2}:{sM2+1}]']+[f'ds_read_b128 v[{T(p)+4*s}:{T(p)+4*s+3}], v{TRD} offset:{288*p+64*s}' for s in range(2)]+['s_mov_b64 exec, -1'])
            return
        a(f's_lshl_b32 s{sTM}, 0x01010101, s{sK}')
    def scatter():
        l=L('sc')
        a(f'''s_cmp_eq_u32 s{sTM}, 0
s_cbranch_scc1 {l}
s_mov_b32 exec_lo, s{sTM}
s_mov_b32 exec_hi, s{sTM}''')
        for p in range(7):
            if p==6: a(f's_cmp_ge_u32 s{sW}, 2\ns_cbranch_scc1 {l}b')
            for s in range(2): a(f'ds_read_b128 v[{T(p)+4*s}:{T(p)+4*s+3}], v{TRD} offset:{LT+288*p+64*s}')
        a(f'''{l}b:
s_mov_b64 exec, -1
s_mov_b32 s{sTM}, 0
{l}:''')
    a(f'''s_cmp_lt_u32 s{sW}, 13
s_cbranch_scc1 L_p1
s_cmp_lg_u32 s{sW}, 13
s_cbranch_scc1 L_w1415
s_cmp_lt_u32 s{sJ}, 254
s_cbranch_scc1 L_p1_b2
v_lshlrev_b32 v13, 7, v{LANE}
v_mov_b32 v14, 0
global_load_dword v8, v13, s[12:13]
global_load_dword v9, v13, s[14:15]
global_load_dword v10, v13, s[16:17]
global_load_dword v11, v13, s[18:19]
global_load_dword v12, v14, s[20:21]
s_branch L_p1_b2
L_w1415:
s_cmp_eq_u32 s{sW}, 15
s_cbranch_scc1 L_w15
s_lshr_b32 s{sPA}, s2, 6
s_lshl_b32 s{sPA}, s{sPA}, 14
s_and_b32 s{sB}, s2, 63
s_lshl_b32 s{sB}, s{sB}, 7
s_add_u32 s{sPA}, s{sPA}, s{sB}
s_and_b32 s{sB}, s2, 8
s_lshl_b32 s{sB}, s{sB}, 10
s_add_u32 s{sPA}, s{sPA}, s{sB}
s_xor_b32 s{sB}, s{sPA}, 0x2000
s_mov_b32 s{sC}, 1
s_mov_b32 s{sD}, 1
s_atomic_add s{sC}, s[90:91], s{sPA} glc
s_atomic_add s{sD}, s[90:91], s{sB} glc
L_w15:''')
    consts()
    a(f'''s_barrier
s_barrier
s_cmp_eq_u32 s{sW}, 14
s_cbranch_scc1 L_w15q
v_mov_b32 v16, 0
L_w15p:
buffer_load_dword v17, v16, s[{sDB}:{sDB+3}], 0 offen sc1
s_waitcnt vmcnt(0)
v_readfirstlane_b32 s{sA}, v17
s_cmp_lg_u32 s{sA}, 0
s_cbranch_scc1 L_w15q''')
    spin('L_w15p')
    a('L_w15q:\ns_setprio 3')
    g0(0)
    if ev1<0:
        g0s((0,)); a('s_waitcnt vmcnt(0)')
    a(f'''s_barrier
s_cmp_eq_u32 s{sW}, 14
s_cbranch_scc1 L_w14''')
    st(3)
    signal()
    sx(2)
    a(f'''L_w14:''')
    tok0()
    stats()
    a(f'''s_cmp_eq_u32 s{sW}, 14
s_cbranch_scc1 L_w14b''')
    poll()
    a(f'''s_branch L_w15s
L_w14b:
s_waitcnt lgkmcnt(0)
s_mov_b32 s{sC}, 0
s_mov_b32 s{sPM}, 0
s_mov_b32 s{sPM2}, 0
L_pr:
s_mov_b32 s{sB}, 1
s_memtime s[{sP0}:{sP0+1}]
s_waitcnt lgkmcnt(0)
s_atomic_add s{sB}, s[90:91], s{sPA} glc
s_waitcnt lgkmcnt(0)
s_memtime s[{sP1}:{sP1+1}]
s_waitcnt lgkmcnt(0)
s_sub_u32 s{sB}, s{sP0}, s{sP1}
{('s_sub_u32 s80, 0, s%d'%sB+chr(10)+'s_lshl_b32 s%d, s%d, 3'%(sD,sC)+chr(10)+'s_add_u32 m0, s%d, 15'%sD+chr(10)+'s_nop 0'+chr(10)+'v_writelane_b32 v%d, s80, m0'%TS) if stamp else ''}
s_max_u32 s{sB}, s{sPM}, s{sB}
s_mov_b32 s{sPM}, s{sPM2}
s_mov_b32 s{sPM2}, s{sB}
s_xor_b32 s{sPA}, s{sPA}, 0x2000
s_add_u32 s{sC}, s{sC}, 1
s_cmp_lt_u32 s{sC}, {reps}
s_cbranch_scc1 L_pr
s_lshr_b32 s{sA}, s{sPA}, 11
s_and_b32 s{sA}, s{sA}, 4
s_add_u32 s{sA}, s{sA}, s{sXC}
s_xor_b32 s{sB}, s{sA}, 4
{'s_atomic_umax s%d, s[92:93], s%d glc'%(sPM,sA) if reps>1 else ''}
s_atomic_umax s{sPM2}, s[92:93], s{sB} glc
L_w15s:
s_setprio 0''')
    g0s((0,1,2) if ev1>=0 else (1,2))
    a('s_branch L_b5')
    a(f'''L_p1:
s_mov_b32 s{sA}, {BB}
s_mov_b32 s{sB}, {L_CNT1}
s_movk_i32 s{sD}, 0x2000
v_mov_b32 v2, 1
v_mov_b32 v32, {-(-(1<<20)//DE)}
v_mov_b32 v33, {-(-(1<<20)//DL)}
v_mov_b32 v34, {-DE}
v_mov_b32 v35, {-DL}''')
    for j in range(4): a(f'v_mov_b32 v{20+j}, 0x10000000')
    a('s_waitcnt vmcnt(5)')
    for j in range(4):
        m=(sM,sM2,sP0,sP1)[j]
        a(f'''v_cmp_le_u32 s[{m}:{m+1}], s{sA}, v{4+j}
v_subrev_u32 v16, s{sA}, v{4+j}
v_min_u32 v{4+j}, v16, v{4+j}
v_cndmask_b32 v16, v32, v33, s[{m}:{m+1}]
v_mul_u32_u24 v16, v16, v{4+j}
v_lshrrev_b32 v{36+j}, 20, v16            ; owner
v_lshl_add_u32 v{12+j}, v{36+j}, 2, s{sB}''')
    for j in range(4):
        if j<2: a(f'v_cmpx_gt_u32 vcc, {CH-j}, v3')
        a(f'ds_add_rtn_u32 v{20+j}, v{12+j}, v2')
    a('s_mov_b64 exec, -1')
    for j in range(4):
        m=(sM,sM2,sP0,sP1)[j]
        a(f'''v_cndmask_b32 v16, v34, v35, s[{m}:{m+1}]
v_mad_i32_i24 v{4+j}, v{36+j}, v16, v{4+j}
v_cndmask_b32 v16, 0, v34, s[{m}:{m+1}]
v_sub_u32 v{4+j}, v{4+j}, v16           ; r''')
    a('s_waitcnt vmcnt(4)')
    st(7)
    def entries(js):
        for j in js:
            a(f'''v_and_b32 v16, 0xffc0, v{8+j}
v_add_lshl_u32 v16, v16, v{8+j}, 7
v_and_or_b32 v16, v{8+j}, s{sD}, v16
v_lshrrev_b32 v17, 12, v{8+j}
v_lshl_or_b32 v16, v17, 24, v16
v_lshrrev_b32 v17, 4, v{4+j}
v_bfi_b32 v17, 1, v{4+j}, v17
v_lshrrev_b32 v18, 1, v{4+j}
v_lshl_or_b32 v17, v18, 28, v17
v_or_b32 v{8+j}, v16, v17''')
    entries(range(4))
    a(f'''L_p1_b2:
s_waitcnt lgkmcnt(0)
s_barrier''')
    st(2)
    scan(L_CNT1,X+8,False)
    a(f'''s_cmp_lg_u32 s{sW}, 13
s_cbranch_scc1 L_p1_sc''')
    for j in range(4): a(f'v_subrev_u32 v{X+12+j}, {L_W//4}, v{X+12+j}\nv_lshl_or_b32 v{X+8+j}, v{X+8+j}, 16, v{X+12+j}')
    a(f'''s_lshl_b32 s{sA}, s2, 10
s_add_u32 s{sA}, s{sA}, {OFFS}
v_lshlrev_b32 v16, 4, v{LANE}
buffer_store_dwordx4 v[{X+8}:{X+11}], v16, s[{sWS}:{sWS+3}], s{sA} offen sc1
s_waitcnt lgkmcnt(0)
s_barrier
s_branch L_p1_g
L_p1_sc:''')
    for j in range(4): a(f'ds_read_b32 v{16+j}, v{12+j} offset:1024')
    a(f'''v_lshlrev_b32 v2, 4, v0
v_add_u32 v3, {L_W}, v2
s_mul_i32 s{sA}, s2, {CHSTR}
v_cmp_gt_u32 vcc, {CHSTR}, v2
v_mov_b32 v1, {OOB}
v_cndmask_b32 v2, v1, v2, vcc''')
    for j in range(4):
        a(f'''s_waitcnt lgkmcnt(3)
v_add_lshl_u32 v{16+j}, v{16+j}, v{20+j}, 2
ds_write_b32 v{16+j}, v{8+j}''')
    a(f'''s_waitcnt lgkmcnt(0)
s_barrier''')
    sx(1)
    a(f'''ds_read_b128 v[4:7], v3
s_waitcnt lgkmcnt(0)
buffer_store_dwordx4 v[4:7], v2, s[{sWS}:{sWS+3}], s{sA} offen sc1
L_p1_g:''')
    g0(1)
    n=g0s((0,))
    if ev1<0: n=0; assert g0p[:2]==(0,0)
    a(f'''s_waitcnt vmcnt({n})
s_barrier''')
    st(3)
    a('L_b4:')
    g0s((1,))
    consts()
    tok0()
    g0s((2,))
    stats()
    sx(3)
    a('L_b5:')
    allB = max(g0p)<=2
    assert max(g0p[:2])<=2 and not ((MISC+SYNC)>>21)&1 and len(fr)<=5
    sRARE=sSTART; PV1=T0+55
    a(f'''s_lshl_b32 s{sBK}, s{sJ}, 2
s_add_u32 s{sBK}, s{sBK}, {OFFS}
v_lshrrev_b32 v{PC+1}, 2, v{TID}               ; segment
v_lshlrev_b32 v{PC+2}, 10, v{PC+1}
s_barrier
buffer_load_dword v{PC}, v{PC+2}, s[{sWS}:{sWS+3}], s{sBK} offen sc1''')
    st(4)
    a(f'''s_mov_b32 s{sEV}, 1
v_mul_u32_u24 v{PC+1}, {CHSTR}, v{PC+1}
v_and_b32 v{PC+2}, 3, v{TID}                   ; sub
v_mov_b32 v22, {OOB}
v_mov_b32 v23, {SYNC}
v_mov_b32 v24, {L_MISC}
v_mov_b32 v21, 1
v_mul_f32 v{S1}, 0.5, v{DIS}
v_and_b32 v{PA}, 7, v{LANE}
v_lshlrev_b32 v{PA}, 7, v{PA}
v_mov_b32 v{PV}, 0''')
    for j in range(8): a(f'v_mov_b32 v{PK+j}, 0x10000000')
    for i in range(16): a(f'v_mov_b32 v{ACC+i}, 0')
    a('s_waitcnt vmcnt(0)')
    sx(4)
    a(f'''v_and_b32 v{PC+3}, 0xffff, v{PC}
v_lshrrev_b32 v{PC}, 16, v{PC}                 ; count
v_lshl_add_u32 v{PC+1}, v{PC+3}, 2, v{PC+1}
v_lshl_add_u32 v{PC+3}, v{PC+2}, 4, v{PC+1}
buffer_load_dwordx4 v[{PE}:{PE+3}], v{PC+3}, s[{sWS}:{sWS+3}], 0 offen sc1
v_sub_u32 v16, v{PC}, v{PC+2}                  ; count-sub
v_cmp_lt_i32 vcc, 16, v16
v_lshl_add_u32 v{PC+3}, v{PC+2}, 2, v{PC+1}
v_mad_i32_i24 v17, v{PC+2}, -3, v{PC}          ; count-3*sub
v_cndmask_b32 v{PC+3}, v22, v{PC+3}, vcc
buffer_load_dword v{PE+7}, v{PC+3}, s[{sWS}:{sWS+3}], 0 offen offset:64 sc1
buffer_load_dwordx2 v[{PC+4}:{PC+5}], v23, s[{sWS}:{sWS+3}], s{sXC} offen sc1
v_cmp_lt_i32 vcc, 20, v17
v_mad_u32_u24 v{PC+3}, v{PC+2}, 12, v{PC+1}
v_sub_u32 v18, v17, v{PC+2}                    ; count-4*sub
s_or_b32 s{sRARE}, vcc_lo, vcc_hi
s_cbranch_scc0 L_p2r
v_cndmask_b32 v{PC+3}, v22, v{PC+3}, vcc
buffer_load_dwordx3 v[{PE+4}:{PE+6}], v{PC+3}, s[{sWS}:{sWS+3}], 0 offen offset:80 sc1
v_cmp_lt_i32 vcc, 32, v{PC}
s_cbranch_vccz L_p2r
ds_write_b32 v24, v21
L_p2r:
s_mov_b64 exec, 1
ds_add_rtn_u32 v25, v24, v21 offset:8
s_mov_b64 exec, -1
s_and_b32 s{sB}, s2, 7
s_lshl_b32 s{sB}, s{sB}, 7
s_add_u32 s{sB}, s{sB}, {1024+(8192 if allB else 0)}
s_mov_b32 s{sSB}, {SYNC+8192+1024}
s_mov_b32 s{sD}, {L_CNT2}
s_waitcnt lgkmcnt(0)
v_readfirstlane_b32 s{sA}, v25
s_cmp_lg_u32 s{sA}, 15
s_cbranch_scc1 L_p2a
s_atomic_add s{sEV}, s[92:93], s{sB}
L_p2a:
s_waitcnt vmcnt(0)''')
    sx(5)
    def bins(js,cmps):
        for j in js:
            a(f'''v_lshrrev_b32 v19, 24, v{PE+j}
v_lshl_add_u32 v{PB+j}, v19, 2, s{sD}''')
        for j,(k,r) in zip(js,cmps):
            if j==7: a('s_mov_b64 exec, -1')
            a(f'''v_cmpx_lt_i32 vcc, {k}, v{r}
ds_add_rtn_u32 v{PK+j}, v{PB+j}, v21''')
        a('s_mov_b64 exec, -1')
    bins((0,1,2,3,7),((0,18),(1,18),(2,18),(3,18),(16,16)))
    a(f's_cmp_eq_u32 s{sRARE}, 0\ns_cbranch_scc1 L_p2s')
    bins((4,5,6),((20,17),(21,17),(22,17)))
    a('L_p2s:')
    g0s((4,))
    a(f'''v_cmp_gt_u32 s[{sM}:{sM+1}], v{PC+4}, v{PC+5}
v_mov_b32 v19, 0x2000
v_mov_b32 v20, v24
v_cndmask_b32 v19, 0, v19, s[{sM}:{sM+1}]
v_or_b32 v{LO}, v{LO}, v19
v_or_b32 v{LO+1}, v{LO+1}, v19
v_xor_b32 v{SA}, v{SA}, v19
v_xor_b32 v{SA+1}, v{SA+1}, v19
v_readfirstlane_b32 s{sPOL}, v19
s_mov_b32 s{sM}, 0x11111111
s_mov_b32 s{sM+1}, 0x11111111
s_mov_b32 s{sM2}, 0x33333333
s_mov_b32 s{sM2+1}, 0x33333333
v_lshrrev_b32 v25, 2, v{LANE}
v_mul_u32_u24 v24, {WSTR//4}, v25
s_add_u32 s{sPOL}, s{sPOL}, {SYNC+32768}
s_mov_b32 s{sD}, {SYNC+1024+(8192 if allB else 0)}
s_waitcnt lgkmcnt(0)
s_barrier''')
    st(5)
    a(f'''s_cmp_lg_u32 s{sW}, 15
s_cbranch_scc1 L_p2q
buffer_load_dword v{PV1}, v{PA}, s[{sWS}:{sWS+3}], s{sD} offen sc1
L_p2q:
ds_read_b32 v20, v20''')
    scan(L_CNT2,X+8,True)
    for j in (0,1,2,3,7): a(f'ds_read_b32 v{PQ+j}, v{PB+j} offset:1024')
    a(f'''s_lshl_b32 s{sA}, s{sW}, 2
s_add_u32 s{sA}, s{sA}, 3
v_readlane_b32 s{sU}, v{X+16}, s{sA}
s_sub_u32 s{sA}, s{sA}, {3-nE//4}
v_readlane_b32 s{sUE}, v{X+12+nE%4}, s{sA}
v_cmp_lt_u32 vcc, {CAP}, v{X+16}
v_readfirstlane_b32 s{sSLOW}, v20
s_add_u32 s{sU}, s{sU}, 15
s_lshr_b32 s{sU}, s{sU}, 4
s_lshr_b32 s{sA}, s{sRB}, 2
s_sub_u32 s{sUE}, s{sUE}, s{sA}
s_lshr_b32 s{sUE}, s{sUE}, 4
s_mul_i32 s{sA}, s{sU}, {fr[gi]}
s_add_u32 s{sA}, s{sA}, 32
s_lshr_b32 s{sA}, s{sA}, 6
s_min_u32 s{sUE}, s{sUE}, s{sA}
s_lshl_b32 s{sTN}, s{sU}, {5*len(fr)}
s_or_b32 s{sA}, vcc_lo, vcc_hi
s_or_b32 s{sSLOW}, s{sSLOW}, s{sA}
{'s_or_b32 s%d, s%d, 1'%(sSLOW,sSLOW) if force_slow else ''}
s_cbranch_scc1 L_p2d''')
    sx(6)
    def put(js):
        for j in js:
            a(f'''s_waitcnt lgkmcnt({len(js)-1})
v_add_lshl_u32 v{PQ+j}, v{PQ+j}, v{PK+j}, 2
ds_write_b32 v{PQ+j}, v{PE+j} offset:{L_AL}''')
    put((0,1,2,3,7))
    a(f's_cmp_eq_u32 s{sRARE}, 0\ns_cbranch_scc1 L_p2d')
    for j in (4,5,6): a(f'ds_read_b32 v{PQ+j}, v{PB+j} offset:1024')
    put((4,5,6))
    a('L_p2d:')
    for j,f in enumerate(fr):
        if j==gi: a(f's_lshl_b32 s{sA}, s{sUE}, {5*j}')
        else: a(f'''s_mul_i32 s{sA}, s{sU}, {f}
s_add_u32 s{sA}, s{sA}, 32
s_lshr_b32 s{sA}, s{sA}, 6
s_{'min' if j<=gi else 'max'}_u32 s{sA}, s{sA}, s{sUE}
s_lshl_b32 s{sA}, s{sA}, {5*j}''')
        a(f's_or_b32 s{sTN}, s{sTN}, s{sA}')
    a(f'''s_sub_u32 s{sUE}, s{sUE}, 2
{'s_min_i32 s%d, s%d, %d'%(sUE,sUE,ppi) if not pp1 else ''}
s_cmp_eq_u32 s{sW}, 15
s_cselect_b32 s{sUE}, s{sUE}, -1
s_cmp_eq_u32 s{sSLOW}, 0
s_cselect_b32 s{sNB}, {len(fr)}, 0
s_cselect_b32 s{sU}, s{sU}, 4''')
    hopA(False)
    a(f'''s_waitcnt vmcnt(0)
s_cmp_lg_u32 s{sW}, 15
s_cbranch_scc1 L_p2e
v_cmp_gt_u32 vcc, 32, v{PV1}
s_cbranch_vccz L_p2e
s_mov_b32 s{sSB}, s{sD}''')
    poll2(1,18)
    a(f'''s_mov_b32 s{sSB}, {SYNC+8192+1024}
L_p2e:
s_waitcnt lgkmcnt(0)
s_barrier''')
    prep()
    if not allB:
        a(f'''s_cmp_lg_u32 s{sW}, 14
s_cbranch_scc1 L_p2f
s_and_b32 s{sA}, s2, 7
s_lshl_b32 s{sA}, s{sA}, 7
s_add_u32 s{sA}, s{sA}, {8192+1024}
s_atomic_add s{sEV}, s[92:93], s{sA}
L_p2f:''')
    st(6)
    a(f'''L_hop:
s_add_u32 s{sSI}, s{sSI}, 8
s_setprio 3''')
    if stamp: a('s_memrealtime s[84:85]')
    if enc: st(0)
    a(f'''s_cmp_eq_u32 s{sSLOW}, 0
s_cbranch_scc1 L_gather
''')
    a(f's_cmp_lg_u32 s{sW}, 15\ns_cbranch_scc1 L_slow0')
    poll2(1)
    a(f'''L_slow0:
s_barrier
L_slow:
s_cmp_lt_u32 s{sOFF}, s{sCNT}
s_cbranch_scc1 L_slow2
s_cmp_ge_u32 s{sSEG}, 256
s_cbranch_scc1 L_gdone
s_lshl_b32 s{sA}, s{sSEG}, 10
v_mov_b32 v16, s{sA}
buffer_load_dword v17, v16, s[{sWS}:{sWS+3}], s{sBK} offen sc1
s_mul_i32 s{sSTART}, s{sSEG}, {CHSTR}
s_add_u32 s{sSEG}, s{sSEG}, 1
s_mov_b32 s{sOFF}, 0
s_waitcnt vmcnt(0)
v_readfirstlane_b32 s{sA}, v17
s_lshr_b32 s{sCNT}, s{sA}, 16
s_and_b32 s{sA}, s{sA}, 0xffff
s_lshl_b32 s{sA}, s{sA}, 2
s_add_u32 s{sSTART}, s{sSTART}, s{sA}
s_branch L_slow
L_slow2:
v_add_u32 v16, s{sOFF}, v{LANE}
v_lshl_add_u32 v17, v16, 2, s{sSTART}
buffer_load_dword v18, v17, s[{sWS}:{sWS+3}], 0 offen sc1
s_add_u32 s{sOFF}, s{sOFF}, 64
v_cmp_gt_u32 s[{sM}:{sM+1}], s{sCNT}, v16
s_waitcnt vmcnt(0)
v_lshrrev_b32 v19, 28, v18
v_cmp_eq_u32 vcc, s{sW}, v19
s_and_b64 s[{sM}:{sM+1}], s[{sM}:{sM+1}], vcc''')
    a('v_mov_b32 v20, v18\nv_and_b32 v21, 15, v18')
    a(f'''v_mov_b32 v22, {PADE:#x}
v_cndmask_b32 v20, v22, v20, s[{sM}:{sM+1}]
v_lshl_add_u32 v22, v{LANE}, 2, s{sRB}
v_add_u32 v23, s{sRB}, v{LANE}
ds_write_b32 v22, v20 offset:{L_AL}
ds_write_b8 v23, v21 offset:{L_CL}''')
    prep()
    def pacer(tag):
        a(f'''L_pa{tag}:
s_cmp_lt_u32 s{sI}, s{sTH}
s_cbranch_scc1 L_pb{tag}
s_cmp_eq_u32 s{sBD}, 0
s_cbranch_scc1 L_pb{tag}
s_sub_u32 s{sBD}, s{sBD}, 1
s_lshr_b32 s{sBA}, s{sBA}, 5
s_and_b32 s{sTH}, s{sBA}, 31
s_cmp_lg_u32 s{sBD}, {len(fr)-1-gi}
s_cbranch_scc1 L_pz{tag}
''')
        a(f'''s_cmp_lg_u32 s{sW}, 15
s_cbranch_scc1 L_pz{tag}
{'s_branch L_pz%s'%tag if nogate else ''}
s_waitcnt vmcnt(4)
v_cmp_gt_u32 vcc, 32, v{PV}
s_cbranch_vccz L_pz{tag}''')
        poll2(1,PV)
        a(f'''L_pz{tag}:
s_barrier
s_branch L_pa{tag}
L_pb{tag}:''')
    def issue(b,e0,e1):
        a(f'''s_add_u32 m0, s{sRB}, {2048*b}
s_add_u32 s{sI}, s{sI}, 1
buffer_load_dwordx4 v{e0}, s[{sTIN}:{sTIN+3}], 0 offen sc1 lds
s_add_u32 m0, s{sRB}, {2048*b+1024}
buffer_load_dwordx4 v{e1}, s[{sTIN}:{sTIN+3}], 0 offen sc1 lds''')
    a('L_gather:')
    for b in range(R):
        pacer(f'p{b}')
        a(f'''s_cmp_le_u32 s{sU}, {b}
s_cbranch_scc1 L_gl0''')
        issue(b,X+2*b,X+2*b+1)
    a('L_gl0:')
    if stamp: a(f's_waitcnt lgkmcnt(0)\ns_mov_b32 m0, s{sSI}\ns_nop 0\nv_writelane_b32 v{TS}, s84, m0')
    a(f'''L_gl0b:
s_cmp_lg_u32 s{sTM}, 0x01010101
s_cbranch_scc1 L_gl1
v_lshl_add_u32 v{TMP}, v{LANE}, 4, s{sRB}
ds_read_b128 v[{AOP}:{AOP+3}], v{TMP} offset:{L_AL}
ds_read_b128 v[{AOP+4}:{AOP+7}], v{TMP} offset:{L_AL+CAP*4-1024}
v_lshl_add_u32 v{TMP}, v{LANE}, 2, s{sRB}
s_mov_b32 s{sA}, 0x0c0c0400
s_mov_b32 s{sB}, 0x0f0f0f0f''')
    a('s_waitcnt lgkmcnt(0)')
    for h in range(2):
        a(f'''v_perm_b32 v{AOP+4*h}, v{AOP+4*h+1}, v{AOP+4*h}, s{sA}
v_perm_b32 v{AOP+4*h+2}, v{AOP+4*h+3}, v{AOP+4*h+2}, s{sA}
v_lshl_or_b32 v{AOP+4*h}, v{AOP+4*h+2}, 16, v{AOP+4*h}
v_and_b32 v{AOP+4*h}, s{sB}, v{AOP+4*h}
ds_write_b32 v{TMP}, v{AOP+4*h} offset:{L_CL+h*(CAP-256)}''')
    a('L_gl1:')
    scatter()
    a('L_gl:')
    for b in range(R):
        pacer(b)
        if prio and not lp:
            a(f'''s_sub_i32 s{sA}, s{sTH}, s{sI}
s_setprio 0
s_cmp_le_i32 s{sA}, {prio-1}
s_cbranch_scc1 L_pc{b}_
s_setprio 1
s_cmp_le_i32 s{sA}, {prio}
s_cbranch_scc1 L_pc{b}_
s_setprio 2
s_cmp_le_i32 s{sA}, {prio+1}
s_cbranch_scc1 L_pc{b}_
s_setprio 3
L_pc{b}_:''')
        if lp: a(f's_mov_b64 exec, 1\nds_add_rtn_u32 v{X+6}, v{X+4}, v{X+5}\ns_mov_b64 exec, -1')
        a(f'''ds_read_b32 v{COLW}, v{CP} offset:{L_CL+16*b}
s_cmp_ge_u32 s{sREM}, {R}
s_cbranch_scc1 L_gw{b}
s_cmp_eq_u32 s{sREM}, 0
s_cbranch_scc1 L_gend
s_setprio 3''')
        for m in range(R-1,1,-1):
            a(f'''s_waitcnt vmcnt({2*(m-1)})
s_cmp_eq_u32 s{sREM}, {m}
s_cbranch_scc1 L_gw{b}''')
        a(f'''s_waitcnt vmcnt(0)
L_gw{b}:
s_waitcnt lgkmcnt(0)
v_xad_u32 v{TMP}, v{COLW}, v{NOTN}, s{sK1}
v_bitop3_b32 v{DA}, v{EN}, s{sK3}, v{LO} bitop3:0x6a
v_bitop3_b32 v{DA+1}, v{EN+1}, s{sK3}, v{LO+1} bitop3:0x6a''')
        if lp:
            a(f'''v_readfirstlane_b32 s{sA}, v{X+6}
s_add_u32 s{sMY}, s{sMY}, s{sINC}
s_cmp_lt_u32 s{sREM}, {R}
s_cbranch_scc1 L_pc{b}_
s_sub_i32 s{sA}, s{sA}, s{sMY}
s_setprio 0
s_cmp_le_i32 s{sA}, {-lp}
s_cbranch_scc1 L_pc{b}_
s_setprio 1
s_cmp_le_i32 s{sA}, 0
s_cbranch_scc1 L_pc{b}_
s_setprio 2
s_cmp_le_i32 s{sA}, {lp}
s_cbranch_scc1 L_pc{b}_
s_setprio 3
L_pc{b}_:''')
        a(f's_waitcnt vmcnt({2*(R-1)})')
        for t in range(4): a(f'ds_read_b64_tr_b16 v[{AOP+2*t}:{AOP+2*t+1}], v{TRA+t} offset:{2048*b}')
        a(f'''ds_read_b64 v[{EN}:{EN+1}], v{AP} offset:{L_AL+64*(R+1+b)}
v_and_b32 v{B1}, s{sK2}, v{TMP}
v_lshlrev_b32 v{TMP}, 8, v{TMP}
v_and_b32 v{B0}, s{sK2}, v{TMP}
s_cmp_le_u32 s{sREM}, {R}
s_waitcnt lgkmcnt(1)
s_cbranch_scc1 L_gn{b}
s_cmp_lg_u32 s{sI}, s{sUE}
s_cbranch_scc1 L_gq{b}''')
        pollissue(1,PV)
        a(f'L_gq{b}:')
        issue(b,DA,DA+1)
        a(f'L_gn{b}:')
        for t in range(4): a(f'v_mfma_f32_16x16x16_bf16 v[{ACC+4*t}:{ACC+4*t+3}], v[{AOP+2*t}:{AOP+2*t+1}], v[{B0}:{B1}], v[{ACC+4*t}:{ACC+4*t+3}]')
        a(f's_sub_u32 s{sREM}, s{sREM}, 1')
    a(f'''v_add_u32 v{AP}, {64*R}, v{AP}
v_add_u32 v{CP}, {16*R}, v{CP}
s_branch L_gl
L_gend:
s_waitcnt lgkmcnt(0)
s_cmp_lg_u32 s{sSLOW}, 0
s_cbranch_scc1 L_slow
L_gdone:''')
    scatter()
    st(1)
    a(f'''s_cmp_eq_u32 s{sK}, 7
s_cbranch_scc1 L_final''')
    a('s_setprio 3')
    gstore()
    a('s_setprio 0')
    st(2)
    a(f'''s_add_u32 s{sEV}, s{sEV}, 1
s_add_u32 s{sTIN}, s{sTIN}, {TSTR}
s_addc_u32 s{sTIN+1}, s{sTIN+1}, 0
s_cmp_lg_u32 s{sW}, 15
s_cbranch_scc1 L_hA''')
    stats()
    a('''s_waitcnt vmcnt(0)
s_barrier''')
    sig_issue(0,sB)
    if defer and w15l==0: rows(1)
    sig_finish(0,sB,16,17)
    if defer and w15l==1: rows(1)
    st(4)
    a(f'''s_branch L_hB
L_hA:''')
    sl=[]
    stats(lambda x: sl.extend(y for y in x.split('\n') if y.strip()))
    for y in sl[:ssplit]: a(y)
    a('s_waitcnt vmcnt(0)')
    st(3)
    a('s_barrier')
    if defer: rows(1)
    for y in sl[ssplit:]: a(y)
    st(4)
    a('L_hB:')
    a(f'''s_cmp_lt_u32 s{sJ}, 254
s_cbranch_scc1 L_jend
s_cmp_lg_u32 s{sK}, 1
s_cbranch_scc1 L_jend''')
    a(f'''v_lshrrev_b32 v1, 4, v{LANE}           ; q
v_lshlrev_b32 v5, 4, v{LANE}
s_lshl_b32 s{sD}, s{sW}, 10
s_add_u32 s{sD}, s{sD}, {WGT}
s_cmp_eq_u32 s{sJ}, 254
s_cbranch_scc1 L_jr
v_bfe_u32 v0, v{LANE}, 2, 2
v_and_b32 v2, 3, v{LANE}
v_lshl_add_u32 v0, v0, 3, v2           ; 8*(i>>2)+(i&3)
s_and_b32 s{sA}, s{sW}, 1
s_lshl_b32 s{sA}, s{sA}, 12            ; s*32 rows*128B
s_and_b32 s{sB}, s{sW}, 4
s_lshl_b32 s{sB}, s{sB}, 3
s_and_b32 s{sC}, s{sW}, 2
s_lshl_b32 s{sC}, s{sC}, 1
s_add_u32 s{sB}, s{sB}, s{sC}
v_lshlrev_b32 v2, 7, v0
v_lshl_add_u32 v2, v1, 4, v2           ; row*128 + q*16
s_cmp_ge_u32 s{sW}, 8
s_cbranch_scc1 L_jw''')
    def aload():
        a(f'''buffer_load_dwordx4 v[8:11], v2, s[{sT1}:{sT1+3}], s{sA} offen
buffer_load_dwordx4 v[12:15], v2, s[{sT1}:{sT1+3}], s{sA} offen offset:64
buffer_load_dwordx4 v[16:19], v2, s[{sT1}:{sT1+3}], s{sA} offen offset:512
buffer_load_dwordx4 v[20:23], v2, s[{sT1}:{sT1+3}], s{sA} offen offset:576''')
    srd(sT1,12,8192); srd(sT2,14,8192)
    aload()
    a(f'''s_lshl_b32 s{sB}, s{sB}, 7
buffer_load_dwordx4 v[24:27], v2, s[{sT2}:{sT2+3}], s{sB} offen
buffer_load_dwordx4 v[28:31], v2, s[{sT2}:{sT2+3}], s{sB} offen offset:64
s_mov_b32 s{sC}, {fb(0.125*LOG2E):#x}
s_waitcnt vmcnt(0)
s_branch L_jm
L_jw:''')
    srd(sT1,16,8192); srd(sT2,18,8192)
    aload()
    a(f'''s_lshl_b32 s{sB}, s{sB}, 1
v_lshlrev_b32 v3, 1, v0
v_lshl_add_u32 v3, v1, 10, v3          ; (8q)*128 + col*2
v_add_u32 v4, 4096, v3''')
    for s in range(2):
        for j in range(8):
            a(f'buffer_load_ushort v{X+8*s+j}, v{3+s}, s[{sT2}:{sT2+3}], s{sB} offen offset:{128*j}')
    a('s_waitcnt vmcnt(0)')
    for i in range(8): a(f'v_lshl_or_b32 v{24+i}, v{X+2*i+1}, 16, v{X+2*i}')
    a(f'''s_mov_b32 s{sC}, 1.0
L_jm:
v_mfma_f32_16x16x32_bf16 v[{X}:{X+3}], v[8:11], v[24:27], 0
v_mfma_f32_16x16x32_bf16 v[{X+4}:{X+7}], v[16:19], v[24:27], 0
v_mfma_f32_16x16x32_bf16 v[{X}:{X+3}], v[12:15], v[28:31], v[{X}:{X+3}]
v_mfma_f32_16x16x32_bf16 v[{X+4}:{X+7}], v[20:23], v[28:31], v[{X+4}:{X+7}]''')
    for i in range(8): a(f'v_mul_f32 v{X+i}, s{sC}, v{X+i}')
    for i in range(4): a(f'v_cvt_pk_bf16_f32 v{X+8+i}, v{X+2*i}, v{X+2*i+1}')
    a(f'''buffer_store_dwordx4 v[{X+8}:{X+11}], v5, s[{sWS}:{sWS+3}], s{sD} offen sc1
s_branch L_jend
L_jr:
s_cmp_ge_u32 s{sW}, 2
s_cbranch_scc1 L_jend''')
    srd(sT1,20,128)
    a(f'''v_lshlrev_b32 v2, 4, v1
s_lshl_b32 s{sA}, s{sW}, 6
buffer_load_dwordx4 v[8:11], v2, s[{sT1}:{sT1+3}], s{sA} offen
v_lshlrev_b32 v3, 1, v{LANE}
buffer_load_ushort v4, v3, s[{sT1}:{sT1+3}], 0 offen
s_mov_b32 s{sM}, 0x11111111
s_mov_b32 s{sM+1}, 0x11111111
s_mov_b32 s{sM2}, 0x22222222
s_mov_b32 s{sM2+1}, 0x22222222
v_mov_b32 v6, 0x3c803c80
v_cndmask_b32 v6, 0, v6, s[{sM}:{sM+1}]
s_add_u32 s{sD}, s{sD}, 16384
s_waitcnt vmcnt(0)''')
    for i in range(4): a(f'v_cndmask_b32 v{X+8+i}, v6, v{8+i}, s[{sM2}:{sM2+1}]')
    a(f'''buffer_store_dwordx4 v[{X+8}:{X+11}], v5, s[{sWS}:{sWS+3}], s{sD} offen sc1
v_lshlrev_b32 v4, 16, v4''')
    for m in ('quad_perm:[1,0,3,2]','quad_perm:[2,3,0,1]','row_half_mirror','row_mirror'):
        a(f'v_add_f32_dpp v4, v4, v4 {m} row_mask:0xf bank_mask:0xf')
    allq(4,6)
    a(f'''s_mov_b32 s{sA}, {WGT+18432}
v_lshlrev_b32 v3, 2, v{LANE}
v_mov_b32 v{X+12}, v4
buffer_store_dword v{X+12}, v3, s[{sWS}:{sWS+3}], s{sA} offen sc1
L_jend:''')
    st(5)
    hopinit()
    joinB('h')
    a(f'''s_cmp_lg_u32 s{sK}, 4
s_cbranch_scc1 L_hD
s_lshl_b32 s{sA}, s{sW}, 10
s_add_u32 m0, s{sA}, {L_W}
s_add_u32 s{sA}, s{sA}, {WGT}
v_lshlrev_b32 v16, 4, v{LANE}
buffer_load_dwordx4 v16, s[{sWS}:{sWS+3}], s{sA} offen sc1 lds
v_mov_b32 v17, {WGT+18432}
buffer_load_dword v{TID}, v17, s[{sWS}:{sWS+3}], 0 offen sc1
s_cmp_ge_u32 s{sW}, 4
s_cbranch_scc1 L_hD
s_add_u32 m0, m0, 16384
s_cmp_ge_u32 s{sW}, 2
s_cbranch_scc1 L_hE
s_add_u32 s{sA}, s{sA}, 16384
buffer_load_dwordx4 v16, s[{sWS}:{sWS+3}], s{sA} offen sc1 lds
s_branch L_hD
L_hE:
s_getpc_b64 s[94:95]
L_pc2:
s_lshl_b32 s{sA}, s{sW}, 10
s_add_u32 s{sA}, s{sA}, lane_table-L_pc2-2048
v_add_u32 v16, s{sA}, v16
global_load_lds_dwordx4 v16, s[94:95]
L_hD:
s_barrier
s_branch L_hop''')
    a('L_final:\ns_setprio 0')
    if stamp:
        a(f'''s_lshl_b32 s{sA}, s2, 4
s_add_u32 s{sA}, s{sA}, s{sW}
s_lshl_b32 s{sA}, s{sA}, 8
s_add_u32 s88, s{sA}, {STAMP}
v_lshlrev_b32 v16, 2, v{LANE}
buffer_store_dword v{TS}, v16, s[{sWS}:{sWS+3}], s88 offen''')
    def fst(i):
        if stamp: a(f'''s_memrealtime s[80:81]
s_waitcnt lgkmcnt(0)
s_mov_b32 s{82+i}, s80''')
    if stamp:
        fst(0)
        a('s_memtime s[86:87]\ns_waitcnt lgkmcnt(0)')
    srd(sT1,22,N*128)
    sSW=12; sEPS=13; sG=14
    a(f'''v_readfirstlane_b32 s{sSW}, v{TID}
s_mov_b32 s{sM2}, 0x80808080
s_mov_b32 s{sM2+1}, 0x80808080
s_mov_b32 vcc_lo, 0x00ff00ff
s_mov_b32 vcc_hi, 0xff00ff00
s_mov_b32 s{sM}, 0x33333333
s_mov_b32 s{sM+1}, 0x33333333
s_mov_b32 s4, 0x55555555
s_mov_b32 s5, 0x55555555
s_mov_b32 s{sEPS}, {fb(1e-5):#x}
s_lshl_b32 s{sB}, s{sW}, 1
s_mul_i32 s{sD}, s{sJ}, {DE}
s_add_u32 s{sD}, s{sD}, s{sB}
s_lshl_b32 s{sD}, s{sD}, 7
s_mul_i32 s{sC}, s{sJ}, {DL}
s_add_u32 s{sC}, s{sC}, s{sB}
s_add_u32 s{sC}, s{sC}, {BB}
s_lshl_b32 s{sC}, s{sC}, 7
s_sub_u32 s{sA}, s{sRB}, {L_W//2}''')
    for g in range(4):
        a(f'''s_mov_b32 s{sG+2*g}, {0x000f000f<<(4*g):#x}
s_mov_b32 s{sG+2*g+1}, {0x000f000f<<(4*g):#x}''')
    a(f'''s_cmp_ge_u32 s{sW}, 2
s_cbranch_scc1 L_fin6''')
    LX=4608; LWB=16
    tab=[[],[]]
    for l in range(64):
        q=l>>4; n=l&15; valid=(q>>1)==(n>>3); diag=q==(n>>2); X_=0xffff
        sg=((q>>1)*8+(n&7)+(0 if valid else 16))*2
        ow=(q*256+((n*16)^((q&1)*128)))//4; c=l&3; ot=((c>>1)*256+(((l>>2)*16)^((c>>1)*128))+(c&1)*8)//4
        gw=(LX+n*(16 if gmode else 8))//4 if diag else X_
        pra=(LX+l*8)//4 if valid else X_; prb=(LX+(l^8)*8)//4 if valid else X_
        iv=(0x3f800000 if n&1 else 0x3f80) if diag else 0
        tab[0]+=[sg|ow<<16, ot|gw<<16, pra|prb<<16, iv]
        k2=(LX+q*384+n*8)//4; k3=k2+((n>>1)&1)*32+(n&1); k2+=64
        if gmode: k2=(LX+q*384+n*16)//4; k3=k2+2+(n&1 if gmode==2 else 0)
        ww=((l>>2)*16+(q&1)*8+(l&3)*2)//2
        p=n>>1; wr=(LWB+(p*4+q)*16)//4 if (n&1)==(q>>1) else X_
        sta=n*16; swa=(n*144+q*8)//4 if n<14 else X_; sra=((l>>3)*144+(l&7)*16)//4
        oad=q*256+n
        tab[1]+=[k2|k3<<16, ww|wr<<16, sta|swa<<16, sra|oad<<16]
    def final(NP):
        it=[]
        def e(x):
            if isinstance(x,list): it.append(x); return
            for ln in x.split('\n'):
                ln=ln.split(';')[0].strip()
                if ln: it.append(ln)
        WA=69; SG=TG; SI=TG+1; PW=68
        tup=lambda r,n=4: f'v[{r}:{r+n-1}]'
        mad=lambda d,r,h,sc=4,b=sRB: e(f'v_mad_u32_u16 v{d}, v{r}, {sc}, s{b} op_sel:[{h},0,0,0]')
        e(f'''v_lshlrev_b32 v{WA}, 4, v{LANE}
v_add_u32 v{WA}, {L_W}, v{WA}
v_lshl_add_u32 v{PW}, v{LANE}, 3, s{sRB}
ds_read_b32 v{SG}, v{WA} offset:{L_TB-L_W}''')
        mad(SG,SG,0)
        for f in (6,7): e(f'ds_read_b128 {tup(4*f)}, v{WA} offset:{1024*f}')
        stats(e,NP,7)
        for f in range(6): e(f'ds_read_b128 {tup(4*f)}, v{WA} offset:{1024*f}')
        UA=[32,36,40,64][:nua]; UB=44; SAa=52; SBb=56; Y=60
        cnt=[0]
        def scores(p,S):
            for t in (3,0,1,2):
                u=UA[cnt[0]%len(UA)]; cnt[0]+=1
                e(f'''v_mfma_f32_16x16x32_bf16 {tup(u)}, {tup(8*t)}, {tup(T(p))}, 0
v_mfma_f32_16x16x32_bf16 {tup(u)}, {tup(8*t+4)}, {tup(T(p)+4)}, {tup(u)}
v_cvt_pk_bf16_f32 v{UB+2*t}, v{u}, v{u+1}
v_cvt_pk_bf16_f32 v{UB+2*t+1}, v{u+2}, v{u+3}''')
            e(f'''v_mfma_f32_16x16x32_bf16 {tup(S)}, {tup(T(p))}, {tup(UB)}, 0
v_mfma_f32_16x16x32_bf16 {tup(S)}, {tup(T(p)+4)}, {tup(UB+4)}, {tup(S)}''')
        STA_=44
        for g in range((NP+1)//2):
            two=2*g+1<NP
            if two: scores(2*g+1,SBb)
            scores(2*g,SAa)
            e(f'ds_read_b32 v{SI}, v{SG} offset:{L_ST+256*g}')
            S=SAa
            if two:
                for r in range(4): e(f'v_cndmask_b32_dpp v{S+r}, v{SBb+r}, v{S+r}, vcc row_ror:8 row_mask:0xf bank_mask:0xf')
            e(f'''v_max3_f32 v{Y}, v{S}, v{S+1}, v{S+2}
v_max_f32 v{Y}, v{Y}, v{S+3}
v_mov_b32 v{Y+1}, v{Y}
v_permlane16_swap_b32 v{Y+1}, v{Y}
v_max_f32 v{Y}, v{Y}, v{Y+1}''')
            for r in range(4): e(f'v_sub_f32 v{S+r}, v{S+r}, v{Y}')
            for r in range(4): e(f'v_exp_f32 v{S+r}, v{S+r}')
            e(f'''v_add_f32 v{Y}, v{S}, v{S+1}
v_add_f32 v{Y+1}, v{S+2}, v{S+3}
v_add_f32 v{Y}, v{Y}, v{Y+1}
v_mov_b32 v{Y+1}, v{Y}
v_permlane16_swap_b32 v{Y+1}, v{Y}
v_add_f32 v{Y}, v{Y}, v{Y+1}
v_mul_f32 v{Y}, v{Y}, v{SI}
v_rcp_f32 v{Y}, v{Y}''')
            for r in range(4): e(f'v_mul_f32 v{S+r}, v{S+r}, v{Y}')
            e(f'''v_cvt_pk_bf16_f32 v{Y}, v{S}, v{S+1}
v_cvt_pk_bf16_f32 v{Y+1}, v{S+2}, v{S+3}''')
            if g==(NP+1)//2-1:
                for t in (3,0,1,2):
                    for s in range(2): e(f'ds_read_b128 {tup(8*t+4*s)}, v{WA} offset:{8192+1024*(2*t+s)}')
                e(f'''ds_read_b128 {tup(SBb)}, v{WA} offset:{L_TB-L_W}
ds_read_b128 {tup(STA_)}, v{WA} offset:16384
ds_read_b128 {tup(STA_+4)}, v{WA} offset:17408''')
            e(f'ds_write_b64 v{PW}, v[{Y}:{Y+1}] offset:{LX+768*g}')
        ZT=52; OW=60; OT=61; GW=62; PRA=63; PRB=PW
        mad(OW,SBb,1); mad(OT,SBb+1,0); mad(GW,SBb+1,1); mad(PRA,SBb+2,0); mad(PRB,SBb+2,1)
        e(f'''v_cndmask_b32 v{ZT+2}, 0, v{SBb+3}, s[{sM}:{sM+1}]
v_cndmask_b32 v{ZT+3}, v{SBb+3}, 0, s[{sM}:{sM+1}]
v_mov_b64 v[{ZT+6}:{ZT+7}], v[{ZT+2}:{ZT+3}]''')
        def o2reg(p,t):
            return (TG+16*(p//2)+4*t+2*(p&1)) if p<6 else (TG+48+2*t)
        free=[32,36,40,64]
        e(f'ds_read_b64 v[{T(0)-2}:{T(0)-1}], v{PRA}')
        gadj=0
        for p in range(NP):
            tp=T(p); ob=tp-2
            z=[]
            for t in range(4):
                u=free.pop(0); z.append(u)
                e(f'''v_mfma_f32_16x16x32_bf16 {tup(u)}, {tup(tp)}, {tup(8*t)}, 0
v_mfma_f32_16x16x32_bf16 {tup(u)}, {tup(tp+4)}, {tup(8*t+4)}, {tup(u)}''')
            for t in range(4):
                zt=ZT+4*(t&1); b=tp-2+2*t; u=z[t]
                if t: e(f'v_mov_b64 v[{b}:{b+1}], v[{b-2}:{b-1}]')
                e(f'''v_cvt_pk_bf16_f32 v{zt}, v{u}, v{u+1}
v_cvt_pk_bf16_f32 v{zt+1}, v{u+2}, v{u+3}
v_mfma_f32_16x16x32_bf16 {tup(u)}, {tup(zt)}, {tup(b)}, 0''')
            if p+1<NP: e(f'ds_read_b64 v[{tp+6}:{tp+7}], v{PRB if (p+1)&1 else PRA} offset:{768*((p+1)//2)}')
            for t in range(4):
                e(f'''v_cvt_pk_bf16_f32 v{ob+2*t}, v{z[t]}, v{z[t]+1}
v_cvt_pk_bf16_f32 v{ob+2*t+1}, v{z[t]+2}, v{z[t]+3}''')
            img=2048*(p&1)
            g_,a0=(z[2],z[3]) if gsel else (z[0],z[1])
            free=[z[0],z[1],z[2],z[3]] if gsel else [z[2],z[3],z[0],z[1]]
            e(f'''ds_write_b128 v{OW}, {tup(ob)} offset:{img}
ds_write_b128 v{OW}, {tup(ob+4)} offset:{img+1024}
v_mfma_f32_16x16x32_bf16 {tup(g_)}, {tup(ob)}, {tup(ob)}, 0
v_mfma_f32_16x16x32_bf16 {tup(g_)}, {tup(ob+4)}, {tup(ob+4)}, {tup(g_)}
v_mfma_f32_16x16x32_bf16 {tup(a0)}, {tup(STA_)}, {tup(ob)}, 0
v_mfma_f32_16x16x32_bf16 {tup(a0)}, {tup(STA_+4)}, {tup(ob+4)}, {tup(a0)}''')
            if p&1 or p==NP-1:
                for pp in ((p-1,p) if p&1 else (p,)):
                    for t in range(4):
                        r=o2reg(pp,t)
                        e(f'ds_read_b64_tr_b16 v[{r}:{r+1}], v{OT} offset:{2048*(pp&1)+512*t}')
            if gmode==0:
                if p==5:
                    e(f'v_add_u32 v{GW}, {384*5}, v{GW}'); gadj=5
                o=48*(p-gadj)
                e(f'''ds_write2_b64 v{GW}, v[{g_}:{g_+1}], v[{g_+2}:{g_+3}] offset0:{o} offset1:{o+16}
ds_write_b64 v{GW}, v[{a0}:{a0+1}] offset:{8*o+256}''')
            elif gmode==1:
                e(f'''v_cndmask_b32 v{g_}, v{g_+2}, v{g_}, s[{sM}:{sM+1}]
v_cndmask_b32 v{g_+1}, v{g_+3}, v{g_+1}, s[{sM}:{sM+1}]
v_cndmask_b32 v{a0+2}, v{g_+1}, v{g_}, s[4:5]
ds_write_b96 v{GW}, v[{a0}:{a0+2}] offset:{384*p}''')
            else:
                e(f'''v_cndmask_b32 v{a0+2}, v{g_+2}, v{g_}, s[{sM}:{sM+1}]
v_cndmask_b32 v{a0+3}, v{g_+3}, v{g_+1}, s[{sM}:{sM+1}]
ds_write_b128 v{GW}, {tup(a0)} offset:{384*p}''')
        F=0; K=16; OAD=K+8; TB=28; ZR=44
        K2,K3,WW,WR,CR,IW,IR,P8=range(K,K+8)
        e(f'''ds_read_b128 {tup(TB)}, v{WA} offset:{L_TB-L_W+1024}
v_mov_b64 v[{ZR}:{ZR+1}], 0
v_lshrrev_b32 v{P8}, 1, v{WA}
v_add_u32 v{P8}, s{sA}, v{P8}
v_mov_b32 v{OAD+2}, {OOB}
ds_write_b64 v{P8}, v[{ZR}:{ZR+1}] offset:{LWB}''')
        mad(K2,TB,0); mad(K3,TB,1); mad(WW,TB+1,0,2); mad(WR,TB+1,1); mad(CR,TB+2,0); mad(IW,TB+2,1); mad(IR,TB+3,0)
        mad(OAD,TB+3,1,16,sD); mad(OAD+1,TB+3,1,16,sC)
        for i,np_ in enumerate((nE//2,NP-nE//2)):
            if np_<4: e(f'v_mov_b32_dpp v{OAD+i}, v{OAD+2} quad_perm:[0,1,2,3] row_mask:{(0xf<<np_)&0xf:#x} bank_mask:0xf')
        Rr=lambda h:(0,8)[h]
        red=lambda op,x,y: '\n'.join(f'{op}_dpp v{{{x}}}, v{{{y if i==0 else x}}}, v{{{y if i==0 else x}}} {m} row_mask:0xf bank_mask:0xf' for i,m in enumerate(('quad_perm:[1,0,3,2]','quad_perm:[2,3,0,1]','row_half_mirror')))
        for h in range(2):
            r=Rr(h)
            e(f'''ds_read_b32 v{r}, v{K3} offset:{1536*h}
ds_read_b64 v[{r+2}:{r+3}], v{K2} offset:{1536*h}
ds_read_b64 v[{r+4}:{r+5}], v{P8} offset:{L_ST+512*h}''')
        for h in range(2):
            r=Rr(h)
            e(f'''v_mul_f32 v{{q}}, {fb(1/64):#x}, v{{q}}
v_fma_f32 v{{q}}, -v{{s}}, v{{s}}, v{{q}}
v_max_f32 v{{q}}, 0, v{{q}}
v_mul_f32 v{{a}}, v{{g}}, v{{g}}
v_fma_f32 v{{q}}, v{{a}}, v{{q}}, s{sEPS}
v_rsq_f32 v{{q}}, v{{q}}
v_fma_f32 v{{d}}, -v{{s}}, s{sSW}, v{{d}}
v_mul_f32 v{{a}}, {fb(LOG2E):#x}, v{{g}}
v_mul_f32 v{{d}}, v{{d}}, v{{a}}
v_mul_f32 v{{d}}, v{{d}}, v{{q}}
{red('v_max_f32','a','d')}
v_sub_f32 v{{d}}, v{{d}}, v{{a}}
v_exp_f32 v{{d}}, v{{d}}
v_mul_f32 v{{m}}, v{{m}}, v{{d}}
{red('v_add_f32','a','d')}
{red('v_add_f32','m','m')}
v_rcp_f32 v{{a}}, v{{a}}
v_mul_f32 v{{d}}, v{{d}}, v{{g}}
v_mul_f32 v{{d}}, v{{d}}, v{{a}}
v_mul_f32 v{{m}}, v{{m}}, v{{a}}
v_cvt_pk_bf16_f32 v{{d}}, v{{d}}, v{{d}}'''.format(q=r,a=r+1,s=r+2,d=r+3,g=r+4,m=r+5))
        for h in range(2):
            r=Rr(h)
            e(f'''ds_write_b16 v{WW}, v{r+3} offset:{LWB+256*h}
ds_write_b32 v{P8}, v{r+5} offset:{L_ST+512*h}''')
        WT=32; CI=28; WG=48
        e(f'ds_read_b32 v{CI}, v{CR} offset:{L_ST}')
        for g in range((NP+1)//2):
            e(f'''v_cndmask_b32 v{WG+g}, v{OAD+2}, v{WR}, s[{sG+2*g}:{sG+2*g+1}]
ds_read_b128 {tup(WT+4*g)}, v{WG+g}''')
        e(f'''v_mov_b32 v{CI+1}, v{CI}
v_mov_b64 v[{CI+2}:{CI+3}], v[{CI}:{CI+1}]''')
        for g in range((NP+1)//2):
            two=2*g+1<NP
            for t in range(4):
                c=tup(CI) if g==0 else tup(F+4*t)
                r=o2reg(2*g,t)
                if two: e(f'v_mfma_f32_16x16x32_bf16 {tup(F+4*t)}, {tup(r)}, {tup(WT+4*g)}, {c}')
                else: e(f'v_mfma_f32_16x16x16_bf16 {tup(F+4*t)}, {tup(r,2)}, {tup(WT+4*g,2)}, {c}')
        for t in range(4):
            e(f'''v_cvt_pk_bf16_f32 v{52+2*t}, v{F+4*t}, v{F+4*t+1}
v_cvt_pk_bf16_f32 v{53+2*t}, v{F+4*t+2}, v{F+4*t+3}''')
            if t&1: e(f'ds_write2_b64 v{IW}, v[{50+2*t}:{51+2*t}], v[{52+2*t}:{53+2*t}] offset0:{4*t-4} offset1:{4*t}')
        e(f'''ds_read_b128 v[32:35], v{IR}
ds_read_b128 v[36:39], v{IR} offset:{144*nE}
buffer_store_dwordx4 v[32:35], v{OAD}, s[{sT1}:{sT1+3}], 0 offen {oaux}
buffer_store_dwordx4 v[36:39], v{OAD+1}, s[{sT1}:{sT1+3}], 0 offen {oaux}''')
        if fskip:
            import re
            k0=next(i for i,x in enumerate(it) if isinstance(x,str) and x.startswith('v_mfma'))
            k1=next(i for i,x in enumerate(it) if isinstance(x,str) and x.startswith('ds_read_b128 v[28:31], v69 offset:19456'))
            it=it[:k0]+[x for x in it[k0:k1] if not re.match(fskip,x)]+it[k1:]
        out=schedule(it,ldslat=ldslat,window=window,verbose=True)
        n=len(out); nxt=0
        for i,ln in enumerate(out):
            if nxt<len(fprio) and i>=n*nxt//len(fprio):
                a(f's_setprio {fprio[nxt]}'); nxt+=1
            a(ln)
    final(7)
    a('s_branch L_fend\nL_fin6:')
    final(6)
    a('L_fend:')
    if stamp:
        fst(2)
        a('s_memtime s[80:81]\ns_waitcnt lgkmcnt(0)\ns_sub_u32 s86, s80, s86')
        a('s_waitcnt vmcnt(0)')
        fst(3)
        a(f'''v_mov_b32 v0, s82
v_mov_b32 v1, s84
v_mov_b32 v2, s85
v_mov_b32 v3, s86
v_mov_b32 v4, {60*4}
s_mov_b64 exec, 1
buffer_store_dwordx4 v[0:3], v4, s[{sWS}:{sWS+3}], s88 offen''')
    if enc:
        a(f'''s_cmp_lg_u32 s2, {encwg}
s_cbranch_scc1 L_end
s_cmp_lg_u32 s{sW}, 12
s_cbranch_scc1 L_end
s_waitcnt vmcnt(0)
s_memrealtime s[80:81]
s_waitcnt lgkmcnt(0)
{'s_mov_b32 s84, s80' if enc[1] is None else ''}
s_sub_u32 s82, s84, s82
s_mul_i32 s82, s82, {enc[2]}
s_min_u32 s82, s82, 100000
L_encs:
s_memrealtime s[84:85]
s_waitcnt lgkmcnt(0)
s_sub_u32 s84, s84, s80
s_cmp_lt_u32 s84, s82
s_cbranch_scc1 L_encs''')
    a('L_end:\ns_endpgm')
    body=a.pad(verbose=True)
    ref=open('standalone__hybrid_graph_tf_nagphormer__graph.s.ref').read().split('\n')
    head=[l for l in ref if l.startswith(';') and '@launch' not in l]
    out='\n'.join(head)+f'''
; @launch grid=(256,1,1) block=(1024,1,1) lds={LDS_BYTES}
.amdgcn_target "amdgcn-amd-amdhsa--gfx950"
.text
.globl {KNAME}
.p2align 8
.type {KNAME},@function
{KNAME}:
'''+body+'.p2align 4\n.type lane_table,@object\nlane_table:\n'+''.join('  .long '+', '.join(f'{x:#x}' for x in t[i:i+4])+'\n' for t in tab for i in range(0,256,4))+'.size lane_table, 2048\n'+f'''.section .rodata,"a"
.p2align 6
.amdhsa_kernel {KNAME}
  .amdhsa_next_free_vgpr 128
  .amdhsa_next_free_sgpr 100
  .amdhsa_accum_offset 128
  .amdhsa_group_segment_fixed_size 0
  .amdhsa_kernarg_size 96
  .amdhsa_user_sgpr_count 2
  .amdhsa_user_sgpr_kernarg_segment_ptr 1
  .amdhsa_system_sgpr_workgroup_id_x 1
  .amdhsa_float_denorm_mode_32 3
.end_amdhsa_kernel
'''
    return out
if __name__=='__main__':
    kw=eval('dict('+(sys.argv[2] if len(sys.argv)>2 else '')+')')
    open(sys.argv[1] if len(sys.argv)>1 else 'standalone__hybrid_graph_tf_nagphormer__graph.s','w').write(gen(**kw))
```

```python
import sys, struct
sys.path.insert(0,'gen')
from asmlib import Asm
from sched import schedule
N=50000; E=800000; NPW=196; CH=3125
KNAME='standalone__hybrid_graph_tf_nagphormer__graph_kernel'
TSTR=16<<20
MISC=112<<20
CHSTR=12544
OFFS=4<<20
SYNC=5<<20
STAMP=6<<20
WGT=(5<<20)+(512<<10)
PROBE=14<<20
WSTR=8960
L_RING=0; L_AL=6144; CAP=352; L_CL=L_AL+CAP*4; L_ST=7936
L_W=16*WSTR
L_CNT1=L_W+13312
L_SH=L_W+16384
L_CNT2=L_SH; L_SA=L_SH; L_TB=L_SH+2048; L_MISC=7904
LDS_BYTES=L_SH+4096
assert LDS_BYTES==163840 and L_CL+CAP<=L_ST and L_ST+1024<=WSTR
fb=lambda x: struct.unpack('<I',struct.pack('<f',x))[0]
LOG2E=1.4426950408889634
OOB=0x80000000
TREC=13<<20
PADE=0x00ffff80

def gen(R=3, NBAR=6, stamp=False, force_slow=False, spinmax=1<<18, reps=1, sfirst=False, prio=0, skip='', dbg=False, enc=None, nopf=False, oaux='sc1', encwg=100, encw=12, ldslat=96, window=10**9, fprio=(), fskip='', sord='r', rep=1, cloc=0, psleep=1, g0p=(1,2,4,4), early=0, pfm=2, ev1=2, nE=6, defer=True, nogate=False, ppi=2, fin=2, fr=(14,24,44), gi=1, nua=4, gsel=1, gmode=2, sflag=1, ssplit=32, w15l=1, npf=0, lp=0, pp1=1, sf0=1, pf0=0, pfp=False, pfk=99):
    a=Asm()
    assert R==2
    DE=16*nE; DL=NPW-DE; BB=256*DE
    ACC=0; AOP=16; B0=24; B1=25; COLW=26; TMP=27; EN=28; DA=30; TRA=32; LO=36; AP=38; CP=39; NOTN=40
    DIS=41; SA=42; X=44; TID=62; S1=63; TRD=64; STA=65; SWA=66; SRA=67; LANE=68; TS=69
    TG=70; T0=72; PA=70; PV=71
    T=lambda p:T0+8*p
    sWG=2; sW=3; sTIN=28; sTOUT=32; sWS=36; sT1=40; sT2=44
    sU=48; sREM=49; sBA=50; sBD=51; sRB=52; sK=53; sSLOW=54; sNB=55; sA=56; sB=57; sC=58; sD=59
    sK1=60; sK2=61; sSPIN=62; sEV=63; sM=64
    sP0=66; sP1=68; sPM=70; sSEG=71; sOFF=72; sCNT=73; sSTART=74; sBK=75; sSI=76; sXC=77; sDB=96; sPA=86; sPM2=87; sTN=6; sK3=7; sJ=89; sUE=5; sSB=4; sMY=66; sINC=67; sI=8; sTH=9; sPOL=10; sTM=11; LT=4096; sM2=78
    nst=[0]
    def st(i):
        if enc:
            for j,pt in enumerate(enc[:2]):
                if pt is not None and 0<=pt<100 and i<8 and pt%8==i:
                    nst[0]+=1
                    a(f'''s_cmp_lg_u32 s{sSI}, {pt-i}
s_cbranch_scc1 L_enc{nst[0]}
s_memrealtime s[{82+2*j}:{83+2*j}]
s_waitcnt lgkmcnt(0)
L_enc{nst[0]}:''')
        if stamp and (stamp!='lite' or i==0):
            a(f'''s_memrealtime s[80:81]
s_waitcnt lgkmcnt(0)
s_add_u32 m0, s{sSI}, {i}
s_nop 0
v_writelane_b32 v{TS}, s80, m0''')
    def sx(i):
        if enc:
            for j,pt in enumerate(enc[:2]):
                if pt==100+i: a(f's_memrealtime s[{82+2*j}:{83+2*j}]\ns_waitcnt lgkmcnt(0)')
        if i<7: st(8*i+6)
    def srd(d,lo,nbytes):
        a(f'''s_mov_b32 s{d}, s{lo}
s_mov_b32 s{d+1}, s{lo+1}
s_mov_b32 s{d+2}, {nbytes}
s_mov_b32 s{d+3}, 0x20000''')
    uid=[0]
    def L(x):
        uid[0]+=1; return f'L_{x}_{uid[0]}'
    def spin(lab):
        a(f'''{'s_sleep %d'%psleep if psleep else ''}
s_add_u32 s{sSPIN}, s{sSPIN}, 1
s_cmp_lt_u32 s{sSPIN}, {spinmax}
s_cbranch_scc1 {lab}
s_endpgm''')
    G0=T0; PE=T0+8; PB=PE+8; PK=PB+8; PQ=PK+8; PC=PQ+16
    if enc and enc[0]==-1: a('s_memrealtime s[82:83]')
    if stamp: a('s_memrealtime s[84:85]')
    ids=f'''s_and_b32 s{sJ}, s2, 7
s_lshl_b32 s{sJ}, s{sJ}, 5
s_lshr_b32 s{sB}, s2, 3
s_add_u32 s{sJ}, s{sJ}, s{sB}
s_mov_b32 s{sSI}, 0
s_mov_b32 s{sSPIN}, 0
v_mov_b32 v{TS}, 0
s_mul_i32 s{sRB}, s{sW}, {WSTR}
v_lshrrev_b32 v28, 4, v{LANE}
v_bfe_u32 v29, v{LANE}, 3, 1
v_lshl_add_u32 v28, v28, 5, v29
s_lshl_b32 s{sB}, s{sW}, 1
v_add_u32 v28, s{sB}, v28
v_cmp_gt_u32 vcc, {DL}, v28
s_mul_i32 s{sD}, s{sJ}, {DL}
s_add_u32 s{sD}, s{sD}, {BB}
v_add_u32 v29, s{sD}, v28
v_mov_b32 v19, 0x01000000
v_cndmask_b32 v29, v19, v29, vcc
v_cmp_gt_u32 vcc, {DE}, v28
s_mul_i32 s{sD}, s{sJ}, {DE}
v_add_u32 v28, s{sD}, v28
v_cndmask_b32 v28, v19, v28, vcc
v_and_b32 v19, 0x70, v2
v_lshl_add_u32 v20, v28, 7, v19
v_lshl_add_u32 v21, v29, 7, v19
v_lshlrev_b32 v24, 1, v28
v_lshlrev_b32 v25, 1, v29'''
    a(f'''s_cmp_ge_u32 s2, 256
s_cbranch_scc1 L_end
s_load_dwordx16 s[4:19], s[0:1], 0
s_load_dwordx8 s[20:27], s[0:1], 64
v_lshrrev_b32 v1, 6, v0
v_and_b32 v{LANE}, 63, v0
v_readfirstlane_b32 s{sW}, v1
v_lshlrev_b32 v2, 4, v0
s_mul_i32 s{sA}, s2, {CH*4}
s_mov_b32 s{sT1+2}, {E*4}
s_mov_b32 s{sT1+3}, 0x20000
s_mov_b32 s{sT2+2}, {E*4}
s_mov_b32 s{sT2+3}, 0x20000
s_cmp_ge_u32 s{sW}, 13
s_cbranch_scc1 L_pf''')
    if not early: a(ids)
    a(f'''s_waitcnt lgkmcnt(0)
s_mov_b64 s[{sT2}:{sT2+1}], s[8:9]
s_mov_b64 s[{sT1}:{sT1+1}], s[6:7]
buffer_load_dwordx4 v[4:7], v2, s[{sT2}:{sT2+3}], s{sA} offen
buffer_load_dwordx4 v[8:11], v2, s[{sT1}:{sT1+3}], s{sA} offen
s_branch L_nopf
L_pf:''')
    if not early: a(ids)
    def codepf():
        a(f'''s_cmp_lg_u32 s{sW}, {13 if not nopf else 99}
s_cbranch_scc1 L_pfe
s_getpc_b64 s[94:95]
L_pc1:
v_lshlrev_b32 v8, 7, v{LANE}''')
        if pfm<2:
            a('''global_load_dword v4, v8, s[94:95]
v_add_u32 v8, 8192, v8
global_load_dword v5, v8, s[94:95]
v_add_u32 v8, 8192, v8
v_min_u32 v6, L_end-L_pc1, v8
global_load_dword v6, v6, s[94:95]
v_add_u32 v8, 8192, v8
v_min_u32 v8, L_end-L_pc1, v8
global_load_dword v7, v8, s[94:95]''')
        else:
            a(f'''s_lshr_b32 s{sC}, s2, 3
s_lshl_b32 s{sC}, s{sC}, 7
v_lshl_add_u32 v8, v8, 5, s{sC}
v_min_u32 v8, L_end-L_pc1, v8
s_mov_b64 exec, 0xff
global_load_dword v4, v8, s[94:95]
s_mov_b64 exec, -1''')
        a('L_pfe:')
    if pfm%2==0: codepf()
    a(f'''L_nopf:
v_mov_b32 v16, 0
v_lshlrev_b32 v3, 2, v0
s_cmp_ge_u32 s{sW}, 4
s_cbranch_scc1 L_noedge
v_add_u32 v22, {L_CNT1}, v3
ds_write_b32 v22, v16
ds_write_b32 v22, v16 offset:{L_CNT2-L_CNT1}
ds_write_b32 v16, v16 offset:{L_MISC}
ds_write_b32 v16, v16 offset:{L_MISC+4}
ds_write_b32 v16, v16 offset:{L_MISC+8}
L_noedge:''')
    if early: a(ids)
    a(f'''s_waitcnt lgkmcnt(0)
s_add_u32 s26, s26, 0x1fffff
s_addc_u32 s27, s27, 0
s_and_b32 s26, s26, 0xffe00000
s_add_u32 s{sWS}, s26, {MISC}
s_addc_u32 s{sWS+1}, s27, 0
s_mov_b32 s{sWS+2}, {8<<20}
s_mov_b32 s{sWS+3}, 0x20000''')
    srd(sDB,24,256); srd(sT1,4,N*128); srd(sT2,10,N*2)
    a(f'''s_cmp_lg_u32 s{sW}, 15
s_cbranch_scc1 L_b1
buffer_load_dword v4, v16, s[{sDB}:{sDB+3}], 0 offen offset:128 sc1
s_cmp_ge_u32 s2, 24
s_cbranch_scc1 L_b1
v_lshlrev_b32 v6, 4, v{LANE}
v_mov_b32 v8, 0
v_mov_b32 v9, 0
v_mov_b32 v10, 0
v_mov_b32 v11, 0
s_lshl_b32 s{sA}, s2, 10
s_cmp_lt_u32 s2, 8
s_cbranch_scc1 L_z8
s_add_u32 s{sA}, s{sA}, {SYNC+32768-8192}
buffer_store_dwordx4 v[8:11], v6, s[{sWS}:{sWS+3}], s{sA} offen sc1
s_branch L_b1
L_z8:
s_add_u32 s{sA}, s{sA}, {SYNC}
buffer_store_dwordx4 v[8:11], v6, s[{sWS}:{sWS+3}], s{sA} offen sc1
s_add_u32 s{sA}, s{sA}, 8192
buffer_store_dwordx4 v[8:11], v6, s[{sWS}:{sWS+3}], s{sA} offen sc1
s_add_u32 s{sA}, s{sA}, 8192
buffer_store_dwordx4 v[8:11], v6, s[{sWS}:{sWS+3}], s{sA} offen sc1
L_b1:''')
    if stamp: a(f'v_writelane_b32 v{TS}, s84, 0')
    if enc: st(0)
    a('s_waitcnt lgkmcnt(0)\ns_barrier')
    if pfm%2==1: codepf()
    a(f'''s_cmp_lg_u32 s{sW}, 15
s_cbranch_scc1 L_xl
s_cmp_lg_u32 s2, 0
s_cbranch_scc1 L_xl
s_waitcnt vmcnt(0)
v_mov_b32 v6, 1
s_mov_b64 exec, 1
buffer_store_dword v6, v16, s[{sDB}:{sDB+3}], 0 offen sc1
s_mov_b64 exec, -1
L_xl:
buffer_load_dwordx4 v[{X}:{X+3}], v20, s[{sT1}:{sT1+3}], 0 offen
buffer_load_dwordx4 v[{X+4}:{X+7}], v21, s[{sT1}:{sT1+3}], 0 offen
buffer_load_ushort v26, v24, s[{sT2}:{sT2+3}], 0 offen
buffer_load_ushort v27, v25, s[{sT2}:{sT2+3}], 0 offen
v_mov_b32 v{TID}, v0
s_add_u32 s90, s26, {PROBE}
s_addc_u32 s91, s27, 0
s_add_u32 s92, s26, {MISC+SYNC}
s_addc_u32 s93, s27, 0
s_mov_b32 s{sEV}, 0
s_mov_b32 s{sK}, 0
s_getreg_b32 s{sXC}, hwreg(HW_REG_XCC_ID, 0, 3)
s_lshl_b32 s{sXC}, s{sXC}, 7
s_add_u32 s{sXC}, s{sXC}, 16384''')
    srd(sTIN,26,TREC); srd(sTOUT,26,TREC)
    def g0(wait):
        a(f'''v_and_b32 v19, 7, v{LANE}
v_lshlrev_b32 v19, 4, v19''')
        for i in range(2):
            a(f'''v_and_b32 v24, 0xffc0, v{28+i}
v_add_lshl_u32 v24, v24, v{28+i}, 7
v_and_b32 v25, 0x2000, v{28+i}
v_or3_b32 v{SA+i}, v24, v25, v19
v_xor_b32 v{DA+i}, 0x2000, v{SA+i}''')
        a(f's_waitcnt vmcnt({wait})')
        for i in range(2):
            a(f'v_lshlrev_b32 v{26+i}, 16, v{26+i}')
            for c in range(4):
                a(f'''v_lshlrev_b32 v24, 16, v{X+4*i+c}
v_and_b32 v25, 0xffff0000, v{X+4*i+c}
v_mul_f32 v24, v24, v{26+i}
v_mul_f32 v25, v25, v{26+i}
v_cvt_pk_bf16_f32 v{G0+4*i+c}, v24, v25''')
    def g0s(pts):
        n=0
        for k,(i,r) in enumerate(((0,SA),(0,DA),(1,SA),(1,DA))):
            if g0p[k] in pts:
                a(f'buffer_store_dwordx4 v[{G0+4*i}:{G0+3+4*i}], v{r+i}, s[{sTOUT}:{sTOUT+3}], 0 offen sc1'); n+=1
        return n
    def consts():
        a(f'''v_and_b32 v12, 15, v{LANE}            ; n
v_lshrrev_b32 v13, 4, v{LANE}          ; q
v_mov_b32 v20, {PADE:#x}
v_mov_b32 v21, {PADE:#x}
v_mov_b32 v22, {PADE:#x}
v_mov_b32 v23, {PADE:#x}
v_lshl_add_u32 v17, v{LANE}, 4, s{sRB}
ds_write_b128 v17, v[20:23] offset:{L_AL}
ds_write_b128 v17, v[20:23] offset:{L_AL+CAP*4-1024}
v_bfe_u32 v16, v{LANE}, 2, 1           ; r&1
v_bfe_u32 v14, v{LANE}, 3, 1           ; i
v_lshl_add_u32 v16, v13, 1, v16        ; g
v_lshl_add_u32 v16, v16, 7, s{sRB}
v_lshl_add_u32 v16, v14, 10, v16
v_and_b32 v18, 1, v13
v_lshl_add_u32 v17, v18, 1, v14        ; swz
v_lshl_add_u32 v16, v17, 5, v16
v_and_b32 v17, 3, v{LANE}
v_lshl_add_u32 v{TRA}, v17, 3, v16
v_xor_b32 v{TRA+1}, 32, v{TRA}
v_xor_b32 v{TRA+2}, 64, v{TRA}
v_xor_b32 v{TRA+3}, 96, v{TRA}
v_and_b32 v16, 7, v{LANE}
v_lshlrev_b32 v18, 2, v18
v_xor_b32 v17, v18, v16
v_lshlrev_b32 v{LO}, 4, v17
v_xor_b32 v{LO+1}, 32, v{LO}
s_mov_b32 s{sA}, 0x01010101
v_mul_lo_u32 v{NOTN}, v12, s{sA}
v_not_b32 v{NOTN}, v{NOTN}
s_mov_b32 s{sK1}, 0x40404041
s_mov_b32 s{sK2}, 0x40004000
s_mov_b32 s{sK3}, {PADE:#x}
s_movk_i32 s{sA}, 144
v_lshl_add_u32 v17, v13, 3, s{sRB}
v_mad_u32_u24 v{SWA}, v12, s{sA}, v17
v_cmp_gt_u32 vcc, 14, v12
v_mov_b32 v17, {OOB}
v_lshrrev_b32 v18, 3, v{LANE}          ; g
v_cndmask_b32 v{SWA}, v17, v{SWA}, vcc
v_lshl_add_u32 v17, v16, 4, s{sRB}
v_mad_u32_u24 v{SRA}, v18, s{sA}, v17
v_lshl_add_u32 v17, v13, 4, s{sRB}
v_mad_u32_u24 v{TRD}, v14, s{sA}, v17
v_lshl_add_u32 v{STA}, v12, 6, s{sRB}   ; col*64 (+k*8)
v_mov_b32 v{S1}, 1.0''')
    def tok0():
        a(f'''ds_write_b128 v{SRA}, v[{X}:{X+3}]
ds_write_b128 v{SRA}, v[{X+4}:{X+7}] offset:{144*nE}
v_lshrrev_b32 v16, 3, v{LANE}
v_lshl_add_u32 v16, v16, 2, s{sRB}
ds_write_b32 v16, v26 offset:2304
ds_write_b32 v16, v27 offset:{2304+4*nE}
v_and_b32 v17, 15, v{LANE}
v_lshl_add_u32 v17, v17, 2, s{sRB}''')
        for t in range(4): a(f'ds_read_b64 v[{X+2*t}:{X+2*t+1}], v{SWA} offset:{32*t}')
        a(f'''ds_read_b32 v{DIS}, v17 offset:2304
s_waitcnt lgkmcnt(0)''')
        for i in range(8):
            a(f'''v_lshlrev_b32 v{ACC+2*i}, 16, v{X+i}
v_and_b32 v{ACC+2*i+1}, 0xffff0000, v{X+i}''')
    def scan(cnt, c, quad):
        a(f'''v_lshlrev_b32 v{c+9}, 4, v{LANE}
v_add_u32 v{c+9}, {cnt}, v{c+9}
ds_read_b128 v[{c}:{c+3}], v{c+9}
s_waitcnt lgkmcnt(0)
v_add_u32 v{c+6}, v{c}, v{c+1}
v_add_u32 v{c+7}, v{c+6}, v{c+2}
v_add_u32 v{c+4}, v{c+7}, v{c+3}''')
        if quad:
            a(f'''v_mov_b32_dpp v{c+5}, v{c+4} quad_perm:[0,0,1,2] row_mask:0xf bank_mask:0xf
v_cndmask_b32 v{c+5}, v{c+5}, 0, s[{sM}:{sM+1}]
v_add_u32 v{c+8}, v{c+4}, v{c+5}
v_mov_b32_dpp v{c+5}, v{c+8} quad_perm:[0,0,0,1] row_mask:0xf bank_mask:0xf
v_cndmask_b32 v{c+5}, v{c+5}, 0, s[{sM2}:{sM2+1}]
v_add_u32 v{c+8}, v{c+8}, v{c+5}''')
        else:
            a(f'v_mov_b32 v{c+8}, v{c+4}')
            for m in ('row_shr:1 row_mask:0xf','row_shr:2 row_mask:0xf','row_shr:4 row_mask:0xf','row_shr:8 row_mask:0xf','row_bcast:15 row_mask:0xa','row_bcast:31 row_mask:0xc'):
                a(f'v_add_u32_dpp v{c+8}, v{c+8}, v{c+8} {m} bank_mask:0xf')
        a(f'''v_sub_u32 v{c+4}, v{c+8}, v{c+4}
v_add_u32 v{c+4}, {'v24' if quad else L_W//4}, v{c+4}
v_add_u32 v{c+5}, v{c+4}, v{c}
v_add_u32 v{c+6}, v{c+4}, v{c+6}
v_add_u32 v{c+7}, v{c+4}, v{c+7}
ds_write_b128 v{c+9}, v[{c+4}:{c+7}] offset:1024''')
    def signal(t0=16,t1=17):
        l=L('ns')
        a(f'''s_lshl_b32 s{sA}, s{sEV}, 10
s_and_b32 s{sB}, s2, 7
s_lshl_b32 s{sB}, s{sB}, 7
s_add_u32 s{sA}, s{sA}, s{sB}
s_mov_b32 s{sB}, 1
s_waitcnt lgkmcnt(0)
s_atomic_add s{sB}, s[92:93], s{sA} glc
s_add_u32 s{sC}, s{sA}, {SYNC+8192}
v_mov_b32 v{t0}, 0
v_mov_b32 v{t1}, 1
s_waitcnt lgkmcnt(0)
s_cmp_lg_u32 s{sB}, 31
s_cbranch_scc1 {l}
''')
        if sf0: a(f's_add_u32 s{sA}, s{sA}, 8192\ns_atomic_add s{sB}, s[92:93], s{sA}')
        else: a(f'''s_mov_b64 exec, 1
buffer_store_dword v{t1}, v{t0}, s[{sWS}:{sWS+3}], s{sC} offen sc1
s_mov_b64 exec, -1''')
        a(f'{l}:')
    def poll():
        l=L('pl'); d=L('pd')
        a(f'''s_lshl_b32 s{sA}, s{sEV}, 10
s_add_u32 s{sA}, s{sA}, {SYNC+8192}
v_lshlrev_b32 v16, 7, v{LANE}
s_mov_b64 exec, 0xff
{l}:
buffer_load_dword v17, v16, s[{sWS}:{sWS+3}], s{sA} offen sc1
s_waitcnt vmcnt(0)
v_cmp_eq_u32 vcc, 0, v17
s_cbranch_vccz {d}''')
        spin(l)
        a(f'''{d}:
s_mov_b64 exec, -1''')
    def sig_issue(B,r):
        a(f'''s_lshl_b32 s{sA}, s{sEV}, 10
s_and_b32 s{sC}, s2, 7
s_lshl_b32 s{sC}, s{sC}, 7
s_add_u32 s{sA}, s{sA}, s{sC}
{'s_add_u32 s%d, s%d, 8192'%(sA,sA) if B else ''}
s_mov_b32 s{r}, 1
s_waitcnt lgkmcnt(0)
s_atomic_add s{r}, s[92:93], s{sA} glc''')
    def sig_finish(B,r,t0,t1):
        l=L('ns')
        a(f'''s_waitcnt lgkmcnt(0)
s_cmp_lg_u32 s{r}, 31
s_cbranch_scc1 {l}
s_and_b32 s{sC}, s2, 7
s_lshl_b32 s{sC}, s{sC}, 7
''')
        if sflag:
            a(f'''s_add_u32 s{sC}, s{sC}, 32768
s_add_u32 s{sA}, s{sC}, 8192
s_atomic_umax s{sEV}, s[92:93], s{sC}
s_atomic_umax s{sEV}, s[92:93], s{sA}''')
        else:
            a(f'''s_add_u32 s{sC}, s{sC}, {SYNC+32768}
v_lshlrev_b32 v{t0}, 13, v{LANE}
v_mov_b32 v{t1}, s{sEV}
s_mov_b64 exec, 3
buffer_store_dword v{t1}, v{t0}, s[{sWS}:{sWS+3}], s{sC} offen sc1
s_mov_b64 exec, -1''')
        a(f'{l}:')
    def signal2(B=0,t0=16,t1=17):
        sig_issue(B,sB); sig_finish(B,sB,t0,t1)
    def joinB(tag):
        dopf = npf and tag=='h'
        if dopf:
            a(f'''v_lshl_add_u32 v20, v{LANE}, 2, s{sRB}
ds_read_b32 v20, v20 offset:{L_AL+4*pf0}''')
        a(f'''v_mov_b32 v16, {L_MISC+4}
v_mov_b32 v17, 1
s_lshl_b32 s{sSB}, s{sEV}, 10
s_add_u32 s{sSB}, s{sSB}, {SYNC+8192}
s_and_b32 s{sA}, s2, 7
s_lshl_b32 s{sA}, s{sA}, 7
v_mov_b32 v19, s{sA}
s_waitcnt vmcnt(0)
s_mov_b64 exec, 1
ds_add_rtn_u32 v18, v16, v17
s_waitcnt lgkmcnt(0)
v_readfirstlane_b32 s{sA}, v18
s_and_b32 s{sA}, s{sA}, 15
s_cmp_lg_u32 s{sA}, 15
s_cbranch_scc1 L_jc{tag}
buffer_atomic_add v17, v19, s[{sWS}:{sWS+3}], s{sSB} offen sc1
L_jc{tag}:
s_mov_b64 exec, -1
s_cmp_eq_u32 s{sW}, 15
s_cbranch_scc1 L_ja{tag}''')
        if dopf:
            m=(1<<npf)-1
            a(f'''v_bitop3_b32 v20, v20, s{sK3}, v{LO} bitop3:0x6a
s_mov_b32 exec_lo, {m&0xffffffff:#x}
s_mov_b32 exec_hi, {m>>32:#x}
buffer_load_dword v{X+16}, v20, s[{sTIN}:{sTIN+3}], 0 offen sc1
s_mov_b64 exec, -1''')
        a(f's_branch L_jb{tag}\nL_ja{tag}:')
        poll2(0,18)
        a(f'L_jb{tag}:')
    def pollissue(B,t1):
        a(f'buffer_load_dword v{t1}, v{PA}, s[{sWS}:{sWS+3}], s{sSB if B else sPOL} offen sc1')
    def poll2(B=0,t1=17):
        l=L('pl'); d=L('pd')
        a(f'{l}:')
        pollissue(B,t1)
        a(f'''s_waitcnt vmcnt(0)
v_cmp_gt_u32 vcc, {32 if B else 's%d'%sEV}, v{t1}
s_cbranch_vccz {d}
{'s_sleep 8' if B else ''}''')
        spin(l)
        a(f'{d}:')
    def prep():
        a(f'''v_lshrrev_b32 v{AP}, 3, v{LANE}
v_lshl_add_u32 v{AP}, v{AP}, 3, s{sRB}
v_lshrrev_b32 v{CP}, 4, v{LANE}
v_lshl_add_u32 v{CP}, v{CP}, 2, s{sRB}''')
        for b in range(R): a(f'ds_read_b64 v[{X+2*b}:{X+2*b+1}], v{AP} offset:{L_AL+64*b}')
        a(f'''ds_read_b64 v[{EN}:{EN+1}], v{AP} offset:{L_AL+64*R}
s_mov_b32 s{sREM}, s{sU}
s_mov_b32 s{sBD}, s{sNB}
s_mov_b32 s{sI}, 0
s_waitcnt lgkmcnt(0)''')
        for b in range(2*R): a(f'v_bitop3_b32 v{X+b}, v{X+b}, s{sK3}, v{LO+(b&1)} bitop3:0x6a')
    def hopA(vec=True):
        a(f'''s_add_u32 s{sK}, s{sK}, 1
s_add_u32 s{sTOUT}, s{sTOUT}, {TSTR}
s_addc_u32 s{sTOUT+1}, s{sTOUT+1}, 0
s_mov_b32 s{sBA}, s{sTN}
s_and_b32 s{sTH}, s{sBA}, 31
s_mov_b32 s{sSEG}, 0
s_mov_b32 s{sOFF}, 0
s_mov_b32 s{sCNT}, 0''')
        if not vec: return
        a(f's_min_i32 s{sUE}, s{sUE}, {ppi}')
        for i in range(16): a(f'v_mov_b32 v{ACC+i}, 0')
        a(f'v_mov_b32 v{PV}, 0')
        if lp:
            a(f'''v_mov_b32 v{X+4}, {L_MISC+8}
ds_write_b32 v{X+4}, v{PV}
s_add_u32 s{sA}, s{sU}, 1
v_cvt_f32_u32 v{X+5}, s{sA}
v_rcp_f32 v{X+5}, v{X+5}
v_mul_f32 v{X+5}, 0x44800000, v{X+5}
v_cvt_u32_f32 v{X+5}, v{X+5}
v_readfirstlane_b32 s{sINC}, v{X+5}
s_lshl_b32 s{sINC}, s{sINC}, 4
s_lshr_b32 s{sMY}, s{sINC}, 1
s_sub_u32 s{sMY}, 0, s{sMY}''')
    def hopinit():
        hopA(); prep()
    def gstore():
        a(f'v_mul_f32 v{TMP}, v{S1}, v{DIS}')
        for t in range(4):
            for r in range(4): a(f'v_mul_f32 v{X+r}, v{TMP}, v{ACC+4*t+r}')
            a(f'''v_cvt_pk_bf16_f32 v{AOP+2*t}, v{X}, v{X+1}
v_cvt_pk_bf16_f32 v{AOP+2*t+1}, v{X+2}, v{X+3}
ds_write_b64 v{SWA}, v[{AOP+2*t}:{AOP+2*t+1}] offset:{32*t}''')
        a(f'''ds_read_b128 v[{X+8}:{X+11}], v{SRA}
ds_read_b128 v[{X+12}:{X+15}], v{SRA} offset:{144*nE}
v_xor_b32 v{DA}, 0x2000, v{SA}
v_xor_b32 v{DA+1}, 0x2000, v{SA+1}''')
        a('s_waitcnt lgkmcnt(1)')
        rows(0)
        a('s_waitcnt lgkmcnt(0)')
        if not defer: rows(1)
    def rows(i):
        for r in (DA,SA): a(f'buffer_store_dwordx4 v[{X+8+4*i}:{X+11+4*i}], v{r+i}, s[{sTOUT}:{sTOUT+3}], 0 offen sc1')
    def allq(r,t):
        a(f'''v_mov_b32 v{t}, v{r}
v_permlane16_swap_b32 v{t}, v{r}
v_add_f32 v{r}, v{r}, v{t}
v_mov_b32 v{t}, v{r}
v_permlane32_swap_b32 v{t}, v{r}
v_add_f32 v{r}, v{r}, v{t}''')
    def stats(a=a, NP=7, k=None):
        for i in range(2): a(f'v_add_f32 v{X+i}, v{ACC+i}, v{ACC+2+i}')
        for i in range(2): a(f'v_mul_f32 v{X+4+i}, v{ACC+i}, v{ACC+i}')
        for i in range(2,16):
            if i>=4: a(f'v_add_f32 v{X+i%2}, v{X+i%2}, v{ACC+i}')
            a(f'v_fmac_f32 v{X+4+i%2}, v{ACC+i}, v{ACC+i}')
        a(f'''v_add_f32 v{X}, v{X}, v{X+1}
v_add_f32 v{X+4}, v{X+4}, v{X+5}
v_mul_f32 v{X+5}, v{S1}, v{S1}
v_permlane16_swap_b32 v{X}, v{X+4}
v_add_f32 v{X}, v{X}, v{X+4}
v_mov_b32 v{X+4}, v{X}
v_mov_b32 v{X+6}, {fb(1e-5):#x}
v_permlane32_swap_b32 v{X}, v{X+4}
v_add_f32 v{X}, v{X}, v{X+4}
v_mul_f32 v{X}, {fb(1/64):#x}, v{X}
v_mov_b32 v{X+4}, v{X}
{'' if k is not None else 's_lshl_b32 s%d, s%d, 3'%(sA,sK)}
{'' if k is not None else 'v_add_u32 v%d, s%d, v%d'%(X+7,sA,STA)}
v_permlane16_swap_b32 v{X}, v{X+4}
v_fma_f32 v{X+4}, -v{X}, v{X}, v{X+4}
v_max_f32 v{X+4}, 0, v{X+4}
v_fmac_f32 v{X+6}, v{X+5}, v{X+4}      ; var+eps
v_rsq_f32 v{X+5}, v{X+6}
v_mul_f32 v{X+3}, v{X}, v{S1}          ; mu
v_mul_f32 v{X+2}, v{X+6}, v{X+5}       ; sigma
v_mul_f32 v{X+4}, v{X+5}, v{S1}
v_mul_f32 v{X+5}, v{X+5}, v{X+3}
ds_write_b64 v{X+7 if k is None else STA}, v[{X+2}:{X+3}] offset:{L_ST+(0 if k is None else 8*k)}''')
        for t in range(4):
            for r in range(4): a(f'v_fma_f32 v{ACC+4*t+r}, v{X+4}, v{ACC+4*t+r}, -v{X+5}')
            a(f'''v_cvt_pk_bf16_f32 v{AOP+2*t}, v{ACC+4*t}, v{ACC+4*t+1}
v_cvt_pk_bf16_f32 v{AOP+2*t+1}, v{ACC+4*t+2}, v{ACC+4*t+3}''')
            if k is None: a(f'ds_write_b64 v{SWA}, v[{AOP+2*t}:{AOP+2*t+1}] offset:{LT+32*t}')
            elif t&1: a(f'ds_write2_b64 v{SWA}, v[{AOP+2*t-2}:{AOP+2*t-1}], v[{AOP+2*t}:{AOP+2*t+1}] offset0:{4*t-4} offset1:{4*t}')
        if k is not None:
            for p in range(NP):
                a([f's_mov_b64 exec, s[{sM2}:{sM2+1}]']+[f'ds_read_b128 v[{T(p)+4*s}:{T(p)+4*s+3}], v{TRD} offset:{288*p+64*s}' for s in range(2)]+['s_mov_b64 exec, -1'])
            return
        a(f's_lshl_b32 s{sTM}, 0x01010101, s{sK}')
    def scatter():
        l=L('sc')
        a(f'''s_cmp_eq_u32 s{sTM}, 0
s_cbranch_scc1 {l}
s_mov_b32 exec_lo, s{sTM}
s_mov_b32 exec_hi, s{sTM}''')
        for p in range(7):
            if p==6: a(f's_cmp_ge_u32 s{sW}, 2\ns_cbranch_scc1 {l}b')
            for s in range(2): a(f'ds_read_b128 v[{T(p)+4*s}:{T(p)+4*s+3}], v{TRD} offset:{LT+288*p+64*s}')
        a(f'''{l}b:
s_mov_b64 exec, -1
s_mov_b32 s{sTM}, 0
{l}:''')
    a(f'''s_cmp_lt_u32 s{sW}, 13
s_cbranch_scc1 L_p1
s_cmp_eq_u32 s{sW}, 13
s_cbranch_scc1 L_p1_b2
s_cmp_eq_u32 s{sW}, 15
s_cbranch_scc1 L_w15
s_lshr_b32 s{sPA}, s2, 6
s_lshl_b32 s{sPA}, s{sPA}, 14
s_and_b32 s{sB}, s2, 63
s_lshl_b32 s{sB}, s{sB}, 7
s_add_u32 s{sPA}, s{sPA}, s{sB}
s_and_b32 s{sB}, s2, 8
s_lshl_b32 s{sB}, s{sB}, 10
s_add_u32 s{sPA}, s{sPA}, s{sB}
s_xor_b32 s{sB}, s{sPA}, 0x2000
s_mov_b32 s{sC}, 1
s_mov_b32 s{sD}, 1
s_atomic_add s{sC}, s[90:91], s{sPA} glc
s_atomic_add s{sD}, s[90:91], s{sB} glc
L_w15:''')
    consts()
    a(f'''s_barrier
s_barrier
s_cmp_eq_u32 s{sW}, 14
s_cbranch_scc1 L_w15q
v_mov_b32 v16, 0
L_w15p:
buffer_load_dword v17, v16, s[{sDB}:{sDB+3}], 0 offen sc1
s_waitcnt vmcnt(0)
v_readfirstlane_b32 s{sA}, v17
s_cmp_lg_u32 s{sA}, 0
s_cbranch_scc1 L_w15q''')
    spin('L_w15p')
    a('L_w15q:\ns_setprio 3')
    g0(0)
    if ev1<0:
        g0s((0,)); a('s_waitcnt vmcnt(0)')
    a('s_barrier')
    st(3)
    a(f'''s_cmp_eq_u32 s{sW}, 14
s_cbranch_scc1 L_w14''')
    signal()
    sx(2)
    a(f'''L_w14:''')
    tok0()
    stats()
    sx(10)
    a(f'''s_cmp_eq_u32 s{sW}, 14
s_cbranch_scc1 L_w14b''')
    poll()
    a(f'''s_branch L_w15s
L_w14b:
s_waitcnt lgkmcnt(0)
s_mov_b32 s{sC}, 0
s_mov_b32 s{sPM}, 0
s_mov_b32 s{sPM2}, 0
L_pr:
s_mov_b32 s{sB}, 1
s_memtime s[{sP0}:{sP0+1}]
s_waitcnt lgkmcnt(0)
s_atomic_add s{sB}, s[90:91], s{sPA} glc
s_waitcnt lgkmcnt(0)
s_memtime s[{sP1}:{sP1+1}]
s_waitcnt lgkmcnt(0)
s_sub_u32 s{sB}, s{sP0}, s{sP1}
{('s_sub_u32 s80, 0, s%d'%sB+chr(10)+'s_lshl_b32 s%d, s%d, 3'%(sD,sC)+chr(10)+'s_add_u32 m0, s%d, 15'%sD+chr(10)+'s_nop 0'+chr(10)+'v_writelane_b32 v%d, s80, m0'%TS) if stamp else ''}
s_max_u32 s{sB}, s{sPM}, s{sB}
s_mov_b32 s{sPM}, s{sPM2}
s_mov_b32 s{sPM2}, s{sB}
s_xor_b32 s{sPA}, s{sPA}, 0x2000
s_add_u32 s{sC}, s{sC}, 1
s_cmp_lt_u32 s{sC}, {reps}
s_cbranch_scc1 L_pr
s_lshr_b32 s{sA}, s{sPA}, 11
s_and_b32 s{sA}, s{sA}, 4
s_add_u32 s{sA}, s{sA}, s{sXC}
s_xor_b32 s{sB}, s{sA}, 4
{'s_atomic_umax s%d, s[92:93], s%d glc'%(sPM,sA) if reps>1 else ''}
s_atomic_umax s{sPM2}, s[92:93], s{sB} glc
L_w15s:
s_setprio 0''')
    sx(11)
    g0s((0,1,2) if ev1>=0 else (1,2))
    a('s_branch L_b5')
    a(f'''L_p1:
s_mov_b32 s{sA}, {BB}
s_mov_b32 s{sB}, {L_CNT1}
s_movk_i32 s{sD}, 0x2000
v_mov_b32 v2, 1
v_mov_b32 v32, {-(-(1<<20)//DE)}
v_mov_b32 v33, {-(-(1<<20)//DL)}
v_mov_b32 v34, {-DE}
v_mov_b32 v35, {-DL}''')
    for j in range(4): a(f'v_mov_b32 v{20+j}, 0x10000000')
    a('s_waitcnt vmcnt(5)')
    for j in range(4):
        m=(sM,sM2,sP0,sP1)[j]
        a(f'''v_cmp_le_u32 s[{m}:{m+1}], s{sA}, v{4+j}
v_subrev_u32 v16, s{sA}, v{4+j}
v_min_u32 v{4+j}, v16, v{4+j}
v_cndmask_b32 v16, v32, v33, s[{m}:{m+1}]
v_mul_u32_u24 v16, v16, v{4+j}
v_lshrrev_b32 v{36+j}, 20, v16            ; owner
v_lshl_add_u32 v{12+j}, v{36+j}, 2, s{sB}''')
    for j in range(4):
        if j<2: a(f'v_cmpx_gt_u32 vcc, {CH-j}, v3')
        a(f'ds_add_rtn_u32 v{20+j}, v{12+j}, v2')
    a('s_mov_b64 exec, -1')
    for j in range(4):
        m=(sM,sM2,sP0,sP1)[j]
        a(f'''v_cndmask_b32 v16, v34, v35, s[{m}:{m+1}]
v_mad_i32_i24 v{4+j}, v{36+j}, v16, v{4+j}
v_cndmask_b32 v16, 0, v34, s[{m}:{m+1}]
v_sub_u32 v{4+j}, v{4+j}, v16           ; r''')
    a('s_waitcnt vmcnt(4)')
    st(7)
    def entries(js):
        for j in js:
            a(f'''v_and_b32 v16, 0xffc0, v{8+j}
v_add_lshl_u32 v16, v16, v{8+j}, 7
v_and_or_b32 v16, v{8+j}, s{sD}, v16
v_lshrrev_b32 v17, 12, v{8+j}
v_lshl_or_b32 v16, v17, 24, v16
v_lshrrev_b32 v17, 4, v{4+j}
v_bfi_b32 v17, 1, v{4+j}, v17
v_lshrrev_b32 v18, 1, v{4+j}
v_lshl_or_b32 v17, v18, 28, v17
v_or_b32 v{8+j}, v16, v17''')
    entries(range(4))
    a(f'''L_p1_b2:
s_waitcnt lgkmcnt(0)
s_barrier''')
    st(2)
    scan(L_CNT1,X+8,False)
    a(f'''s_cmp_lg_u32 s{sW}, 13
s_cbranch_scc1 L_p1_sc''')
    for j in range(4): a(f'v_subrev_u32 v{X+12+j}, {L_W//4}, v{X+12+j}\nv_lshl_or_b32 v{X+8+j}, v{X+8+j}, 16, v{X+12+j}')
    a(f'''s_lshl_b32 s{sA}, s2, 10
s_add_u32 s{sA}, s{sA}, {OFFS}
v_lshlrev_b32 v16, 4, v{LANE}
buffer_store_dwordx4 v[{X+8}:{X+11}], v16, s[{sWS}:{sWS+3}], s{sA} offen sc1
s_waitcnt lgkmcnt(0)
s_barrier
s_branch L_p1_g
L_p1_sc:''')
    for j in range(4): a(f'ds_read_b32 v{16+j}, v{12+j} offset:1024')
    a(f'''v_lshlrev_b32 v2, 4, v0
v_add_u32 v3, {L_W}, v2
s_mul_i32 s{sA}, s2, {CHSTR}
v_cmp_gt_u32 vcc, {CHSTR}, v2
v_mov_b32 v1, {OOB}
v_cndmask_b32 v2, v1, v2, vcc''')
    for j in range(4):
        a(f'''s_waitcnt lgkmcnt(3)
v_add_lshl_u32 v{16+j}, v{16+j}, v{20+j}, 2
ds_write_b32 v{16+j}, v{8+j}''')
    a(f'''s_waitcnt lgkmcnt(0)
s_barrier''')
    sx(1)
    a(f'''ds_read_b128 v[4:7], v3
s_waitcnt lgkmcnt(0)
buffer_store_dwordx4 v[4:7], v2, s[{sWS}:{sWS+3}], s{sA} offen sc1
L_p1_g:''')
    g0(1)
    n=g0s((0,))
    if ev1<0: n=0; assert g0p[:2]==(0,0)
    a(f'''s_waitcnt vmcnt({n})
s_barrier''')
    st(3)
    a('L_b4:')
    g0s((1,))
    consts()
    tok0()
    g0s((2,))
    stats()
    sx(3)
    a('L_b5:')
    allB = max(g0p)<=2
    assert max(g0p[:2])<=2 and not ((MISC+SYNC)>>21)&1 and len(fr)<=5
    sRARE=sSTART; PV1=T0+55
    a(f'''s_lshl_b32 s{sBK}, s{sJ}, 2
s_add_u32 s{sBK}, s{sBK}, {OFFS}
v_lshrrev_b32 v{PC+1}, 2, v{TID}               ; segment
v_lshlrev_b32 v{PC+2}, 10, v{PC+1}
s_barrier
buffer_load_dword v{PC}, v{PC+2}, s[{sWS}:{sWS+3}], s{sBK} offen sc1''')
    st(4)
    a(f'''s_mov_b32 s{sEV}, 1
v_mul_u32_u24 v{PC+1}, {CHSTR}, v{PC+1}
v_and_b32 v{PC+2}, 3, v{TID}                   ; sub
v_mov_b32 v22, {OOB}
v_mov_b32 v23, {SYNC}
v_mov_b32 v24, {L_MISC}
v_mov_b32 v21, 1
v_mul_f32 v{S1}, 0.5, v{DIS}
v_and_b32 v{PA}, 7, v{LANE}
v_lshlrev_b32 v{PA}, 7, v{PA}
v_mov_b32 v{PV}, 0''')
    for j in range(8): a(f'v_mov_b32 v{PK+j}, 0x10000000')
    for i in range(16): a(f'v_mov_b32 v{ACC+i}, 0')
    a('s_waitcnt vmcnt(0)')
    sx(4)
    a(f'''v_and_b32 v{PC+3}, 0xffff, v{PC}
v_lshrrev_b32 v{PC}, 16, v{PC}                 ; count
v_lshl_add_u32 v{PC+1}, v{PC+3}, 2, v{PC+1}
v_lshl_add_u32 v{PC+3}, v{PC+2}, 4, v{PC+1}
buffer_load_dwordx4 v[{PE}:{PE+3}], v{PC+3}, s[{sWS}:{sWS+3}], 0 offen sc1
v_sub_u32 v16, v{PC}, v{PC+2}                  ; count-sub
v_cmp_lt_i32 vcc, 16, v16
v_lshl_add_u32 v{PC+3}, v{PC+2}, 2, v{PC+1}
v_mad_i32_i24 v17, v{PC+2}, -3, v{PC}          ; count-3*sub
v_cndmask_b32 v{PC+3}, v22, v{PC+3}, vcc
buffer_load_dword v{PE+7}, v{PC+3}, s[{sWS}:{sWS+3}], 0 offen offset:64 sc1
buffer_load_dwordx2 v[{PC+4}:{PC+5}], v23, s[{sWS}:{sWS+3}], s{sXC} offen sc1
v_cmp_lt_i32 vcc, 20, v17
v_mad_u32_u24 v{PC+3}, v{PC+2}, 12, v{PC+1}
v_sub_u32 v18, v17, v{PC+2}                    ; count-4*sub
s_or_b32 s{sRARE}, vcc_lo, vcc_hi
s_cbranch_scc0 L_p2r
v_cndmask_b32 v{PC+3}, v22, v{PC+3}, vcc
buffer_load_dwordx3 v[{PE+4}:{PE+6}], v{PC+3}, s[{sWS}:{sWS+3}], 0 offen offset:80 sc1
v_cmp_lt_i32 vcc, 32, v{PC}
s_cbranch_vccz L_p2r
ds_write_b32 v24, v21
L_p2r:
s_mov_b64 exec, 1
ds_add_rtn_u32 v25, v24, v21 offset:8
s_mov_b64 exec, -1
s_and_b32 s{sB}, s2, 7
s_lshl_b32 s{sB}, s{sB}, 7
s_add_u32 s{sB}, s{sB}, {1024+(8192 if allB else 0)}
s_mov_b32 s{sSB}, {SYNC+8192+1024}
s_mov_b32 s{sD}, {L_CNT2}
s_waitcnt lgkmcnt(0)
v_readfirstlane_b32 s{sA}, v25
s_cmp_lg_u32 s{sA}, 15
s_cbranch_scc1 L_p2a
s_atomic_add s{sEV}, s[92:93], s{sB}
L_p2a:
s_waitcnt vmcnt(0)''')
    sx(5)
    def bins(js,cmps):
        for j in js:
            a(f'''v_lshrrev_b32 v19, 24, v{PE+j}
v_lshl_add_u32 v{PB+j}, v19, 2, s{sD}''')
        for j,(k,r) in zip(js,cmps):
            if j==7: a('s_mov_b64 exec, -1')
            a(f'''v_cmpx_lt_i32 vcc, {k}, v{r}
ds_add_rtn_u32 v{PK+j}, v{PB+j}, v21''')
        a('s_mov_b64 exec, -1')
    bins((0,1,2,3,7),((0,18),(1,18),(2,18),(3,18),(16,16)))
    a(f's_cmp_eq_u32 s{sRARE}, 0\ns_cbranch_scc1 L_p2s')
    bins((4,5,6),((20,17),(21,17),(22,17)))
    a('L_p2s:')
    g0s((4,))
    a(f'''v_cmp_gt_u32 s[{sM}:{sM+1}], v{PC+4}, v{PC+5}
v_mov_b32 v19, 0x2000
v_mov_b32 v20, v24
v_cndmask_b32 v19, 0, v19, s[{sM}:{sM+1}]
v_or_b32 v{LO}, v{LO}, v19
v_or_b32 v{LO+1}, v{LO+1}, v19
v_xor_b32 v{SA}, v{SA}, v19
v_xor_b32 v{SA+1}, v{SA+1}, v19
v_readfirstlane_b32 s{sPOL}, v19
s_mov_b32 s{sM}, 0x11111111
s_mov_b32 s{sM+1}, 0x11111111
s_mov_b32 s{sM2}, 0x33333333
s_mov_b32 s{sM2+1}, 0x33333333
v_lshrrev_b32 v25, 2, v{LANE}
v_mul_u32_u24 v24, {WSTR//4}, v25
s_add_u32 s{sPOL}, s{sPOL}, {SYNC+32768}
s_mov_b32 s{sD}, {SYNC+1024+(8192 if allB else 0)}
s_waitcnt lgkmcnt(0)
s_barrier''')
    st(5)
    a(f'''s_cmp_lg_u32 s{sW}, 15
s_cbranch_scc1 L_p2q
buffer_load_dword v{PV1}, v{PA}, s[{sWS}:{sWS+3}], s{sD} offen sc1
L_p2q:
ds_read_b32 v20, v20''')
    scan(L_CNT2,X+8,True)
    for j in (0,1,2,3,7): a(f'ds_read_b32 v{PQ+j}, v{PB+j} offset:1024')
    a(f'''s_lshl_b32 s{sA}, s{sW}, 2
s_add_u32 s{sA}, s{sA}, 3
v_readlane_b32 s{sU}, v{X+16}, s{sA}
s_sub_u32 s{sA}, s{sA}, {3-nE//4}
v_readlane_b32 s{sUE}, v{X+12+nE%4}, s{sA}
v_cmp_lt_u32 vcc, {CAP}, v{X+16}
v_readfirstlane_b32 s{sSLOW}, v20
s_add_u32 s{sU}, s{sU}, 15
s_lshr_b32 s{sU}, s{sU}, 4
s_lshr_b32 s{sA}, s{sRB}, 2
s_sub_u32 s{sUE}, s{sUE}, s{sA}
s_lshr_b32 s{sUE}, s{sUE}, 4
s_mul_i32 s{sA}, s{sU}, {fr[gi]}
s_add_u32 s{sA}, s{sA}, 32
s_lshr_b32 s{sA}, s{sA}, 6
s_min_u32 s{sUE}, s{sUE}, s{sA}
s_lshl_b32 s{sTN}, s{sU}, {5*len(fr)}
s_or_b32 s{sA}, vcc_lo, vcc_hi
s_or_b32 s{sSLOW}, s{sSLOW}, s{sA}
{'s_or_b32 s%d, s%d, 1'%(sSLOW,sSLOW) if force_slow else ''}
s_cbranch_scc1 L_p2d''')
    sx(6)
    def put(js):
        for j in js:
            a(f'''s_waitcnt lgkmcnt({len(js)-1})
v_add_lshl_u32 v{PQ+j}, v{PQ+j}, v{PK+j}, 2
ds_write_b32 v{PQ+j}, v{PE+j} offset:{L_AL}''')
    put((0,1,2,3,7))
    a(f's_cmp_eq_u32 s{sRARE}, 0\ns_cbranch_scc1 L_p2d')
    for j in (4,5,6): a(f'ds_read_b32 v{PQ+j}, v{PB+j} offset:1024')
    put((4,5,6))
    a('L_p2d:')
    for j,f in enumerate(fr):
        if j==gi: a(f's_lshl_b32 s{sA}, s{sUE}, {5*j}')
        else: a(f'''s_mul_i32 s{sA}, s{sU}, {f}
s_add_u32 s{sA}, s{sA}, 32
s_lshr_b32 s{sA}, s{sA}, 6
s_{'min' if j<=gi else 'max'}_u32 s{sA}, s{sA}, s{sUE}
s_lshl_b32 s{sA}, s{sA}, {5*j}''')
        a(f's_or_b32 s{sTN}, s{sTN}, s{sA}')
    a(f'''s_sub_u32 s{sUE}, s{sUE}, 2
{'s_min_i32 s%d, s%d, %d'%(sUE,sUE,ppi) if not pp1 else ''}
s_cmp_eq_u32 s{sW}, 15
s_cselect_b32 s{sUE}, s{sUE}, -1
s_cmp_eq_u32 s{sSLOW}, 0
s_cselect_b32 s{sNB}, {len(fr)}, 0
s_cselect_b32 s{sU}, s{sU}, 4''')
    hopA(False)
    a(f'''s_waitcnt vmcnt(0)
s_cmp_lg_u32 s{sW}, 15
s_cbranch_scc1 L_p2e
v_cmp_gt_u32 vcc, 32, v{PV1}
s_cbranch_vccz L_p2e
s_mov_b32 s{sSB}, s{sD}''')
    poll2(1,18)
    a(f'''s_mov_b32 s{sSB}, {SYNC+8192+1024}
L_p2e:
s_waitcnt lgkmcnt(0)
s_barrier''')
    prep()
    if not allB:
        a(f'''s_cmp_lg_u32 s{sW}, 14
s_cbranch_scc1 L_p2f
s_and_b32 s{sA}, s2, 7
s_lshl_b32 s{sA}, s{sA}, 7
s_add_u32 s{sA}, s{sA}, {8192+1024}
s_atomic_add s{sEV}, s[92:93], s{sA}
L_p2f:''')
    st(6)
    a(f'''L_hop:
s_add_u32 s{sSI}, s{sSI}, 8
s_setprio 3''')
    if stamp: a('s_memrealtime s[84:85]')
    if enc: st(0)
    a(f'''s_cmp_eq_u32 s{sSLOW}, 0
s_cbranch_scc1 L_gather
''')
    a(f's_cmp_lg_u32 s{sW}, 15\ns_cbranch_scc1 L_slow0')
    poll2(1)
    a(f'''L_slow0:
s_barrier
L_slow:
s_cmp_lt_u32 s{sOFF}, s{sCNT}
s_cbranch_scc1 L_slow2
s_cmp_ge_u32 s{sSEG}, 256
s_cbranch_scc1 L_gdone
s_lshl_b32 s{sA}, s{sSEG}, 10
v_mov_b32 v16, s{sA}
buffer_load_dword v17, v16, s[{sWS}:{sWS+3}], s{sBK} offen sc1
s_mul_i32 s{sSTART}, s{sSEG}, {CHSTR}
s_add_u32 s{sSEG}, s{sSEG}, 1
s_mov_b32 s{sOFF}, 0
s_waitcnt vmcnt(0)
v_readfirstlane_b32 s{sA}, v17
s_lshr_b32 s{sCNT}, s{sA}, 16
s_and_b32 s{sA}, s{sA}, 0xffff
s_lshl_b32 s{sA}, s{sA}, 2
s_add_u32 s{sSTART}, s{sSTART}, s{sA}
s_branch L_slow
L_slow2:
v_add_u32 v16, s{sOFF}, v{LANE}
v_lshl_add_u32 v17, v16, 2, s{sSTART}
buffer_load_dword v18, v17, s[{sWS}:{sWS+3}], 0 offen sc1
s_add_u32 s{sOFF}, s{sOFF}, 64
v_cmp_gt_u32 s[{sM}:{sM+1}], s{sCNT}, v16
s_waitcnt vmcnt(0)
v_lshrrev_b32 v19, 28, v18
v_cmp_eq_u32 vcc, s{sW}, v19
s_and_b64 s[{sM}:{sM+1}], s[{sM}:{sM+1}], vcc''')
    a('v_mov_b32 v20, v18\nv_and_b32 v21, 15, v18')
    a(f'''v_mov_b32 v22, {PADE:#x}
v_cndmask_b32 v20, v22, v20, s[{sM}:{sM+1}]
v_lshl_add_u32 v22, v{LANE}, 2, s{sRB}
v_add_u32 v23, s{sRB}, v{LANE}
ds_write_b32 v22, v20 offset:{L_AL}
ds_write_b8 v23, v21 offset:{L_CL}''')
    prep()
    def pacer(tag):
        a(f'''L_pa{tag}:
s_cmp_lt_u32 s{sI}, s{sTH}
s_cbranch_scc1 L_pb{tag}
s_cmp_eq_u32 s{sBD}, 0
s_cbranch_scc1 L_pb{tag}
s_sub_u32 s{sBD}, s{sBD}, 1
s_lshr_b32 s{sBA}, s{sBA}, 5
s_and_b32 s{sTH}, s{sBA}, 31
s_cmp_lg_u32 s{sBD}, {len(fr)-1-gi}
s_cbranch_scc1 L_pz{tag}
''')
        a(f'''s_cmp_lg_u32 s{sW}, 15
s_cbranch_scc1 L_pz{tag}
{'s_branch L_pz%s'%tag if nogate else ''}
s_waitcnt vmcnt(4)
v_cmp_gt_u32 vcc, 32, v{PV}
s_cbranch_vccz L_pz{tag}''')
        poll2(1,PV)
        a(f'''L_pz{tag}:
s_barrier
s_branch L_pa{tag}
L_pb{tag}:''')
    def issue(b,e0,e1):
        a(f'''s_add_u32 m0, s{sRB}, {2048*b}
s_add_u32 s{sI}, s{sI}, 1
buffer_load_dwordx4 v{e0}, s[{sTIN}:{sTIN+3}], 0 offen sc1 lds
s_add_u32 m0, s{sRB}, {2048*b+1024}
buffer_load_dwordx4 v{e1}, s[{sTIN}:{sTIN+3}], 0 offen sc1 lds''')
    a('L_gather:')
    for b in range(R):
        pacer(f'p{b}')
        a(f'''s_cmp_le_u32 s{sU}, {b}
s_cbranch_scc1 L_gl0''')
        issue(b,X+2*b,X+2*b+1)
    a('L_gl0:')
    if stamp: a(f's_waitcnt lgkmcnt(0)\ns_mov_b32 m0, s{sSI}\ns_nop 0\nv_writelane_b32 v{TS}, s84, m0')
    a(f'''L_gl0b:
s_cmp_lg_u32 s{sTM}, 0x01010101
s_cbranch_scc1 L_gl1
v_lshl_add_u32 v{TMP}, v{LANE}, 4, s{sRB}
ds_read_b128 v[{AOP}:{AOP+3}], v{TMP} offset:{L_AL}
ds_read_b128 v[{AOP+4}:{AOP+7}], v{TMP} offset:{L_AL+CAP*4-1024}
v_lshl_add_u32 v{TMP}, v{LANE}, 2, s{sRB}
s_mov_b32 s{sA}, 0x0c0c0400
s_mov_b32 s{sB}, 0x0f0f0f0f''')
    a('s_waitcnt lgkmcnt(0)')
    for h in range(2):
        a(f'''v_perm_b32 v{AOP+4*h}, v{AOP+4*h+1}, v{AOP+4*h}, s{sA}
v_perm_b32 v{AOP+4*h+2}, v{AOP+4*h+3}, v{AOP+4*h+2}, s{sA}
v_lshl_or_b32 v{AOP+4*h}, v{AOP+4*h+2}, 16, v{AOP+4*h}
v_and_b32 v{AOP+4*h}, s{sB}, v{AOP+4*h}
ds_write_b32 v{TMP}, v{AOP+4*h} offset:{L_CL+h*(CAP-256)}''')
    a('L_gl1:')
    scatter()
    a('L_gl:')
    for b in range(R):
        pacer(b)
        if prio and not lp:
            a(f'''s_sub_i32 s{sA}, s{sTH}, s{sI}
s_setprio 0
s_cmp_le_i32 s{sA}, {prio-1}
s_cbranch_scc1 L_pc{b}_
s_setprio 1
s_cmp_le_i32 s{sA}, {prio}
s_cbranch_scc1 L_pc{b}_
s_setprio 2
s_cmp_le_i32 s{sA}, {prio+1}
s_cbranch_scc1 L_pc{b}_
s_setprio 3
L_pc{b}_:''')
        if lp: a(f's_mov_b64 exec, 1\nds_add_rtn_u32 v{X+6}, v{X+4}, v{X+5}\ns_mov_b64 exec, -1')
        a(f'''ds_read_b32 v{COLW}, v{CP} offset:{L_CL+16*b}
s_cmp_ge_u32 s{sREM}, {R}
s_cbranch_scc1 L_gw{b}
s_cmp_eq_u32 s{sREM}, 0
s_cbranch_scc1 L_gend
s_setprio 3''')
        for m in range(R-1,1,-1):
            a(f'''s_waitcnt vmcnt({2*(m-1)})
s_cmp_eq_u32 s{sREM}, {m}
s_cbranch_scc1 L_gw{b}''')
        a(f'''s_waitcnt vmcnt(0)
L_gw{b}:
s_waitcnt lgkmcnt(0)
v_xad_u32 v{TMP}, v{COLW}, v{NOTN}, s{sK1}
v_bitop3_b32 v{DA}, v{EN}, s{sK3}, v{LO} bitop3:0x6a
v_bitop3_b32 v{DA+1}, v{EN+1}, s{sK3}, v{LO+1} bitop3:0x6a''')
        if lp:
            a(f'''v_readfirstlane_b32 s{sA}, v{X+6}
s_add_u32 s{sMY}, s{sMY}, s{sINC}
s_cmp_lt_u32 s{sREM}, {R}
s_cbranch_scc1 L_pc{b}_
s_sub_i32 s{sA}, s{sA}, s{sMY}
s_setprio 0
s_cmp_le_i32 s{sA}, {-lp}
s_cbranch_scc1 L_pc{b}_
s_setprio 1
s_cmp_le_i32 s{sA}, 0
s_cbranch_scc1 L_pc{b}_
s_setprio 2
s_cmp_le_i32 s{sA}, {lp}
s_cbranch_scc1 L_pc{b}_
s_setprio 3
L_pc{b}_:''')
        a(f's_waitcnt vmcnt({2*(R-1)})')
        for t in range(4): a(f'ds_read_b64_tr_b16 v[{AOP+2*t}:{AOP+2*t+1}], v{TRA+t} offset:{2048*b}')
        a(f'''ds_read_b64 v[{EN}:{EN+1}], v{AP} offset:{L_AL+64*(R+1+b)}
v_and_b32 v{B1}, s{sK2}, v{TMP}
v_lshlrev_b32 v{TMP}, 8, v{TMP}
v_and_b32 v{B0}, s{sK2}, v{TMP}
s_cmp_le_u32 s{sREM}, {R}
s_waitcnt lgkmcnt(1)
s_cbranch_scc1 L_gn{b}
s_cmp_lg_u32 s{sI}, s{sUE}
s_cbranch_scc1 L_gq{b}''')
        pollissue(1,PV)
        a(f'L_gq{b}:')
        issue(b,DA,DA+1)
        a(f'L_gn{b}:')
        for t in range(4): a(f'v_mfma_f32_16x16x16_bf16 v[{ACC+4*t}:{ACC+4*t+3}], v[{AOP+2*t}:{AOP+2*t+1}], v[{B0}:{B1}], v[{ACC+4*t}:{ACC+4*t+3}]')
        a(f's_sub_u32 s{sREM}, s{sREM}, 1')
    a(f'''v_add_u32 v{AP}, {64*R}, v{AP}
v_add_u32 v{CP}, {16*R}, v{CP}
s_branch L_gl
L_gend:
s_waitcnt lgkmcnt(0)
s_cmp_lg_u32 s{sSLOW}, 0
s_cbranch_scc1 L_slow
L_gdone:''')
    scatter()
    st(1)
    a(f'''s_cmp_eq_u32 s{sK}, 7
s_cbranch_scc1 L_final''')
    a('s_setprio 3')
    gstore()
    a('s_setprio 0')
    st(2)
    a(f'''s_add_u32 s{sEV}, s{sEV}, 1
s_add_u32 s{sTIN}, s{sTIN}, {TSTR}
s_addc_u32 s{sTIN+1}, s{sTIN+1}, 0
s_cmp_lg_u32 s{sW}, 15
s_cbranch_scc1 L_hA''')
    stats()
    a('''s_waitcnt vmcnt(0)
s_barrier''')
    sig_issue(0,sB)
    if defer and w15l==0: rows(1)
    sig_finish(0,sB,16,17)
    if defer and w15l==1: rows(1)
    st(4)
    a(f'''s_branch L_hB
L_hA:''')
    sl=[]
    stats(lambda x: sl.extend(y for y in x.split('\n') if y.strip()))
    for y in sl[:ssplit]: a(y)
    a('s_waitcnt vmcnt(0)')
    st(3)
    a('s_barrier')
    if defer: rows(1)
    for y in sl[ssplit:]: a(y)
    st(4)
    a('L_hB:')
    a(f'''s_cmp_lt_u32 s{sJ}, 254
s_cbranch_scc1 L_jend
s_cmp_lg_u32 s{sK}, 1
s_cbranch_scc1 L_jend''')
    a(f'''v_lshrrev_b32 v1, 4, v{LANE}           ; q
v_lshlrev_b32 v5, 4, v{LANE}
s_lshl_b32 s{sD}, s{sW}, 10
s_add_u32 s{sD}, s{sD}, {WGT}
s_cmp_eq_u32 s{sJ}, 254
s_cbranch_scc1 L_jr
v_bfe_u32 v0, v{LANE}, 2, 2
v_and_b32 v2, 3, v{LANE}
v_lshl_add_u32 v0, v0, 3, v2           ; 8*(i>>2)+(i&3)
s_and_b32 s{sA}, s{sW}, 1
s_lshl_b32 s{sA}, s{sA}, 12            ; s*32 rows*128B
s_and_b32 s{sB}, s{sW}, 4
s_lshl_b32 s{sB}, s{sB}, 3
s_and_b32 s{sC}, s{sW}, 2
s_lshl_b32 s{sC}, s{sC}, 1
s_add_u32 s{sB}, s{sB}, s{sC}
v_lshlrev_b32 v2, 7, v0
v_lshl_add_u32 v2, v1, 4, v2           ; row*128 + q*16
s_cmp_ge_u32 s{sW}, 8
s_cbranch_scc1 L_jw''')
    def aload():
        a(f'''buffer_load_dwordx4 v[8:11], v2, s[{sT1}:{sT1+3}], s{sA} offen
buffer_load_dwordx4 v[12:15], v2, s[{sT1}:{sT1+3}], s{sA} offen offset:64
buffer_load_dwordx4 v[16:19], v2, s[{sT1}:{sT1+3}], s{sA} offen offset:512
buffer_load_dwordx4 v[20:23], v2, s[{sT1}:{sT1+3}], s{sA} offen offset:576''')
    srd(sT1,12,8192); srd(sT2,14,8192)
    aload()
    a(f'''s_lshl_b32 s{sB}, s{sB}, 7
buffer_load_dwordx4 v[24:27], v2, s[{sT2}:{sT2+3}], s{sB} offen
buffer_load_dwordx4 v[28:31], v2, s[{sT2}:{sT2+3}], s{sB} offen offset:64
s_mov_b32 s{sC}, {fb(0.125*LOG2E):#x}
s_waitcnt vmcnt(0)
s_branch L_jm
L_jw:''')
    srd(sT1,16,8192); srd(sT2,18,8192)
    aload()
    a(f'''s_lshl_b32 s{sB}, s{sB}, 1
v_lshlrev_b32 v3, 1, v0
v_lshl_add_u32 v3, v1, 10, v3          ; (8q)*128 + col*2
v_add_u32 v4, 4096, v3''')
    for s in range(2):
        for j in range(8):
            a(f'buffer_load_ushort v{X+8*s+j}, v{3+s}, s[{sT2}:{sT2+3}], s{sB} offen offset:{128*j}')
    a('s_waitcnt vmcnt(0)')
    for i in range(8): a(f'v_lshl_or_b32 v{24+i}, v{X+2*i+1}, 16, v{X+2*i}')
    a(f'''s_mov_b32 s{sC}, 1.0
L_jm:
v_mfma_f32_16x16x32_bf16 v[{X}:{X+3}], v[8:11], v[24:27], 0
v_mfma_f32_16x16x32_bf16 v[{X+4}:{X+7}], v[16:19], v[24:27], 0
v_mfma_f32_16x16x32_bf16 v[{X}:{X+3}], v[12:15], v[28:31], v[{X}:{X+3}]
v_mfma_f32_16x16x32_bf16 v[{X+4}:{X+7}], v[20:23], v[28:31], v[{X+4}:{X+7}]''')
    for i in range(8): a(f'v_mul_f32 v{X+i}, s{sC}, v{X+i}')
    for i in range(4): a(f'v_cvt_pk_bf16_f32 v{X+8+i}, v{X+2*i}, v{X+2*i+1}')
    a(f'''buffer_store_dwordx4 v[{X+8}:{X+11}], v5, s[{sWS}:{sWS+3}], s{sD} offen sc1
s_branch L_jend
L_jr:
s_cmp_ge_u32 s{sW}, 2
s_cbranch_scc1 L_jend''')
    srd(sT1,20,128)
    a(f'''v_lshlrev_b32 v2, 4, v1
s_lshl_b32 s{sA}, s{sW}, 6
buffer_load_dwordx4 v[8:11], v2, s[{sT1}:{sT1+3}], s{sA} offen
v_lshlrev_b32 v3, 1, v{LANE}
buffer_load_ushort v4, v3, s[{sT1}:{sT1+3}], 0 offen
s_mov_b32 s{sM}, 0x11111111
s_mov_b32 s{sM+1}, 0x11111111
s_mov_b32 s{sM2}, 0x22222222
s_mov_b32 s{sM2+1}, 0x22222222
v_mov_b32 v6, 0x3c803c80
v_cndmask_b32 v6, 0, v6, s[{sM}:{sM+1}]
s_add_u32 s{sD}, s{sD}, 16384
s_waitcnt vmcnt(0)''')
    for i in range(4): a(f'v_cndmask_b32 v{X+8+i}, v6, v{8+i}, s[{sM2}:{sM2+1}]')
    a(f'''buffer_store_dwordx4 v[{X+8}:{X+11}], v5, s[{sWS}:{sWS+3}], s{sD} offen sc1
v_lshlrev_b32 v4, 16, v4''')
    for m in ('quad_perm:[1,0,3,2]','quad_perm:[2,3,0,1]','row_half_mirror','row_mirror'):
        a(f'v_add_f32_dpp v4, v4, v4 {m} row_mask:0xf bank_mask:0xf')
    allq(4,6)
    a(f'''s_mov_b32 s{sA}, {WGT+18432}
v_lshlrev_b32 v3, 2, v{LANE}
v_mov_b32 v{X+12}, v4
buffer_store_dword v{X+12}, v3, s[{sWS}:{sWS+3}], s{sA} offen sc1
L_jend:''')
    st(5)
    hopinit()
    joinB('h')
    a(f'''s_cmp_lg_u32 s{sK}, 4
s_cbranch_scc1 L_hD
s_lshl_b32 s{sA}, s{sW}, 10
s_add_u32 m0, s{sA}, {L_W}
s_add_u32 s{sA}, s{sA}, {WGT}
v_lshlrev_b32 v16, 4, v{LANE}
buffer_load_dwordx4 v16, s[{sWS}:{sWS+3}], s{sA} offen sc1 lds
v_mov_b32 v17, {WGT+18432}
buffer_load_dword v{TID}, v17, s[{sWS}:{sWS+3}], 0 offen sc1
s_cmp_ge_u32 s{sW}, 4
s_cbranch_scc1 L_hD
s_add_u32 m0, m0, 16384
s_cmp_ge_u32 s{sW}, 2
s_cbranch_scc1 L_hE
s_add_u32 s{sA}, s{sA}, 16384
buffer_load_dwordx4 v16, s[{sWS}:{sWS+3}], s{sA} offen sc1 lds
s_branch L_hD
L_hE:
s_getpc_b64 s[94:95]
L_pc2:
s_lshl_b32 s{sA}, s{sW}, 10
s_add_u32 s{sA}, s{sA}, lane_table-L_pc2-2048
v_add_u32 v16, s{sA}, v16
global_load_lds_dwordx4 v16, s[94:95]
L_hD:
s_barrier
s_branch L_hop''')
    a('L_final:\ns_setprio 0')
    if stamp:
        a(f'''s_lshl_b32 s{sA}, s2, 4
s_add_u32 s{sA}, s{sA}, s{sW}
s_lshl_b32 s{sA}, s{sA}, 8
s_add_u32 s88, s{sA}, {STAMP}
v_lshlrev_b32 v16, 2, v{LANE}
buffer_store_dword v{TS}, v16, s[{sWS}:{sWS+3}], s88 offen''')
    def fst(i):
        if stamp: a(f'''s_memrealtime s[80:81]
s_waitcnt lgkmcnt(0)
s_mov_b32 s{82+i}, s80''')
    if stamp:
        fst(0)
        a('s_memtime s[86:87]\ns_waitcnt lgkmcnt(0)')
    srd(sT1,22,N*128)
    sSW=12; sEPS=13; sG=14
    a(f'''v_readfirstlane_b32 s{sSW}, v{TID}
s_mov_b32 s{sM2}, 0x80808080
s_mov_b32 s{sM2+1}, 0x80808080
s_mov_b32 vcc_lo, 0x00ff00ff
s_mov_b32 vcc_hi, 0xff00ff00
s_mov_b32 s{sM}, 0x33333333
s_mov_b32 s{sM+1}, 0x33333333
s_mov_b32 s4, 0x55555555
s_mov_b32 s5, 0x55555555
s_mov_b32 s{sEPS}, {fb(1e-5):#x}
s_lshl_b32 s{sB}, s{sW}, 1
s_mul_i32 s{sD}, s{sJ}, {DE}
s_add_u32 s{sD}, s{sD}, s{sB}
s_lshl_b32 s{sD}, s{sD}, 7
s_mul_i32 s{sC}, s{sJ}, {DL}
s_add_u32 s{sC}, s{sC}, s{sB}
s_add_u32 s{sC}, s{sC}, {BB}
s_lshl_b32 s{sC}, s{sC}, 7
s_sub_u32 s{sA}, s{sRB}, {L_W//2}''')
    for g in range(4):
        a(f'''s_mov_b32 s{sG+2*g}, {0x000f000f<<(4*g):#x}
s_mov_b32 s{sG+2*g+1}, {0x000f000f<<(4*g):#x}''')
    a(f'''s_cmp_ge_u32 s{sW}, 2
s_cbranch_scc1 L_fin6''')
    LX=4608; LWB=16
    tab=[[],[]]
    for l in range(64):
        q=l>>4; n=l&15; valid=(q>>1)==(n>>3); diag=q==(n>>2); X_=0xffff
        sg=((q>>1)*8+(n&7)+(0 if valid else 16))*2
        ow=(q*256+((n*16)^((q&1)*128)))//4; c=l&3; ot=((c>>1)*256+(((l>>2)*16)^((c>>1)*128))+(c&1)*8)//4
        gw=(LX+n*(16 if gmode else 8))//4 if diag else X_
        pra=(LX+l*8)//4 if valid else X_; prb=(LX+(l^8)*8)//4 if valid else X_
        iv=(0x3f800000 if n&1 else 0x3f80) if diag else 0
        tab[0]+=[sg|ow<<16, ot|gw<<16, pra|prb<<16, iv]
        k2=(LX+q*384+n*8)//4; k3=k2+((n>>1)&1)*32+(n&1); k2+=64
        if gmode: k2=(LX+q*384+n*16)//4; k3=k2+2+(n&1 if gmode==2 else 0)
        ww=((l>>2)*16+(q&1)*8+(l&3)*2)//2
        p=n>>1; wr=(LWB+(p*4+q)*16)//4 if (n&1)==(q>>1) else X_
        sta=n*16; swa=(n*144+q*8)//4 if n<14 else X_; sra=((l>>3)*144+(l&7)*16)//4
        oad=q*256+n
        tab[1]+=[k2|k3<<16, ww|wr<<16, sta|swa<<16, sra|oad<<16]
    def final(NP):
        it=[]
        def e(x):
            if isinstance(x,list): it.append(x); return
            for ln in x.split('\n'):
                ln=ln.split(';')[0].strip()
                if ln: it.append(ln)
        WA=69; SG=TG; SI=TG+1; PW=68
        tup=lambda r,n=4: f'v[{r}:{r+n-1}]'
        mad=lambda d,r,h,sc=4,b=sRB: e(f'v_mad_u32_u16 v{d}, v{r}, {sc}, s{b} op_sel:[{h},0,0,0]')
        e(f'''v_lshlrev_b32 v{WA}, 4, v{LANE}
v_add_u32 v{WA}, {L_W}, v{WA}
v_lshl_add_u32 v{PW}, v{LANE}, 3, s{sRB}
ds_read_b32 v{SG}, v{WA} offset:{L_TB-L_W}''')
        mad(SG,SG,0)
        for f in (6,7): e(f'ds_read_b128 {tup(4*f)}, v{WA} offset:{1024*f}')
        stats(e,NP,7)
        for f in range(6): e(f'ds_read_b128 {tup(4*f)}, v{WA} offset:{1024*f}')
        UA=[32,36,40,64][:nua]; UB=44; SAa=52; SBb=56; Y=60
        cnt=[0]
        def scores(p,S):
            for t in (3,0,1,2):
                u=UA[cnt[0]%len(UA)]; cnt[0]+=1
                e(f'''v_mfma_f32_16x16x32_bf16 {tup(u)}, {tup(8*t)}, {tup(T(p))}, 0
v_mfma_f32_16x16x32_bf16 {tup(u)}, {tup(8*t+4)}, {tup(T(p)+4)}, {tup(u)}
v_cvt_pk_bf16_f32 v{UB+2*t}, v{u}, v{u+1}
v_cvt_pk_bf16_f32 v{UB+2*t+1}, v{u+2}, v{u+3}''')
            e(f'''v_mfma_f32_16x16x32_bf16 {tup(S)}, {tup(T(p))}, {tup(UB)}, 0
v_mfma_f32_16x16x32_bf16 {tup(S)}, {tup(T(p)+4)}, {tup(UB+4)}, {tup(S)}''')
        STA_=44
        for g in range((NP+1)//2):
            two=2*g+1<NP
            if two: scores(2*g+1,SBb)
            scores(2*g,SAa)
            e(f'ds_read_b32 v{SI}, v{SG} offset:{L_ST+256*g}')
            S=SAa
            if two:
                for r in range(4): e(f'v_cndmask_b32_dpp v{S+r}, v{SBb+r}, v{S+r}, vcc row_ror:8 row_mask:0xf bank_mask:0xf')
            e(f'''v_max3_f32 v{Y}, v{S}, v{S+1}, v{S+2}
v_max_f32 v{Y}, v{Y}, v{S+3}
v_mov_b32 v{Y+1}, v{Y}
v_permlane16_swap_b32 v{Y+1}, v{Y}
v_max_f32 v{Y}, v{Y}, v{Y+1}''')
            for r in range(4): e(f'v_sub_f32 v{S+r}, v{S+r}, v{Y}')
            for r in range(4): e(f'v_exp_f32 v{S+r}, v{S+r}')
            e(f'''v_add_f32 v{Y}, v{S}, v{S+1}
v_add_f32 v{Y+1}, v{S+2}, v{S+3}
v_add_f32 v{Y}, v{Y}, v{Y+1}
v_mov_b32 v{Y+1}, v{Y}
v_permlane16_swap_b32 v{Y+1}, v{Y}
v_add_f32 v{Y}, v{Y}, v{Y+1}
v_mul_f32 v{Y}, v{Y}, v{SI}
v_rcp_f32 v{Y}, v{Y}''')
            for r in range(4): e(f'v_mul_f32 v{S+r}, v{S+r}, v{Y}')
            e(f'''v_cvt_pk_bf16_f32 v{Y}, v{S}, v{S+1}
v_cvt_pk_bf16_f32 v{Y+1}, v{S+2}, v{S+3}''')
            if g==(NP+1)//2-1:
                for t in (3,0,1,2):
                    for s in range(2): e(f'ds_read_b128 {tup(8*t+4*s)}, v{WA} offset:{8192+1024*(2*t+s)}')
                e(f'''ds_read_b128 {tup(SBb)}, v{WA} offset:{L_TB-L_W}
ds_read_b128 {tup(STA_)}, v{WA} offset:16384
ds_read_b128 {tup(STA_+4)}, v{WA} offset:17408''')
            e(f'ds_write_b64 v{PW}, v[{Y}:{Y+1}] offset:{LX+768*g}')
        ZT=52; OW=60; OT=61; GW=62; PRA=63; PRB=PW
        mad(OW,SBb,1); mad(OT,SBb+1,0); mad(GW,SBb+1,1); mad(PRA,SBb+2,0); mad(PRB,SBb+2,1)
        e(f'''v_cndmask_b32 v{ZT+2}, 0, v{SBb+3}, s[{sM}:{sM+1}]
v_cndmask_b32 v{ZT+3}, v{SBb+3}, 0, s[{sM}:{sM+1}]
v_mov_b64 v[{ZT+6}:{ZT+7}], v[{ZT+2}:{ZT+3}]''')
        def o2reg(p,t):
            return (TG+16*(p//2)+4*t+2*(p&1)) if p<6 else (TG+48+2*t)
        free=[32,36,40,64]
        e(f'ds_read_b64 v[{T(0)-2}:{T(0)-1}], v{PRA}')
        gadj=0
        for p in range(NP):
            tp=T(p); ob=tp-2
            z=[]
            for t in range(4):
                u=free.pop(0); z.append(u)
                e(f'''v_mfma_f32_16x16x32_bf16 {tup(u)}, {tup(tp)}, {tup(8*t)}, 0
v_mfma_f32_16x16x32_bf16 {tup(u)}, {tup(tp+4)}, {tup(8*t+4)}, {tup(u)}''')
            for t in range(4):
                zt=ZT+4*(t&1); b=tp-2+2*t; u=z[t]
                if t: e(f'v_mov_b64 v[{b}:{b+1}], v[{b-2}:{b-1}]')
                e(f'''v_cvt_pk_bf16_f32 v{zt}, v{u}, v{u+1}
v_cvt_pk_bf16_f32 v{zt+1}, v{u+2}, v{u+3}
v_mfma_f32_16x16x32_bf16 {tup(u)}, {tup(zt)}, {tup(b)}, 0''')
            if p+1<NP: e(f'ds_read_b64 v[{tp+6}:{tp+7}], v{PRB if (p+1)&1 else PRA} offset:{768*((p+1)//2)}')
            for t in range(4):
                e(f'''v_cvt_pk_bf16_f32 v{ob+2*t}, v{z[t]}, v{z[t]+1}
v_cvt_pk_bf16_f32 v{ob+2*t+1}, v{z[t]+2}, v{z[t]+3}''')
            img=2048*(p&1)
            g_,a0=(z[2],z[3]) if gsel else (z[0],z[1])
            free=[z[0],z[1],z[2],z[3]] if gsel else [z[2],z[3],z[0],z[1]]
            e(f'''ds_write_b128 v{OW}, {tup(ob)} offset:{img}
ds_write_b128 v{OW}, {tup(ob+4)} offset:{img+1024}
v_mfma_f32_16x16x32_bf16 {tup(g_)}, {tup(ob)}, {tup(ob)}, 0
v_mfma_f32_16x16x32_bf16 {tup(g_)}, {tup(ob+4)}, {tup(ob+4)}, {tup(g_)}
v_mfma_f32_16x16x32_bf16 {tup(a0)}, {tup(STA_)}, {tup(ob)}, 0
v_mfma_f32_16x16x32_bf16 {tup(a0)}, {tup(STA_+4)}, {tup(ob+4)}, {tup(a0)}''')
            if p&1 or p==NP-1:
                for pp in ((p-1,p) if p&1 else (p,)):
                    for t in range(4):
                        r=o2reg(pp,t)
                        e(f'ds_read_b64_tr_b16 v[{r}:{r+1}], v{OT} offset:{2048*(pp&1)+512*t}')
            if gmode==0:
                if p==5:
                    e(f'v_add_u32 v{GW}, {384*5}, v{GW}'); gadj=5
                o=48*(p-gadj)
                e(f'''ds_write2_b64 v{GW}, v[{g_}:{g_+1}], v[{g_+2}:{g_+3}] offset0:{o} offset1:{o+16}
ds_write_b64 v{GW}, v[{a0}:{a0+1}] offset:{8*o+256}''')
            elif gmode==1:
                e(f'''v_cndmask_b32 v{g_}, v{g_+2}, v{g_}, s[{sM}:{sM+1}]
v_cndmask_b32 v{g_+1}, v{g_+3}, v{g_+1}, s[{sM}:{sM+1}]
v_cndmask_b32 v{a0+2}, v{g_+1}, v{g_}, s[4:5]
ds_write_b96 v{GW}, v[{a0}:{a0+2}] offset:{384*p}''')
            else:
                e(f'''v_cndmask_b32 v{a0+2}, v{g_+2}, v{g_}, s[{sM}:{sM+1}]
v_cndmask_b32 v{a0+3}, v{g_+3}, v{g_+1}, s[{sM}:{sM+1}]
ds_write_b128 v{GW}, {tup(a0)} offset:{384*p}''')
        F=0; K=16; OAD=K+8; TB=28; ZR=44
        K2,K3,WW,WR,CR,IW,IR,P8=range(K,K+8)
        e(f'''ds_read_b128 {tup(TB)}, v{WA} offset:{L_TB-L_W+1024}
v_mov_b64 v[{ZR}:{ZR+1}], 0
v_lshrrev_b32 v{P8}, 1, v{WA}
v_add_u32 v{P8}, s{sA}, v{P8}
v_mov_b32 v{OAD+2}, {OOB}
ds_write_b64 v{P8}, v[{ZR}:{ZR+1}] offset:{LWB}''')
        mad(K2,TB,0); mad(K3,TB,1); mad(WW,TB+1,0,2); mad(WR,TB+1,1); mad(CR,TB+2,0); mad(IW,TB+2,1); mad(IR,TB+3,0)
        mad(OAD,TB+3,1,16,sD); mad(OAD+1,TB+3,1,16,sC)
        for i,np_ in enumerate((nE//2,NP-nE//2)):
            if np_<4: e(f'v_mov_b32_dpp v{OAD+i}, v{OAD+2} quad_perm:[0,1,2,3] row_mask:{(0xf<<np_)&0xf:#x} bank_mask:0xf')
        Rr=lambda h:(0,8)[h]
        red=lambda op,x,y: '\n'.join(f'{op}_dpp v{{{x}}}, v{{{y if i==0 else x}}}, v{{{y if i==0 else x}}} {m} row_mask:0xf bank_mask:0xf' for i,m in enumerate(('quad_perm:[1,0,3,2]','quad_perm:[2,3,0,1]','row_half_mirror')))
        for h in range(2):
            r=Rr(h)
            e(f'''ds_read_b32 v{r}, v{K3} offset:{1536*h}
ds_read_b64 v[{r+2}:{r+3}], v{K2} offset:{1536*h}
ds_read_b64 v[{r+4}:{r+5}], v{P8} offset:{L_ST+512*h}''')
        for h in range(2):
            r=Rr(h)
            e(f'''v_mul_f32 v{{q}}, {fb(1/64):#x}, v{{q}}
v_fma_f32 v{{q}}, -v{{s}}, v{{s}}, v{{q}}
v_max_f32 v{{q}}, 0, v{{q}}
v_mul_f32 v{{a}}, v{{g}}, v{{g}}
v_fma_f32 v{{q}}, v{{a}}, v{{q}}, s{sEPS}
v_rsq_f32 v{{q}}, v{{q}}
v_fma_f32 v{{d}}, -v{{s}}, s{sSW}, v{{d}}
v_mul_f32 v{{a}}, {fb(LOG2E):#x}, v{{g}}
v_mul_f32 v{{d}}, v{{d}}, v{{a}}
v_mul_f32 v{{d}}, v{{d}}, v{{q}}
{red('v_max_f32','a','d')}
v_sub_f32 v{{d}}, v{{d}}, v{{a}}
v_exp_f32 v{{d}}, v{{d}}
v_mul_f32 v{{m}}, v{{m}}, v{{d}}
{red('v_add_f32','a','d')}
{red('v_add_f32','m','m')}
v_rcp_f32 v{{a}}, v{{a}}
v_mul_f32 v{{d}}, v{{d}}, v{{g}}
v_mul_f32 v{{d}}, v{{d}}, v{{a}}
v_mul_f32 v{{m}}, v{{m}}, v{{a}}
v_cvt_pk_bf16_f32 v{{d}}, v{{d}}, v{{d}}'''.format(q=r,a=r+1,s=r+2,d=r+3,g=r+4,m=r+5))
        for h in range(2):
            r=Rr(h)
            e(f'''ds_write_b16 v{WW}, v{r+3} offset:{LWB+256*h}
ds_write_b32 v{P8}, v{r+5} offset:{L_ST+512*h}''')
        WT=32; CI=28; WG=48
        e(f'ds_read_b32 v{CI}, v{CR} offset:{L_ST}')
        for g in range((NP+1)//2):
            e(f'''v_cndmask_b32 v{WG+g}, v{OAD+2}, v{WR}, s[{sG+2*g}:{sG+2*g+1}]
ds_read_b128 {tup(WT+4*g)}, v{WG+g}''')
        e(f'''v_mov_b32 v{CI+1}, v{CI}
v_mov_b64 v[{CI+2}:{CI+3}], v[{CI}:{CI+1}]''')
        for g in range((NP+1)//2):
            two=2*g+1<NP
            for t in range(4):
                c=tup(CI) if g==0 else tup(F+4*t)
                r=o2reg(2*g,t)
                if two: e(f'v_mfma_f32_16x16x32_bf16 {tup(F+4*t)}, {tup(r)}, {tup(WT+4*g)}, {c}')
                else: e(f'v_mfma_f32_16x16x16_bf16 {tup(F+4*t)}, {tup(r,2)}, {tup(WT+4*g,2)}, {c}')
        for t in range(4):
            e(f'''v_cvt_pk_bf16_f32 v{52+2*t}, v{F+4*t}, v{F+4*t+1}
v_cvt_pk_bf16_f32 v{53+2*t}, v{F+4*t+2}, v{F+4*t+3}''')
            if t&1: e(f'ds_write2_b64 v{IW}, v[{50+2*t}:{51+2*t}], v[{52+2*t}:{53+2*t}] offset0:{4*t-4} offset1:{4*t}')
        e(f'''ds_read_b128 v[32:35], v{IR}
ds_read_b128 v[36:39], v{IR} offset:{144*nE}
buffer_store_dwordx4 v[32:35], v{OAD}, s[{sT1}:{sT1+3}], 0 offen {oaux}
buffer_store_dwordx4 v[36:39], v{OAD+1}, s[{sT1}:{sT1+3}], 0 offen {oaux}''')
        if fskip:
            import re
            k0=next(i for i,x in enumerate(it) if isinstance(x,str) and x.startswith('v_mfma'))
            k1=next(i for i,x in enumerate(it) if isinstance(x,str) and x.startswith('ds_read_b128 v[28:31], v69 offset:19456'))
            it=it[:k0]+[x for x in it[k0:k1] if not re.match(fskip,x)]+it[k1:]
        out=schedule(it,ldslat=ldslat,window=window,verbose=True)
        n=len(out); nxt=0
        for i,ln in enumerate(out):
            if nxt<len(fprio) and i>=n*nxt//len(fprio):
                a(f's_setprio {fprio[nxt]}'); nxt+=1
            a(ln)
    final(7)
    a('s_branch L_fend\nL_fin6:')
    final(6)
    a('L_fend:')
    if stamp:
        fst(2)
        a('s_memtime s[80:81]\ns_waitcnt lgkmcnt(0)\ns_sub_u32 s86, s80, s86')
        a('s_waitcnt vmcnt(0)')
        fst(3)
        a(f'''v_mov_b32 v0, s82
v_mov_b32 v1, s84
v_mov_b32 v2, s85
v_mov_b32 v3, s86
v_mov_b32 v4, {60*4}
s_mov_b64 exec, 1
buffer_store_dwordx4 v[0:3], v4, s[{sWS}:{sWS+3}], s88 offen''')
    if enc:
        a(f'''s_cmp_lg_u32 s2, {encwg}
s_cbranch_scc1 L_end
s_cmp_lg_u32 s{sW}, {encw}
s_cbranch_scc1 L_end
s_waitcnt vmcnt(0)
s_memrealtime s[80:81]
s_waitcnt lgkmcnt(0)
{'s_mov_b32 s84, s80' if enc[1] is None else ''}
s_sub_u32 s82, s84, s82
s_mul_i32 s82, s82, {enc[2]}
s_min_u32 s82, s82, 100000
L_encs:
s_memrealtime s[84:85]
s_waitcnt lgkmcnt(0)
s_sub_u32 s84, s84, s80
s_cmp_lt_u32 s84, s82
s_cbranch_scc1 L_encs''')
    a('L_end:\ns_endpgm')
    body=a.pad(verbose=True)
    ref=open('standalone__hybrid_graph_tf_nagphormer__graph.s.ref').read().split('\n')
    head=[l for l in ref if l.startswith(';') and '@launch' not in l]
    out='\n'.join(head)+f'''
; @launch grid=(256,1,1) block=(1024,1,1) lds={LDS_BYTES}
.amdgcn_target "amdgcn-amd-amdhsa--gfx950"
.text
.globl {KNAME}
.p2align 8
.type {KNAME},@function
{KNAME}:
'''+body+'.p2align 4\n.type lane_table,@object\nlane_table:\n'+''.join('  .long '+', '.join(f'{x:#x}' for x in t[i:i+4])+'\n' for t in tab for i in range(0,256,4))+'.size lane_table, 2048\n'+f'''.section .rodata,"a"
.p2align 6
.amdhsa_kernel {KNAME}
  .amdhsa_next_free_vgpr 128
  .amdhsa_next_free_sgpr 100
  .amdhsa_accum_offset 128
  .amdhsa_group_segment_fixed_size 0
  .amdhsa_kernarg_size 96
  .amdhsa_user_sgpr_count 2
  .amdhsa_user_sgpr_kernarg_segment_ptr 1
  .amdhsa_system_sgpr_workgroup_id_x 1
  .amdhsa_float_denorm_mode_32 3
.end_amdhsa_kernel
'''
    return out
if __name__=='__main__':
    kw=eval('dict('+(sys.argv[2] if len(sys.argv)>2 else '')+')')
    open(sys.argv[1] if len(sys.argv)>1 else 'standalone__hybrid_graph_tf_nagphormer__graph.s','w').write(gen(**kw))
```
